```python
import torch

def _softmax(x, axis=-1):
    return torch.softmax(x, dim=axis)
def _gelu(x):
    return torch.nn.functional.gelu(x, approximate="tanh")
def _silu(x):
    return torch.nn.functional.silu(x)
def _sigmoid(x):
    return torch.sigmoid(x)
def _layernorm(x, axis=-1, eps=1e-5):
    m = x.mean(dim=axis, keepdim=True)
    v = x.var(dim=axis, keepdim=True, unbiased=False)
    return (x - m) / torch.sqrt(v + eps)
def _scatter_add(tgt, idx, src, axis=0):
    return tgt.clone().index_add_(axis, idx, src)
def _segment_sum(src, seg, n):
    out = torch.zeros((n,) + src.shape[1:], dtype=src.dtype)
    return out.index_add_(0, seg, src)
def _pad(x, pw):
    flat = tuple(v for pair in reversed(pw) for v in pair)
    return torch.nn.functional.pad(x, flat)

kernel_name = 'standalone__mixer_s_mlp__sampling'

def setup_inputs():

    _w = (lambda a: (lambda t: t.to(torch.bfloat16) if t.is_floating_point() else t)(torch.as_tensor(a)))
    B, S, D, F = 32, 32, 512, 1792
    return {
        "x":  _w((lambda *s: torch.randn(*s, dtype=torch.bfloat16) * 0.4)(B, S, D)),
        "w1": _w((lambda *s: torch.randn(*s, dtype=torch.bfloat16) * 3.2)(D, D) * (D ** -0.5)),
        "w2": _w((lambda *s: torch.randn(*s, dtype=torch.bfloat16) * 3.2)(D, D) * (D ** -0.5)),
        "w3": _w((lambda *s: torch.randn(*s, dtype=torch.bfloat16) * 3.2)(D, F) * (D ** -0.5)),
        "w4": _w((lambda *s: torch.randn(*s, dtype=torch.bfloat16) * 0.8)(F, D) * (F ** -0.5)),
    }

def reference(x, w1, w2, w3, w4):
    B, S, D = x.shape
    h = _gelu(_layernorm(x, axis=-1) @ w1)
    c = D // 4
    g0 = _pad(h[:, :, 0*c:1*c], ((0, 0), (1, 0), (0, 0)))[:, :S, :]
    g1 = _pad(h[:, :, 1*c:2*c], ((0, 0), (0, 1), (0, 0)))[:, 1:, :]
    g2 = _pad(h[:, :, 2*c:3*c], ((0, 0), (2, 0), (0, 0)))[:, :S, :]
    g3 = _pad(h[:, :, 3*c:   ], ((0, 0), (0, 2), (0, 0)))[:, 2:, :]
    hs = torch.concatenate([g0, g1, g2, g3], axis=-1) @ w2
    x1 = x + hs
    h2 = _gelu(_layernorm(x1, axis=-1) @ w3) @ w4
    return x1 + h2
```

```python
def v(i, n=1):
    return f"v{i}" if n == 1 else f"v[{i}:{i+n-1}]"


def a(i, n=1):
    return f"a{i}" if n == 1 else f"a[{i}:{i+n-1}]"


def s(i, n=1):
    return f"s{i}" if n == 1 else f"s[{i}:{i+n-1}]"


class Asm:
    def __init__(self):
        self.lines = []
        self.vm = []
        self.lg = []
        self.nlabel = 0
        self.ninstr = 0

    def __call__(self, text):
        for ln in text.split("\n"):
            t = ln.strip()
            if not t:
                continue
            if not (t.endswith(":") or t.startswith(";") or t.startswith(".")):
                self.ninstr += 1
            self.lines.append(("" if t.endswith(":") else "  ") + t)

    def c(self, text):
        self.lines.append("  ; " + text)

    def label(self, stem="L"):
        self.nlabel += 1
        return f"{stem}_{self.nlabel}"

    def nop(self, n):
        while n > 0:
            k = min(n, 16)
            self(f"s_nop {k-1}")
            n -= k

    def vmem(self, text, tag=None):
        self(text)
        self.vm.append(tag)

    def wait_vm(self, tag=None):
        if tag is None:
            n = 0
        else:
            idx = [i for i, t in enumerate(self.vm) if t == tag]
            if not idx:
                return
            n = len(self.vm) - 1 - idx[-1]
        n = min(n, 63)
        self(f"s_waitcnt vmcnt({n})")
        self.vm = self.vm[len(self.vm) - n:] if n else []

    def lds(self, text, tag=None):
        self(text)
        self.lg.append(tag)

    def wait_lg(self, tag=None):
        if tag is None:
            n = 0
        else:
            idx = [i for i, t in enumerate(self.lg) if t == tag]
            if not idx:
                return
            n = len(self.lg) - 1 - idx[-1]
        n = min(n, 15)
        self(f"s_waitcnt lgkmcnt({n})")
        self.lg = self.lg[len(self.lg) - n:] if n else []

    def text(self):
        return "\n".join(self.lines) + "\n"
```

```python
import sys
import os
sys.path.insert(0, os.path.dirname(os.path.abspath(__file__)))
from asmlib import Asm, v, a, s

NAME = "standalone__mixer_s_mlp__sampling"

HB = 0
X1B = 1 << 20
GB = 2 << 20
GBATCH = 112 * 1024
STB = 6 << 20
FL = 7 << 20
FL1 = FL
FL2 = FL + 0x1000
FL3 = FL + 0x2000
EPO = FL + 0x4000
PROF = FL + 0x10000
WS_SIZE = 8 << 20
OOB = 0x80000000

B0 = 0
B1 = 32768
B3 = 98304
LNST = 1024
LNDUMMY = 8192 + 1024

S_J, S_M, S_B, S_U, S_B0, S_PG, S_W, S_TAG = 5, 6, 7, 8, 9, 10, 11, 12
S_T0, S_T1, S_T2, S_T3 = 3, 4, 14, 15
SRD_X, SRD_W1, SRD_W2, SRD_W3, SRD_W4, SRD_O, SRD_WS, SRD_DBG = 16, 20, 24, 28, 32, 36, 40, 44
S_KA = 48
S_OFF = 64
S_CNT = 65
S_4096 = 66
S_LB = 67
S_K1 = 68
S_K2 = 70
S_STAMP = 72

V_L, V_H, V_J, V_L16 = 0, 1, 2, 3
V_WD = 4
V_XD = 5
V_TRN, V_TRP = 9, 10
V_W3D, V_TR3 = 11, 12
V_RED = 13
V_K1 = 14
V_T = 16
SUM, SQ, P0, P1 = 20, 21, 22, 23
TE, TF, TG, TH = 24, 25, 26, 27
V_GS, V_F3, V_FO, V_RO = 28, 29, 30, 31
ACC = 32
SCOL = 64
BF = 80
X1P = 112
XRES = 116
V_A0, V_A1 = 120, 121
V_R0, V_Q0, V_R1, V_Q1 = 122, 123, 124, 125
V_ONES = 126
V_TAG = 127
WF = 128


class Gen:
    def __init__(self, local=False, profile=False, mimic=False):
        self.A = Asm()
        self.local = local
        self.profile = profile
        self.mimic = mimic
        self.ST = "" if local else " sc1"
        self.nstamp = 0

    def stamp(self):
        if not self.profile:
            return
        A = self.A
        r = S_STAMP + 2 * self.nstamp
        assert r + 1 <= 101
        self.nstamp += 1
        A(f"s_memrealtime {s(r,2)}")
        A("s_waitcnt lgkmcnt(0)")
        A.lg = []

    def dma_block(self, srd, voffs, n, lds_sgpr, lds_const, g_sgpr, g_const, g_step, tag, flags=""):
        A = self.A
        for i in range(n):
            if i % 4 == 0:
                if lds_sgpr is None:
                    A(f"s_mov_b32 m0, {lds_const + 1024*i}")
                else:
                    A(f"s_add_u32 m0, {s(lds_sgpr)}, {lds_const + 1024*i}")
            val = g_const + g_step * i - 1024 * (i % 4)
            assert val >= 0
            if g_sgpr is None:
                A(f"s_mov_b32 {s(S_OFF)}, {val}")
            else:
                A(f"s_add_u32 {s(S_OFF)}, {s(g_sgpr)}, {val}")
            off = f" offset:{1024*(i%4)}" if i % 4 else ""
            A.vmem(f"buffer_load_dwordx4 {v(voffs[i % len(voffs)])}, {s(srd,4)}, {s(S_OFF)} offen{off}{flags} lds", tag)

    def poll(self, vaddr, vtmp):
        A = self.A
        L = A.label("L_poll")
        Ld = A.label("L_polld")
        A(f"s_mov_b32 {s(S_CNT)}, 0x8000")
        A(f"{L}:")
        A(f"buffer_load_dword {v(vtmp)}, {v(vaddr)}, {s(SRD_WS,4)}, 0 offen sc1")
        A(f"s_sub_u32 {s(S_CNT)}, {s(S_CNT)}, 1")
        A(f"s_cmp_eq_u32 {s(S_CNT)}, 0")
        A(f"s_cbranch_scc1 {Ld}")
        A("s_waitcnt vmcnt(0)")
        A(f"v_cmp_ne_u32 vcc, {s(S_TAG)}, {v(vtmp)}")
        A("s_nop 4")
        A("s_cmp_eq_u64 vcc, 0")
        A(f"s_cbranch_scc0 {L}")
        A(f"{Ld}:")
        A("s_waitcnt vmcnt(0)")
        A.vm = []

    def barrier(self):
        self.A("s_barrier")

    def gelu_pairs(self, src, npairs, dst, t0):
        A = self.A
        n = npairs
        for p in range(n):
            A(f"v_pk_mul_f32 {v(t0+2*p,2)}, {v(src+2*p,2)}, {v(src+2*p,2)}")
        for p in range(n):
            A(f"v_pk_fma_f32 {v(t0+2*p,2)}, {v(t0+2*p,2)}, {s(S_K2,2)}, {v(V_K1,2)} op_sel_hi:[1,1,0]")
        for p in range(n):
            A(f"v_pk_mul_f32 {v(t0+2*p,2)}, {v(t0+2*p,2)}, {v(src+2*p,2)}")
        for e in range(2 * n):
            A(f"v_exp_f32 {v(t0+e)}, {v(t0+e)}")
        for p in range(n):
            A(f"v_pk_add_f32 {v(t0+2*p,2)}, {v(t0+2*p,2)}, 1.0 op_sel_hi:[1,0]")
        for e in range(2 * n):
            A(f"v_rcp_f32 {v(t0+e)}, {v(t0+e)}")
        for p in range(n):
            A(f"v_pk_mul_f32 {v(t0+2*p,2)}, {v(t0+2*p,2)}, {v(src+2*p,2)}")
        for p in range(n):
            A(f"v_cvt_pk_bf16_f32 {v(dst+p)}, {v(t0+2*p)}, {v(t0+2*p+1)}")

    def round_bf16(self, reg, tmp):
        A = self.A
        A(f"v_cvt_pk_bf16_f32 {v(tmp)}, {v(reg)}, {v(reg)}")
        A(f"v_lshlrev_b32 {v(reg)}, 16, {v(tmp)}")

    def ln_scalars(self, vsum, vsq, vr, vq, t):
        A = self.A
        A(f"v_mul_f32 {v(vsum)}, 0x3b000000, {v(vsum)}")
        A(f"v_mul_f32 {v(vsq)}, 0x3b000000, {v(vsq)}")
        A(f"v_fma_f32 {v(vsq)}, -{v(vsum)}, {v(vsum)}, {v(vsq)}")
        A(f"v_max_f32 {v(vsq)}, 0, {v(vsq)}")
        self.round_bf16(vsum, t)
        self.round_bf16(vsq, t)
        A(f"v_add_f32 {v(vsq)}, 0x3727c5ac, {v(vsq)}")
        self.round_bf16(vsq, t)
        A(f"v_sqrt_f32 {v(vsq)}, {v(vsq)}")
        A("s_nop 0")
        self.round_bf16(vsq, t)
        A(f"v_rcp_f32 {v(vr)}, {v(vsq)}")
        A("s_nop 0")
        A(f"v_mul_f32_e64 {v(vq)}, -{v(vsum)}, {v(vr)}")

    def half_sum(self, regs, tmps):
        A = self.A
        for r, t in zip(regs, tmps):
            A(f"v_mov_b32 {v(t)}, {v(r)}")
        A("s_nop 1")
        for r, t in zip(regs, tmps):
            A(f"v_permlane32_swap_b32 {v(r)}, {v(t)}")
        A("s_nop 1")
        for r, t in zip(regs, tmps):
            A(f"v_add_f32 {v(r)}, {v(r)}, {v(t)}")

    def reduce_write(self):
        A = self.A
        for k in (1, 2, 3):
            A.lds(f"ds_write_b128 {v(V_RED)}, {v(ACC+8*k,4)} offset:{k*2048}")
            A.lds(f"ds_write_b128 {v(V_RED)}, {v(ACC+8*k+4,4)} offset:{k*2048+1024}")

    def reduce_read(self):
        A = self.A
        for k in (1, 2, 3):
            A(f"v_xor_b32 {v(TE+k)}, {k*8192}, {v(V_RED)}")
        for k in (1, 2, 3):
            A.lds(f"ds_read_b128 {v(BF+8*(k-1),4)}, {v(TE+k)} offset:{k*2048}", "red")
            A.lds(f"ds_read_b128 {v(BF+8*(k-1)+4,4)}, {v(TE+k)} offset:{k*2048+1024}", "red")

    def reduce_add(self):
        A = self.A
        for k in range(3):
            for p in range(4):
                A(f"v_pk_add_f32 {v(ACC+2*p,2)}, {v(ACC+2*p,2)}, {v(BF+8*k+2*p,2)}")

    def park(self, dst_fn, base_v, nsteps, step_bytes, second, tiles, tag):
        A = self.A
        for st in range(nsteps):
            for f in range(tiles):
                reg = dst_fn(st, f)
                bv = base_v[f]
                A.lds(f"ds_read_b64_tr_b16 {reg(0,2)}, {v(bv)} offset:{st*step_bytes}", tag)
                A.lds(f"ds_read_b64_tr_b16 {reg(2,2)}, {v(bv)} offset:{st*step_bytes+second}", tag)

    def build(self):
        A = self.A
        ST = self.ST
        A(f"s_cmp_ge_u32 s2, 256")
        A(f"s_cbranch_scc1 L_end")
        A(f"s_load_dwordx16 {s(S_KA,16)}, s[0:1], 0")
        self.stamp()
        A(f"v_lshrrev_b32 {v(V_T)}, 6, v0")
        A(f"v_and_b32 {v(V_L)}, 63, v0")
        A(f"s_lshr_b32 {s(S_J)}, s2, 3")
        A(f"v_readfirstlane_b32 {s(S_W)}, {v(V_T)}")
        A(f"s_and_b32 {s(S_M)}, {s(S_J)}, 7")
        A(f"s_and_b32 {s(S_T0)}, s2, 7")
        A(f"s_lshl_b32 {s(S_B)}, {s(S_T0)}, 2")
        A(f"s_lshr_b32 {s(S_T1)}, {s(S_J)}, 3")
        A(f"s_add_u32 {s(S_B)}, {s(S_B)}, {s(S_T1)}")
        A(f"s_and_b32 {s(S_U)}, {s(S_J)}, 15")
        A(f"s_and_b32 {s(S_B0)}, {s(S_B)}, 0xfe")
        A(f"s_lshr_b32 {s(S_PG)}, {s(S_B)}, 1")
        A(f"v_lshrrev_b32 {v(V_H)}, 5, {v(V_L)}")
        A(f"v_and_b32 {v(V_J)}, 31, {v(V_L)}")
        A(f"v_lshlrev_b32 {v(V_L16)}, 4, {v(V_L)}")
        T = V_T
        A(f"v_lshrrev_b32 {v(T)}, 3, {v(V_L)}")
        A(f"v_lshlrev_b32 {v(T)}, 10, {v(T)}")
        A(f"v_bfe_u32 {v(T+1)}, {v(V_L)}, 4, 1")
        A(f"v_lshlrev_b32 {v(T+2)}, 2, {v(T+1)}")
        A(f"v_and_b32 {v(T+3)}, 7, {v(V_L)}")
        A(f"v_xor_b32 {v(T+3)}, {v(T+3)}, {v(T+2)}")
        A(f"v_lshl_add_u32 {v(T)}, {v(T+3)}, 4, {v(T)}")
        A(f"s_lshl_b32 {s(S_T0)}, {s(S_M)}, 7")
        A(f"v_add_u32 {v(V_WD)}, {s(S_T0)}, {v(T)}")
        A(f"v_lshrrev_b32 {v(T)}, 4, {v(V_L)}")
        A(f"v_and_b32 {v(T+2)}, 15, {v(V_L)}")
        A(f"v_xor_b32 {v(T+3)}, {v(T+2)}, {v(T)}")
        A(f"v_lshlrev_b32 {v(T+3)}, 4, {v(T+3)}")
        A(f"v_lshl_add_u32 {v(T+3)}, {v(T)}, 10, {v(T+3)}")
        A(f"s_lshl_b32 {s(S_T0)}, {s(S_B)}, 15")
        A(f"s_lshl_b32 {s(S_T1)}, {s(S_W)}, 8")
        A(f"s_add_u32 {s(S_T0)}, {s(S_T0)}, {s(S_T1)}")
        A(f"v_add_u32 {v(V_XD)}, {s(S_T0)}, {v(T+3)}")
        for q in (1, 2, 3):
            A(f"v_xor_b32 {v(V_XD+q)}, {64*q}, {v(V_XD)}")
        for srd, size in ((SRD_X, 1 << 20), (SRD_W1, 1 << 19), (SRD_W2, 1 << 19), (SRD_W3, 512 * 3584),
                          (SRD_W4, 1792 * 1024), (SRD_O, 1 << 20), (SRD_WS, WS_SIZE), (SRD_DBG, 256)):
            A(f"s_mov_b32 {s(srd+2)}, {size}")
            A(f"s_mov_b32 {s(srd+3)}, 0x20000")
        A(f"s_mov_b32 {s(S_4096)}, 4096")
        A("s_waitcnt lgkmcnt(0)")
        order = (SRD_X, SRD_W1, SRD_W2, SRD_W3, SRD_W4, SRD_O, SRD_DBG, SRD_WS)
        for i, srd in enumerate(order):
            A(f"s_mov_b32 {s(srd)}, {s(S_KA+2*i)}")
            A(f"s_mov_b32 {s(srd+1)}, {s(S_KA+2*i+1)}")
        A(f"s_lshl_b32 {s(S_T0)}, {s(S_PG)}, 7")
        A(f"s_add_u32 {s(S_T0)}, {s(S_T0)}, {EPO}")
        A(f"v_mov_b32 {v(V_TAG)}, {s(S_T0)}")
        A.vmem(f"buffer_load_dword {v(V_TAG)}, {v(V_TAG)}, {s(SRD_WS,4)}, 0 offen sc1", "epoch")
        A(f"s_lshl_b32 {s(S_LB)}, {s(S_W)}, 13")
        self.dma_block(SRD_X, [V_XD, V_XD + 1, V_XD + 2, V_XD + 3], 8, S_LB, B0, None, 0, 4096, "x")
        A(f"s_lshl_b32 {s(S_LB)}, {s(S_W)}, 14")
        A(f"s_lshl_b32 {s(S_T2)}, {s(S_W)}, 17")
        self.dma_block(SRD_W1, [V_WD], 16, S_LB, B1, S_T2, 0, 8192, "w1")
        A(f"s_lshl_b32 {s(S_T0)}, {s(S_B)}, 15")
        A(f"s_lshl_b32 {s(S_T1)}, {s(S_M)}, 7")
        A(f"s_add_u32 {s(S_T0)}, {s(S_T0)}, {s(S_T1)}")
        A(f"s_lshl_b32 {s(S_T1)}, {s(S_W)}, 5")
        A(f"s_add_u32 {s(S_T0)}, {s(S_T0)}, {s(S_T1)}")
        A(f"v_lshlrev_b32 {v(T)}, 10, {v(V_J)}")
        A(f"v_lshl_add_u32 {v(T)}, {v(V_H)}, 3, {v(T)}")
        A(f"v_add_u32 {v(V_RO)}, {s(S_T0)}, {v(T)}")
        A.vmem(f"buffer_load_dwordx2 {v(XRES,2)}, {v(V_RO)}, {s(SRD_X,4)}, 0 offen", "xres")
        A.vmem(f"buffer_load_dwordx2 {v(XRES+2,2)}, {v(V_RO)}, {s(SRD_X,4)}, 0 offen offset:16", "xres")
        self.dma_block(SRD_W2, [V_WD], 16, S_LB, B3, S_T2, 0, 8192, "w2")
        A(f"v_bfe_u32 {v(T)}, {v(V_L)}, 4, 1")
        A(f"v_lshlrev_b32 {v(T)}, 1, {v(T)}")
        A(f"v_bfe_u32 {v(T+1)}, {v(V_L)}, 1, 1")
        A(f"v_add_u32 {v(T)}, {v(T)}, {v(T+1)}")
        A(f"v_bfe_u32 {v(T+1)}, {v(V_L)}, 3, 1")
        A(f"v_lshl_add_u32 {v(T+2)}, {v(T+1)}, 2, {v(T)}")
        A(f"v_lshlrev_b32 {v(T+2)}, 4, {v(T+2)}")
        A(f"v_and_b32 {v(T+3)}, 1, {v(V_L)}")
        A(f"v_lshl_add_u32 {v(T+2)}, {v(T+3)}, 3, {v(T+2)}")
        A(f"s_lshl_b32 {s(S_T0)}, {s(S_W)}, 5")
        A(f"v_xor_b32 {v(T+2)}, {s(S_T0)}, {v(T+2)}")
        A(f"v_bfe_u32 {v(T+4)}, {v(V_L)}, 2, 2")
        A(f"v_lshl_add_u32 {v(T+5)}, {v(V_H)}, 3, {v(T+4)}")
        A(f"v_lshl_add_u32 {v(V_TRN)}, {v(T+5)}, 7, {v(T+2)}")
        A(f"v_lshl_add_u32 {v(T+5)}, {v(V_H)}, 2, {v(T+4)}")
        A(f"v_lshl_add_u32 {v(V_TRP)}, {v(T+5)}, 7, {v(T+2)}")
        A(f"s_lshl_b32 {s(S_T0)}, {s(S_W)}, 2")
        A(f"v_add_u32 {v(T)}, {s(S_T0)}, {v(T)}")
        A(f"v_lshlrev_b32 {v(T+1)}, 2, {v(T+4)}")
        A(f"v_xor_b32 {v(T)}, {v(T)}, {v(T+1)}")
        A(f"v_lshlrev_b32 {v(T)}, 4, {v(T)}")
        A(f"v_lshl_add_u32 {v(T)}, {v(T+3)}, 3, {v(T)}")
        A(f"v_lshl_add_u32 {v(V_TR3)}, {v(T+5)}, 8, {v(T)}")
        A(f"v_lshrrev_b32 {v(T)}, 4, {v(V_L)}")
        A(f"v_lshlrev_b32 {v(T+1)}, 2, {v(T)}")
        A(f"v_and_b32 {v(T+2)}, 15, {v(V_L)}")
        A(f"v_xor_b32 {v(T+1)}, {v(T+1)}, {v(T+2)}")
        A(f"v_lshlrev_b32 {v(T+1)}, 4, {v(T+1)}")
        A(f"v_mul_u32_u24 {v(T)}, 3584, {v(T)}")
        A(f"v_add_u32 {v(T)}, {v(T)}, {v(T+1)}")
        A(f"s_lshl_b32 {s(S_T0)}, {s(S_U)}, 8")
        A(f"s_cmp_ge_u32 {s(S_U)}, 14")
        A(f"s_cselect_b32 {s(S_T0)}, {OOB}, {s(S_T0)}")
        A(f"v_add_u32 {v(V_W3D)}, {s(S_T0)}, {v(T)}")
        import struct
        f2u = lambda x: struct.unpack("<I", struct.pack("<f", x))[0]
        c = (2.0 / 3.141592653589793) ** 0.5
        log2e = 1.4426950408889634
        k1 = -2.0 * c * log2e
        k2 = k1 * 0.044715
        A(f"s_mov_b32 {s(S_K2)}, {f2u(k2):#x}")
        A(f"s_mov_b32 {s(S_K2+1)}, {f2u(k2):#x}")
        A(f"v_mov_b32 {v(V_K1)}, {f2u(k1):#x}")
        A(f"v_mov_b32 {v(V_ONES)}, 0x3f803f80")
        A(f"s_lshl_b32 {s(S_T0)}, {s(S_W)}, 13")
        A(f"v_add_u32 {v(V_RED)}, {s(S_T0)}, {v(V_L16)}")
        A(f"v_and_b32 {v(T+1)}, 15, {v(V_J)}")
        A(f"v_xor_b32 {v(T+1)}, {v(T+1)}, {v(V_H)}")
        A(f"v_lshlrev_b32 {v(T+1)}, 4, {v(T+1)}")
        A(f"v_lshl_add_u32 {v(T+1)}, {v(V_J)}, 8, {v(T+1)}")
        A(f"s_lshl_b32 {s(S_T0)}, {s(S_W)}, 13")
        A(f"v_add_u32 {v(T+1)}, {s(S_T0)}, {v(T+1)}")
        for st in range(8):
            A(f"v_xor_b32 {v(SCOL+st)}, {32*st}, {v(T+1)}")
        A(f"s_lshl_b32 {s(S_T0)}, {s(S_W)}, 14")
        A(f"s_add_u32 {s(S_T1)}, {s(S_T0)}, {B1}")
        A(f"v_add_u32 {v(V_A0)}, {s(S_T1)}, {v(V_TRN)}")
        A(f"v_xor_b32 {v(V_A1)}, 64, {v(V_A0)}")
        A.wait_vm("epoch")
        A(f"v_readfirstlane_b32 {s(S_TAG)}, {v(V_TAG)}")
        A("s_nop 3")
        A(f"s_add_u32 {s(S_TAG)}, {s(S_TAG)}, 1")
        A(f"v_mov_b32 {v(V_TAG)}, {s(S_TAG)}")

        A.c("S1")
        A.wait_vm("x")
        self.stamp()
        for st in range(8):
            A.lds(f"ds_read_b128 {v(BF+4*st,4)}, {v(SCOL+st)}", "xf")
        A.wait_vm("w1")
        self.stamp()
        wf = lambda st, f: (lambda o, n: v(WF + 8 * st + 4 * f + o, n))
        self.park(wf, [V_A0, V_A1], 8, 2048, 512, 2, "wf")
        A.wait_lg()
        A(f"v_mov_b32 {v(SUM)}, 0")
        A(f"v_mov_b32 {v(SQ)}, 0")
        A(f"v_mov_b32 {v(P0)}, 0")
        A(f"v_mov_b32 {v(P1)}, 0")
        for st in range(8):
            c0 = "0" if st == 0 else v(ACC, 16)
            c1 = "0" if st == 0 else v(ACC + 16, 16)
            A(f"v_mfma_f32_32x32x16_bf16 {v(ACC,16)}, {v(WF+8*st,4)}, {v(BF+4*st,4)}, {c0}")
            A(f"v_mfma_f32_32x32x16_bf16 {v(ACC+16,16)}, {v(WF+8*st+4,4)}, {v(BF+4*st,4)}, {c1}")
            for d in range(4):
                A(f"v_dot2_f32_bf16 {v(SUM)}, {v(BF+4*st+d)}, {v(V_ONES)}, {v(SUM)}")
                A(f"v_dot2_f32_bf16 {v(SQ)}, {v(BF+4*st+d)}, {v(BF+4*st+d)}, {v(SQ)}")
                A(f"v_dot2_f32_bf16 {v(P0)}, {v(WF+8*st+d)}, {v(V_ONES)}, {v(P0)}")
                A(f"v_dot2_f32_bf16 {v(P1)}, {v(WF+8*st+4+d)}, {v(V_ONES)}, {v(P1)}")
        A.nop(3)
        self.half_sum([SUM, SQ, P0, P1], [TE, TF, TG, TH])
        A(f"s_lshl_b32 {s(S_T0)}, {s(S_W)}, 13")
        A(f"v_lshl_add_u32 {v(TE)}, {v(V_J)}, 3, {s(S_T0)}")
        A(f"s_lshl_b32 {s(S_T1)}, {s(S_W)}, 6")
        A(f"v_lshlrev_b32 {v(TF)}, 2, {v(V_J)}")
        A(f"v_xor_b32 {v(TF)}, {s(S_T1)}, {v(TF)}")
        A(f"v_xor_b32 {v(TG)}, 128, {v(TF)}")
        A(f"v_add_u32 {v(TF)}, {s(S_T0)}, {v(TF)}")
        A(f"v_add_u32 {v(TG)}, {s(S_T0)}, {v(TG)}")
        A.lds(f"ds_write_b64 {v(TE)}, {v(SUM,2)}")
        A.lds(f"ds_write_b32 {v(TF)}, {v(P0)} offset:256")
        A.lds(f"ds_write_b32 {v(TG)}, {v(P1)} offset:256")
        A.nop(8)
        self.reduce_write()
        A.wait_lg()
        self.barrier()
        self.reduce_read()
        A(f"s_lshl_b32 {s(S_T0)}, {s(S_W)}, 6")
        A(f"v_lshl_add_u32 {v(TE)}, {v(V_H)}, 4, {s(S_T0)}")
        A(f"v_lshlrev_b32 {v(TF)}, 3, {v(V_J)}")
        for src in range(4):
            for ap in range(2):
                A.lds(f"ds_read_b128 {v(WF+8*src+4*ap,4)}, {v(TE)} offset:{src*8192+256+ap*32}", "cs")
        for src in range(4):
            A.lds(f"ds_read_b64 {v(WF+32+2*src,2)}, {v(TF)} offset:{src*8192}", "st")
        A.wait_lg()
        self.reduce_add()
        for src in range(1, 4):
            for p in range(4):
                A(f"v_pk_add_f32 {v(WF+2*p,2)}, {v(WF+2*p,2)}, {v(WF+8*src+2*p,2)}")
        for src in range(1, 4):
            A(f"v_pk_add_f32 {v(WF+32,2)}, {v(WF+32,2)}, {v(WF+32+2*src,2)}")
        self.ln_scalars(WF + 32, WF + 33, V_R0, V_Q0, TE)
        for p in range(4):
            A(f"v_pk_mul_f32 {v(ACC+2*p,2)}, {v(ACC+2*p,2)}, {v(V_R0,2)} op_sel_hi:[1,0]")
        for p in range(4):
            A(f"v_pk_fma_f32 {v(ACC+2*p,2)}, {v(WF+2*p,2)}, {v(V_R0,2)}, {v(ACC+2*p,2)} op_sel:[0,1,0] op_sel_hi:[1,1,1]")
        self.gelu_pairs(ACC, 4, BF, BF + 8)
        A(f"s_lshl_b32 {s(S_T0)}, {s(S_B)}, 15")
        A(f"s_lshl_b32 {s(S_T1)}, {s(S_M)}, 12")
        A(f"s_lshl_b32 {s(S_T2)}, {s(S_W)}, 10")
        A(f"s_add_u32 {s(S_T0)}, {s(S_T0)}, {s(S_T1)}")
        A(f"s_add_u32 {s(S_T0)}, {s(S_T0)}, {s(S_T2)}")
        A(f"v_add_u32 {v(V_FO)}, {s(S_T0)}, {v(V_L16)}")
        A.vmem(f"buffer_store_dwordx4 {v(BF,4)}, {v(V_FO)}, {s(SRD_WS,4)}, 0 offen{ST}")
        A(f"s_lshl_b32 {s(S_T0)}, {s(S_B)}, 7")
        A(f"s_lshl_b32 {s(S_T1)}, {s(S_M)}, 4")
        A(f"s_lshl_b32 {s(S_T2)}, {s(S_W)}, 2")
        A(f"s_add_u32 {s(S_T0)}, {s(S_T0)}, {s(S_T1)}")
        A(f"s_add_u32 {s(S_T3)}, {s(S_T0)}, {s(S_T2)}")
        A(f"s_add_u32 {s(S_T0)}, {s(S_T3)}, {FL1}")
        A(f"v_mov_b32 {v(TE)}, {s(S_T0)}")
        A.wait_vm()
        A.vmem(f"buffer_store_dword {v(V_TAG)}, {v(TE)}, {s(SRD_WS,4)}, 0 offen{ST}")
        self.stamp()

        A.c("w3 chunks 0,1 ; park w2")
        A(f"s_mul_i32 {s(S_T1)}, {s(S_W)}, {32*3584}")
        A(f"s_lshl_b32 {s(S_LB)}, {s(S_W)}, 13")
        for c in (0, 1):
            self.dma_block(SRD_W3, [V_W3D], 8, S_LB, B1 + c * 32768, S_T1, 128 * c * 3584, 4 * 3584, "w3")
        A(f"s_lshl_b32 {s(S_T0)}, {s(S_W)}, 14")
        A(f"s_add_u32 {s(S_T0)}, {s(S_T0)}, {B3}")
        A(f"v_add_u32 {v(V_A0)}, {s(S_T0)}, {v(V_TRP)}")
        A(f"v_xor_b32 {v(V_A1)}, 64, {v(V_A0)}")
        w2f = lambda st, f: (lambda o, n: v(WF + 64 + 8 * st + 4 * f + o, n))
        self.park(w2f, [V_A0, V_A1], 8, 2048, 1024, 2, "w2f")
        A.wait_lg()
        self.barrier()
        for c in (2, 3):
            self.dma_block(SRD_W3, [V_W3D], 8, S_LB, B1 + c * 32768, S_T1, 128 * c * 3584, 4 * 3584, "w3")

        A.c("S2")
        A(f"s_lshl_b32 {s(S_T0)}, {s(S_B)}, 7")
        A(f"s_lshl_b32 {s(S_T2)}, {s(S_W)}, 5")
        A(f"s_add_u32 {s(S_T0)}, {s(S_T0)}, {s(S_T2)}")
        A(f"s_add_u32 {s(S_T0)}, {s(S_T0)}, {FL1}")
        A(f"v_and_b32 {v(TE)}, 7, {v(V_L)}")
        A(f"v_lshl_add_u32 {v(TE)}, {v(TE)}, 2, {s(S_T0)}")
        A(f"s_lshr_b32 {s(S_T0)}, {s(S_W)}, 1")
        A(f"s_add_u32 {s(S_T0)}, {s(S_T0)}, 1")
        A(f"s_sub_u32 {s(S_T2)}, 0, {s(S_T0)}")
        A(f"s_bitcmp1_b32 {s(S_W)}, 0")
        A(f"s_cselect_b32 {s(S_T0)}, {s(S_T2)}, {s(S_T0)}")
        A(f"v_subrev_u32 {v(TF)}, {s(S_T0)}, {v(V_J)}")
        A(f"v_cmp_gt_u32 vcc, 32, {v(TF)}")
        A(f"v_lshlrev_b32 {v(TF)}, 4, {v(TF)}")
        A(f"v_lshl_add_u32 {v(TF)}, {v(V_H)}, 9, {v(TF)}")
        A(f"s_lshl_b32 {s(S_T0)}, {s(S_B)}, 15")
        A(f"s_lshl_b32 {s(S_T2)}, {s(S_W)}, 13")
        A(f"s_add_u32 {s(S_T0)}, {s(S_T0)}, {s(S_T2)}")
        A(f"v_add_u32 {v(TF)}, {s(S_T0)}, {v(TF)}")
        A(f"v_mov_b32 {v(TG)}, {OOB:#x}")
        A(f"v_cndmask_b32 {v(TF)}, {v(TG)}, {v(TF)}, vcc")
        self.poll(TE, TG)
        self.stamp()
        for i in range(8):
            so = "0" if i < 4 else s(S_4096)
            off = f" offset:{(i%4)*1024}" if i % 4 else ""
            A.vmem(f"buffer_load_dwordx4 {v(BF+4*i,4)}, {v(TF)}, {s(SRD_WS,4)}, {so} offen{off} sc1", f"h{i}")
        for st in range(8):
            A.wait_vm(f"h{st}")
            c0 = "0" if st == 0 else v(ACC, 16)
            c1 = "0" if st == 0 else v(ACC + 16, 16)
            A(f"v_mfma_f32_32x32x16_bf16 {v(ACC,16)}, {v(WF+64+8*st,4)}, {v(BF+4*st,4)}, {c0}")
            A(f"v_mfma_f32_32x32x16_bf16 {v(ACC+16,16)}, {v(WF+64+8*st+4,4)}, {v(BF+4*st,4)}, {c1}")
        A.nop(12)
        self.reduce_write()
        A.wait_lg()
        self.barrier()
        self.reduce_read()
        A.wait_lg()
        self.reduce_add()
        if self.mimic:
            for p in range(4):
                A(f"v_cvt_pk_bf16_f32 {v(BF+p)}, {v(ACC+2*p)}, {v(ACC+2*p+1)}")
            for p in range(4):
                A(f"v_lshlrev_b32 {v(ACC+2*p)}, 16, {v(BF+p)}")
                A(f"v_and_b32 {v(ACC+2*p+1)}, 0xffff0000, {v(BF+p)}")
        for p in range(4):
            A(f"v_lshlrev_b32 {v(BF+8+2*p)}, 16, {v(XRES+p)}")
            A(f"v_and_b32 {v(BF+8+2*p+1)}, 0xffff0000, {v(XRES+p)}")
        for p in range(4):
            A(f"v_pk_add_f32 {v(ACC+2*p,2)}, {v(ACC+2*p,2)}, {v(BF+8+2*p,2)}")
        for p in range(4):
            A(f"v_cvt_pk_bf16_f32 {v(X1P+p)}, {v(ACC+2*p)}, {v(ACC+2*p+1)}")
        A(f"v_add_u32 {v(TE)}, {X1B}, {v(V_FO)}")
        A.vmem(f"buffer_store_dwordx4 {v(X1P,4)}, {v(TE)}, {s(SRD_WS,4)}, 0 offen{ST}")
        A(f"v_mov_b32 {v(SUM)}, 0")
        A(f"v_mov_b32 {v(SQ)}, 0")
        for d in range(4):
            A(f"v_dot2_f32_bf16 {v(SUM)}, {v(X1P+d)}, {v(V_ONES)}, {v(SUM)}")
            A(f"v_dot2_f32_bf16 {v(SQ)}, {v(X1P+d)}, {v(X1P+d)}, {v(SQ)}")
        A.nop(3)
        self.half_sum([SUM, SQ], [TF, TG])
        A(f"s_lshl_b32 {s(S_T0)}, {s(S_B)}, 13")
        A(f"s_lshl_b32 {s(S_T1)}, {s(S_M)}, 10")
        A(f"s_lshl_b32 {s(S_T2)}, {s(S_W)}, 8")
        A(f"s_add_u32 {s(S_T0)}, {s(S_T0)}, {s(S_T1)}")
        A(f"s_add_u32 {s(S_T0)}, {s(S_T0)}, {s(S_T2)}")
        A(f"s_add_u32 {s(S_T0)}, {s(S_T0)}, {STB}")
        A(f"v_lshl_add_u32 {v(TF)}, {v(V_J)}, 3, {s(S_T0)}")
        A.vmem(f"buffer_store_dwordx2 {v(SUM,2)}, {v(TF)}, {s(SRD_WS,4)}, 0 offen{ST}")
        A(f"s_add_u32 {s(S_T0)}, {s(S_T3)}, {FL2}")
        A(f"v_mov_b32 {v(TE)}, {s(S_T0)}")
        A.wait_vm()
        A.vmem(f"buffer_store_dword {v(V_TAG)}, {v(TE)}, {s(SRD_WS,4)}, 0 offen{ST}")
        self.stamp()

        A.c("park w3")
        for c in range(4):
            A(f"v_add_u32 {v(V_A0)}, {B1 + c*32768}, {v(V_TR3)}")
            w3f = lambda st, f, c=c: (lambda o, n: v(WF + 4 * (8 * c + st) + o, n))
            self.park(w3f, [V_A0], 8, 4096, 2048, 1, "w3f")
            A.wait_lg()
        A(f"v_mov_b32 {v(BF)}, 0x3f803f80")
        A(f"v_mov_b32 {v(BF+1)}, 0x3f803f80")
        A(f"v_mov_b32 {v(BF+2)}, 0x3f803f80")
        A(f"v_mov_b32 {v(BF+3)}, 0x3f803f80")
        A.nop(2)
        for st in range(32):
            c0 = "0" if st == 0 else v(SCOL, 16)
            A(f"v_mfma_f32_32x32x16_bf16 {v(SCOL,16)}, {v(WF+4*st,4)}, {v(BF,4)}, {c0}")
        self.barrier()

        A.c("w4 ring fill")
        A(f"s_mul_i32 {s(S_T1)}, {s(S_W)}, {448*1024}")
        A(f"s_lshl_b32 {s(S_LB)}, {s(S_W)}, 14")
        self.dma_block(SRD_W4, [V_WD], 16, S_LB, B3, S_T1, 0, 8192, "w4a")

        A.c("S3")
        A(f"s_lshl_b32 {s(S_T0)}, {s(S_B0)}, 7")
        A(f"s_add_u32 {s(S_T0)}, {s(S_T0)}, {FL2}")
        A(f"v_lshl_add_u32 {v(TE)}, {v(V_L)}, 2, {s(S_T0)}")
        self.poll(TE, TG)
        self.stamp()
        A(f"s_lshl_b32 {s(S_T0)}, {s(S_PG)}, 7")
        A(f"s_add_u32 {s(S_T0)}, {s(S_T0)}, {EPO}")
        A(f"s_or_b32 {s(S_T2)}, {s(S_U)}, {s(S_W)}")
        A(f"s_cmp_eq_u32 {s(S_T2)}, 0")
        A(f"s_cselect_b32 {s(S_T0)}, {s(S_T0)}, {OOB}")
        A(f"v_mov_b32 {v(TE)}, {s(S_T0)}")
        A.vmem(f"buffer_store_dword {v(V_TAG)}, {v(TE)}, {s(SRD_WS,4)}, 0 offen sc1")
        A(f"s_lshl_b32 {s(S_T0)}, {s(S_B0)}, 15")
        A(f"s_lshl_b32 {s(S_LB)}, {s(S_W)}, 13")
        A(f"s_add_u32 {s(S_T0)}, {s(S_T0)}, {s(S_LB)}")
        for t in range(2):
            self.dma_block(SRD_WS, [V_L16], 8, S_LB, B1 + t * 32768, S_T0, X1B + t * 32768, 1024, "x1", " sc1")
        A(f"s_lshr_b32 {s(S_T2)}, {s(S_W)}, 1")
        A(f"s_add_u32 {s(S_T2)}, {s(S_T2)}, {s(S_B0)}")
        A(f"s_lshl_b32 {s(S_T2)}, {s(S_T2)}, 13")
        A(f"s_add_u32 {s(S_T2)}, {s(S_T2)}, {STB}")
        A(f"s_bitcmp1_b32 {s(S_W)}, 0")
        A(f"s_cselect_b32 {s(S_T2)}, {OOB}, {s(S_T2)}")
        A(f"v_add_u32 {v(TE)}, {s(S_T2)}, {v(V_L16)}")
        for i in range(8):
            so = "0" if i < 4 else s(S_4096)
            off = f" offset:{(i%4)*1024}" if i % 4 else ""
            A.vmem(f"buffer_load_dwordx4 {v(BF+4*i,4)}, {v(TE)}, {s(SRD_WS,4)}, {so} offen{off} sc1", "st")
        A.wait_vm()
        for i in range(1, 8):
            A(f"v_pk_add_f32 {v(BF,2)}, {v(BF,2)}, {v(BF+4*i,2)}")
            A(f"v_pk_add_f32 {v(BF+2,2)}, {v(BF+2,2)}, {v(BF+4*i+2,2)}")
        self.half_sum([BF, BF + 1, BF + 2, BF + 3], [BF + 4, BF + 5, BF + 6, BF + 7])
        for r in range(4):
            A(f"v_mov_b32 {v(BF+4+r)}, {v(BF+r)}")
        A("s_nop 1")
        for r in range(4):
            A(f"v_permlane16_swap_b32 {v(BF+r)}, {v(BF+4+r)}")
        A("s_nop 1")
        for r in range(4):
            A(f"v_add_f32 {v(BF+r)}, {v(BF+r)}, {v(BF+4+r)}")
        self.ln_scalars(BF, BF + 1, BF + 8, BF + 9, BF + 12)
        self.ln_scalars(BF + 2, BF + 3, BF + 10, BF + 11, BF + 12)
        A(f"s_lshr_b32 {s(S_T2)}, {s(S_W)}, 1")
        A(f"s_lshl_b32 {s(S_T2)}, {s(S_T2)}, 8")
        A(f"s_add_u32 {s(S_T2)}, {s(S_T2)}, {LNST}")
        A(f"s_bitcmp1_b32 {s(S_W)}, 0")
        A(f"s_cselect_b32 {s(S_T2)}, {LNDUMMY}, {s(S_T2)}")
        A(f"v_and_b32 {v(TE)}, 15, {v(V_L)}")
        A(f"v_lshl_add_u32 {v(TE)}, {v(TE)}, 4, {s(S_T2)}")
        A.lds(f"ds_write_b128 {v(TE)}, {v(BF+8,4)}")
        A.wait_lg()
        self.barrier()
        A(f"v_lshlrev_b32 {v(TE)}, 3, {v(V_J)}")
        A.lds(f"ds_read_b64 {v(V_R0,2)}, {v(TE)} offset:{LNST}")
        A.lds(f"ds_read_b64 {v(V_R1,2)}, {v(TE)} offset:{LNST+256}")
        A(f"v_add_u32 {v(TF)}, {B1}, {v(V_L16)}")
        self.stamp()
        A(f"s_mul_i32 {s(S_T0)}, {s(S_B0)}, {GBATCH}")
        A(f"s_lshl_b32 {s(S_T2)}, {s(S_U)}, 13")
        A(f"s_add_u32 {s(S_T0)}, {s(S_T0)}, {s(S_T2)}")
        A(f"s_lshl_b32 {s(S_T2)}, {s(S_W)}, 11")
        A(f"s_add_u32 {s(S_T0)}, {s(S_T0)}, {s(S_T2)}")
        A(f"s_add_u32 {s(S_T0)}, {s(S_T0)}, {GB}")
        A(f"s_cmp_ge_u32 {s(S_U)}, 14")
        A(f"s_cselect_b32 {s(S_T0)}, {OOB}, {s(S_T0)}")
        A(f"v_add_u32 {v(V_GS)}, {s(S_T0)}, {v(V_L16)}")
        A(f"s_lshl_b32 {s(S_T0)}, {s(S_B0)}, 8")
        A(f"s_lshl_b32 {s(S_T2)}, {s(S_U)}, 4")
        A(f"s_add_u32 {s(S_T0)}, {s(S_T0)}, {s(S_T2)}")
        A(f"s_lshl_b32 {s(S_T2)}, {s(S_W)}, 2")
        A(f"s_add_u32 {s(S_T0)}, {s(S_T0)}, {s(S_T2)}")
        A(f"s_add_u32 {s(S_T0)}, {s(S_T0)}, {FL3}")
        A(f"s_cmp_ge_u32 {s(S_U)}, 14")
        A(f"s_cselect_b32 {s(S_T0)}, {OOB}, {s(S_T0)}")
        A(f"v_mov_b32 {v(V_F3)}, {s(S_T0)}")
        for t in range(2):
            acc = ACC + 16 * t
            NB = 4
            for st in range(min(NB, 32)):
                A.lds(f"ds_read_b128 {v(BF+4*(st%8),4)}, {v(TF)} offset:{t*32768+st*1024}", f"b{st}")
            for st in range(32):
                A.wait_lg(f"b{st}")
                c0 = "0" if st == 0 else v(acc, 16)
                A(f"v_mfma_f32_32x32x16_bf16 {v(acc,16)}, {v(WF+4*st,4)}, {v(BF+4*(st%8),4)}, {c0}")
                if st + NB < 32:
                    n = st + NB
                    A.lds(f"ds_read_b128 {v(BF+4*(n%8),4)}, {v(TF)} offset:{t*32768+n*1024}", f"b{n}")
        A.nop(12)
        for t in range(2):
            acc = ACC + 16 * t
            vr = V_R0 if t == 0 else V_R1
            for p in range(8):
                A(f"v_pk_mul_f32 {v(acc+2*p,2)}, {v(acc+2*p,2)}, {v(vr,2)} op_sel_hi:[1,0]")
            for p in range(8):
                A(f"v_pk_fma_f32 {v(acc+2*p,2)}, {v(SCOL+2*p,2)}, {v(vr,2)}, {v(acc+2*p,2)} op_sel:[0,1,0] op_sel_hi:[1,1,1]")
            self.gelu_pairs(acc, 8, BF, BF + 8)
            so = "0" if t == 0 else s(S_T0)
            if t == 1:
                A(f"s_mov_b32 {s(S_T0)}, {GBATCH}")
            A.vmem(f"buffer_store_dwordx4 {v(BF,4)}, {v(V_GS)}, {s(SRD_WS,4)}, {so} offen{ST}")
            A.vmem(f"buffer_store_dwordx4 {v(BF+4,4)}, {v(V_GS)}, {s(SRD_WS,4)}, {so} offen offset:1024{ST}")
            A.wait_vm()
            off = " offset:256" if t == 1 else ""
            A.vmem(f"buffer_store_dword {v(V_TAG)}, {v(V_F3)}, {s(SRD_WS,4)}, 0 offen{off}{ST}")
        self.stamp()

        A.c("w4 parking")
        A(f"s_lshl_b32 {s(S_T0)}, {s(S_W)}, 14")
        A(f"s_add_u32 {s(S_T0)}, {s(S_T0)}, {B3}")
        A(f"v_add_u32 {v(V_A0)}, {s(S_T0)}, {v(V_TRP)}")
        A(f"v_xor_b32 {v(V_A1)}, 64, {v(V_A0)}")
        A(f"s_mul_i32 {s(S_T1)}, {s(S_W)}, {448*1024}")
        A(f"s_lshl_b32 {s(S_LB)}, {s(S_W)}, 14")
        done = 0
        rnd = 0
        while done < 28:
            n = min(8, 28 - done)
            if rnd > 0:
                self.dma_block(SRD_W4, [V_WD], 2 * n, S_LB, B3, S_T1, done * 16 * 1024, 8192, "w4a")
            A.wait_vm()
            w4f = lambda st, f, d=done: (lambda o, nn: a(8 * (d + st) + 4 * f + o, nn))
            self.park(w4f, [V_A0, V_A1], n, 2048, 1024, 2, "w4f")
            A.wait_lg()
            done += n
            rnd += 1

        A.c("S4")
        A(f"s_lshl_b32 {s(S_T0)}, {s(S_B)}, 8")
        A(f"s_mul_i32 {s(S_T2)}, {s(S_W)}, 56")
        A(f"s_add_u32 {s(S_T0)}, {s(S_T0)}, {s(S_T2)}")
        A(f"s_add_u32 {s(S_T0)}, {s(S_T0)}, {FL3}")
        A(f"v_min_u32 {v(TE)}, 13, {v(V_L)}")
        A(f"v_lshl_add_u32 {v(TE)}, {v(TE)}, 2, {s(S_T0)}")
        A(f"s_mul_i32 {s(S_T0)}, {s(S_B)}, {GBATCH}")
        A(f"s_mul_i32 {s(S_T2)}, {s(S_W)}, {28*1024}")
        A(f"s_add_u32 {s(S_T0)}, {s(S_T0)}, {s(S_T2)}")
        A(f"s_add_u32 {s(S_T0)}, {s(S_T0)}, {GB}")
        A(f"v_add_u32 {v(TF)}, {s(S_T0)}, {v(V_L16)}")
        self.poll(TE, TG)
        self.stamp()
        for i in range(28):
            if i % 4 == 0:
                A(f"s_mov_b32 {s(S_OFF)}, {(i//4)*4096}")
            off = f" offset:{(i%4)*1024}" if i % 4 else ""
            A.vmem(f"buffer_load_dwordx4 {v(WF+4*i,4)}, {v(TF)}, {s(SRD_WS,4)}, {s(S_OFF)} offen{off} sc1", f"g{i}")
        for st in range(28):
            A.wait_vm(f"g{st}")
            c0 = "0" if st == 0 else v(ACC, 16)
            c1 = "0" if st == 0 else v(ACC + 16, 16)
            A(f"v_mfma_f32_32x32x16_bf16 {v(ACC,16)}, {a(8*st,4)}, {v(WF+4*st,4)}, {c0}")
            A(f"v_mfma_f32_32x32x16_bf16 {v(ACC+16,16)}, {a(8*st+4,4)}, {v(WF+4*st,4)}, {c1}")
        A.nop(12)
        self.reduce_write()
        A.wait_lg()
        self.barrier()
        self.reduce_read()
        A.wait_lg()
        self.reduce_add()
        if self.mimic:
            for p in range(4):
                A(f"v_cvt_pk_bf16_f32 {v(BF+p)}, {v(ACC+2*p)}, {v(ACC+2*p+1)}")
            for p in range(4):
                A(f"v_lshlrev_b32 {v(ACC+2*p)}, 16, {v(BF+p)}")
                A(f"v_and_b32 {v(ACC+2*p+1)}, 0xffff0000, {v(BF+p)}")
        for p in range(4):
            A(f"v_lshlrev_b32 {v(BF+8+2*p)}, 16, {v(X1P+p)}")
            A(f"v_and_b32 {v(BF+8+2*p+1)}, 0xffff0000, {v(X1P+p)}")
        for p in range(4):
            A(f"v_pk_add_f32 {v(ACC+2*p,2)}, {v(ACC+2*p,2)}, {v(BF+8+2*p,2)}")
        for p in range(4):
            A(f"v_cvt_pk_bf16_f32 {v(BF+p)}, {v(ACC+2*p)}, {v(ACC+2*p+1)}")
        A.vmem(f"buffer_store_dwordx2 {v(BF,2)}, {v(V_RO)}, {s(SRD_O,4)}, 0 offen")
        A.vmem(f"buffer_store_dwordx2 {v(BF+2,2)}, {v(V_RO)}, {s(SRD_O,4)}, 0 offen offset:16")
        self.stamp()
        if self.profile:
            A(f"s_lshl_b32 {s(S_T0)}, s2, 2")
            A(f"s_add_u32 {s(S_T0)}, {s(S_T0)}, {s(S_W)}")
            A(f"s_lshl_b32 {s(S_T0)}, {s(S_T0)}, 7")
            A(f"s_add_u32 {s(S_T0)}, {s(S_T0)}, {PROF}")
            A(f"v_mov_b32 {v(V_T)}, {s(S_T0)}")
            for i in range(self.nstamp):
                A(f"v_mov_b32 {v(V_T+1)}, {s(S_STAMP+2*i)}")
                A(f"buffer_store_dword {v(V_T+1)}, {v(V_T)}, {s(SRD_WS,4)}, 0 offen offset:{4*i}")
        A("s_waitcnt vmcnt(0)")
        A("L_end:")
        A("s_endpgm")


HEADER = """; Kernarg layout: x, w1, w2, w3, w4, out, debug, ws (8 pointers)
; @launch grid=(256,1,1) block=(256,1,1) lds=163840
.amdgcn_target "amdgcn-amd-amdhsa--gfx950"
.text
.globl {name}_kernel
.p2align 8
.type {name}_kernel,@function
{name}_kernel:
"""
FOOTER = """.section .rodata,"a"
.p2align 6
.amdhsa_kernel {name}_kernel
  .amdhsa_next_free_vgpr 512
  .amdhsa_next_free_sgpr 102
  .amdhsa_accum_offset 256
  .amdhsa_group_segment_fixed_size 0
  .amdhsa_kernarg_size 64
  .amdhsa_user_sgpr_count 2
  .amdhsa_user_sgpr_kernarg_segment_ptr 1
  .amdhsa_system_sgpr_workgroup_id_x 1
  .amdhsa_float_denorm_mode_32 3
.end_amdhsa_kernel
"""


def generate(**kw):
    g = Gen(**kw)
    g.build()
    return HEADER.format(name=NAME) + g.A.text() + FOOTER.format(name=NAME), g


if __name__ == "__main__":
    import argparse
    ap = argparse.ArgumentParser()
    ap.add_argument("-o", default="cdna_kernels/" + NAME + ".s")
    ap.add_argument("--local", action="store_true")
    ap.add_argument("--profile", action="store_true")
    ap.add_argument("--mimic", action="store_true")
    args = ap.parse_args()
    txt, g = generate(local=args.local, profile=args.profile, mimic=args.mimic)
    open(args.o, "w").write(txt)
    print("instructions:", g.A.ninstr, "stamps:", g.nstamp)
```

```python
def v(i, n=1):
    return f"v{i}" if n == 1 else f"v[{i}:{i+n-1}]"


def a(i, n=1):
    return f"a{i}" if n == 1 else f"a[{i}:{i+n-1}]"


def s(i, n=1):
    return f"s{i}" if n == 1 else f"s[{i}:{i+n-1}]"


class Asm:
    def __init__(self):
        self.lines = []
        self.vm = []
        self.lg = []
        self.force_lg0 = False
        self.nlabel = 0
        self.ninstr = 0

    def __call__(self, text):
        for ln in text.split("\n"):
            t = ln.strip()
            if not t:
                continue
            if not (t.endswith(":") or t.startswith(";") or t.startswith(".")):
                self.ninstr += 1
            self.lines.append(("" if t.endswith(":") else "  ") + t)

    def c(self, text):
        self.lines.append("  ; " + text)

    def label(self, stem="L"):
        self.nlabel += 1
        return f"{stem}_{self.nlabel}"

    def nop(self, n):
        while n > 0:
            k = min(n, 16)
            self(f"s_nop {k-1}")
            n -= k

    def vmem(self, text, tag=None):
        self(text)
        self.vm.append(tag)

    def wait_vm(self, tag=None):
        if tag is None:
            n = 0
        else:
            idx = [i for i, t in enumerate(self.vm) if t == tag]
            if not idx:
                return
            n = len(self.vm) - 1 - idx[-1]
        n = min(n, 63)
        self(f"s_waitcnt vmcnt({n})")
        self.vm = self.vm[len(self.vm) - n:] if n else []

    def lds(self, text, tag=None):
        self(text)
        self.lg.append(tag)

    def wait_lg(self, tag=None):
        if tag is None or self.force_lg0:
            n = 0
            self.force_lg0 = False
        else:
            idx = [i for i, t in enumerate(self.lg) if t == tag]
            if not idx:
                return
            n = len(self.lg) - 1 - idx[-1]
        n = min(n, 15)
        self(f"s_waitcnt lgkmcnt({n})")
        self.lg = self.lg[len(self.lg) - n:] if n else []

    def text(self):
        return "\n".join(self.lines) + "\n"
```

```python
import sys
import os
import struct
sys.path.insert(0, os.path.dirname(os.path.abspath(__file__)))
from asmlib import Asm, v, a, s

NAME = "standalone__mixer_s_mlp__sampling"

HB = 0
X1B = 1 << 20
GB = 2 << 20
GBATCH = 112 * 1024
STB = 6 << 20
FL = 7 << 20
FL1 = FL
FL1G = FL + 0x1000
FL2 = FL + 0x2000
FL3 = FL + 0x3000
EPO = FL + 0x4000
HS = FL + 0x5000
PROF = FL + 0x10000
WS_SIZE = 8 << 20
OOB = 0x80000000

R0, R1, R2, R3, R4 = 0, 32768, 65536, 98304, 131072
PART = R4 + 32768 - 1024
LNST = 0
LNDUMMY = 1024

S_T0, S_T1 = 3, 4
S_J, S_M, S_B, S_U, S_B0, S_PG, S_W, S_TAG, S_MODE = 5, 6, 7, 8, 9, 10, 11, 12, 13
S_T2, S_T3 = 14, 15
SRD_X, SRD_W1, SRD_W2, SRD_W3, SRD_W4, SRD_O, SRD_WS = 16, 20, 24, 28, 32, 36, 40
S_XCC, S_FLO, S_T4, S_GW = 44, 45, 46, 47
S_A = 60
S_KA = 48
S_L8, S_L16, S_L4 = 48, 49, 50
S_C = 51
S_D = 54
S_EX = 58
S_OFF = 64
S_CNT = 65
S_4096 = 66
S_K2 = 68
S_PC = 70
S_STAMP = 72

V_L, V_H, V_J, V_L16 = 0, 1, 2, 3
V_WD = 4
V_W2D = 5
V_W1D = 6
V_XD = 8
V_Q, V_I = 9, 10
V_W3D, V_TR3 = 11, 12
V_RED = 13
V_K1 = 14
V_T = 16
SUM, SQ, P0, P1 = 20, 21, 22, 23
TE, TF, TG, TH = 24, 25, 26, 27
V_GS, V_F3, V_FO, V_RO = 28, 29, 30, 31
ACC = 32
SCOL = 64
BF = 80
X1P = 112
XRES = 116
V_A0, V_A1 = 120, 121
V_R0, V_Q0, V_R1, V_Q1 = 122, 123, 124, 125
V_ONES = 126
V_TAG = 127
WF = 128
JUNK = 15


def f2u(x):
    return struct.unpack("<I", struct.pack("<f", x))[0]


class Gen:
    def __init__(self, local=None, profile=False, opts=None):
        self.A = Asm()
        self.force = local
        self.profile = profile
        self.nstamp = 0
        self.stamp_names = []
        self.slow_blocks = []
        self.bgq = []
        self.o = dict(codepf=1, t_w=1, t_ex=1, t_g=1, g_sc1=0, rot=1, w2_in_s1=10, bg_t0=24, bg_t1=12,
                      c_pre1=0, c_s2=11, c_post2=0)
        if opts:
            self.o.update(opts)

    def stamp(self, name="?"):
        if not self.profile:
            return
        want = self.o.get("stamps")
        if want is not None and name not in want:
            return
        A = self.A
        r = S_STAMP + 2 * self.nstamp
        assert r + 1 <= 97, "too many stamps"
        self.nstamp += 1
        self.stamp_names.append(name)
        A(f"s_memrealtime {s(r,2)}")
        A.force_lg0 = True

    def bg(self, n=1):
        for _ in range(n):
            if self.bgq:
                self.bgq.pop(0)()

    def bg_flush(self):
        self.bg(len(self.bgq))

    def wdma_items(self, srd, vaddrs, n, lds_sgpr, lds_const, consts, group_step, tag, tagfn=None):
        A = self.A
        items = []
        for i in range(n):
            def item(i=i):
                k = i % 4
                if k == 0:
                    A(f"s_add_u32 m0, {s(lds_sgpr)}, {lds_const + 1024*i}")
                    if i == 0:
                        A("s_nop 0")
                    else:
                        for va in sorted(set(vaddrs)):
                            A(f"v_add_u32 {v(va)}, {group_step}, {v(va)}")
                so = "0" if k == 0 else s(consts + k - 1)
                off = f" offset:{1024*k}" if k else ""
                A.vmem(f"buffer_load_dwordx4 {v(vaddrs[i % len(vaddrs)])}, {s(srd,4)}, {so} offen{off} lds",
                       tagfn(i) if tagfn else tag)
                if i == n - 1:
                    for va in sorted(set(vaddrs)):
                        A(f"v_add_u32 {v(va)}, {group_step}, {v(va)}")
            items.append(item)
        return items

    def lin_dma(self, vaddr, n, lds_sgpr, lds_const, g_sgpr, g_const, tag):
        A = self.A
        for i in range(n):
            if i % 4 == 0:
                A(f"s_add_u32 m0, {s(lds_sgpr)}, {lds_const + 1024*i}")
                A(f"s_add_u32 {s(S_OFF)}, {s(g_sgpr)}, {g_const + 1024*i}")
            off = f" offset:{1024*(i%4)}" if i % 4 else ""
            A.vmem(f"buffer_load_dwordx4 {v(vaddr)}, {s(SRD_WS,4)}, {s(S_OFF)} offen{off} sc1 lds", tag)

    def tr_items(self, dst_fn, base_v, nsteps, step_bytes, second, tiles, tag, off0=0):
        A = self.A
        items = []
        for st in range(nsteps):
            for f in range(tiles):
                def item(st=st, f=f):
                    reg = dst_fn(st, f)
                    bv = base_v[f]
                    A.lds(f"ds_read_b64_tr_b16 {reg(0,2)}, {v(bv)} offset:{off0+st*step_bytes}", tag)
                    A.lds(f"ds_read_b64_tr_b16 {reg(2,2)}, {v(bv)} offset:{off0+st*step_bytes+second}", tag)
                items.append(item)
        return items

    def publish(self, stores, sc1=False):
        A = self.A
        if sc1:
            for t in stores:
                A.vmem(t.replace("{F}", " sc1"))
            return
        if self.force is True:
            for t in stores:
                A.vmem(t.replace("{F}", ""))
            return
        if self.force is False:
            for t in stores:
                A.vmem(t.replace("{F}", " sc1"))
            return
        Ls, Lb = A.label("L_slow"), A.label("L_back")
        A(f"s_cbranch_vccnz {Ls}") if False else None
        A(f"s_cmp_eq_u32 {s(S_MODE)}, 1")
        A(f"s_cbranch_scc0 {Ls}")
        for t in stores:
            A.vmem(t.replace("{F}", ""))
        A(f"{Lb}:")
        blk = [f"{Ls}:"] + [t.replace("{F}", " sc1") for t in stores] + [f"s_branch {Lb}"]
        self.slow_blocks.append("\n".join(blk))

    def poll(self, vaddr, vtmp, between=None):
        A = self.A
        L = A.label("L_poll")
        Ld = A.label("L_polld")
        A.vmem(f"buffer_load_dword {v(vtmp)}, {v(vaddr)}, {s(SRD_WS,4)}, 0 offen sc1", "poll")
        if between:
            between()
        A.wait_vm("poll")
        A(f"v_cmp_ne_u32 vcc, {s(S_TAG)}, {v(vtmp)}")
        A(f"s_mov_b32 {s(S_CNT)}, 0x8000")
        A("s_nop 3")
        A("s_cmp_eq_u64 vcc, 0")
        A(f"s_cbranch_scc0 {L}")
        A(f"{Ld}:")
        blk = f"""{L}:
buffer_load_dword {v(vtmp)}, {v(vaddr)}, {s(SRD_WS,4)}, 0 offen sc1
s_sub_u32 {s(S_CNT)}, {s(S_CNT)}, 1
s_cmp_eq_u32 {s(S_CNT)}, 0
s_cbranch_scc1 {Ld}
s_waitcnt vmcnt(0)
v_cmp_ne_u32 vcc, {s(S_TAG)}, {v(vtmp)}
s_nop 4
s_cmp_eq_u64 vcc, 0
s_cbranch_scc0 {L}
s_branch {Ld}"""
        self.slow_blocks.append(blk)

    def barrier(self):
        self.A("s_barrier")

    def gelu_a(self, src, n, t0):
        ops = []
        for p in range(n):
            ops.append(f"v_pk_mul_f32 {v(t0+2*p,2)}, {v(src+2*p,2)}, {v(src+2*p,2)}")
        for p in range(n):
            ops.append(f"v_pk_fma_f32 {v(t0+2*p,2)}, {v(t0+2*p,2)}, {s(S_K2,2)}, {v(V_K1,2)} op_sel_hi:[1,1,0]")
        for p in range(n):
            ops.append(f"v_pk_mul_f32 {v(t0+2*p,2)}, {v(t0+2*p,2)}, {v(src+2*p,2)}")
        return ops

    def gelu_b(self, src, n, dst, t0, packed):
        ops = []
        for e in range(2 * n):
            ops.append(f"v_exp_f32 {v(t0+e)}, {v(t0+e)}")
        if packed:
            for p in range(n):
                ops.append(f"v_pk_add_f32 {v(t0+2*p,2)}, {v(t0+2*p,2)}, 1.0 op_sel_hi:[1,0]")
        else:
            for e in range(2 * n):
                ops.append(f"v_add_f32 {v(t0+e)}, 1.0, {v(t0+e)}")
        for e in range(2 * n):
            ops.append(f"v_rcp_f32 {v(t0+e)}, {v(t0+e)}")
        if packed:
            for p in range(n):
                ops.append(f"v_pk_mul_f32 {v(t0+2*p,2)}, {v(t0+2*p,2)}, {v(src+2*p,2)}")
        else:
            for e in range(2 * n):
                ops.append(f"v_mul_f32 {v(t0+e)}, {v(t0+e)}, {v(src+e)}")
        for p in range(n):
            ops.append(f"v_cvt_pk_bf16_f32 {v(dst+p)}, {v(t0+2*p)}, {v(t0+2*p+1)}")
        return ops

    def round_bf16(self, reg, tmp):
        A = self.A
        A(f"v_cvt_pk_bf16_f32 {v(tmp)}, {v(reg)}, {v(reg)}")
        A(f"v_lshlrev_b32 {v(reg)}, 16, {v(tmp)}")

    def ln_scalars(self, vsum, vsq, vr, vq, t, mpair=False):
        A = self.A
        A(f"v_mul_f32 {v(vsum)}, 0x3b000000, {v(vsum)}")
        A(f"v_mul_f32 {v(vsq)}, 0x3b000000, {v(vsq)}")
        A(f"v_fma_f32 {v(vsq)}, -{v(vsum)}, {v(vsum)}, {v(vsq)}")
        A(f"v_max_f32 {v(vsq)}, 0, {v(vsq)}")
        if mpair:
            A(f"v_sub_f32 {v(vsum)}, 0, {v(vsum)}")
            A(f"v_cvt_pk_bf16_f32 {v(vq)}, {v(vsum)}, {v(vsum)}")
        else:
            self.round_bf16(vsum, t)
        self.round_bf16(vsq, t)
        A(f"v_add_f32 {v(vsq)}, 0x3727c5ac, {v(vsq)}")
        self.round_bf16(vsq, t)
        A(f"v_sqrt_f32 {v(vsq)}, {v(vsq)}")
        A("s_nop 0")
        self.round_bf16(vsq, t)
        A(f"v_rcp_f32 {v(vr)}, {v(vsq)}")
        if not mpair:
            A("s_nop 0")
            A(f"v_mul_f32_e64 {v(vq)}, -{v(vsum)}, {v(vr)}")

    def lane_sum(self, regs, tmps, x32=True, x16=False):
        A = self.A
        for op, on in (("v_permlane32_swap_b32", x32), ("v_permlane16_swap_b32", x16)):
            if not on:
                continue
            for r, t in zip(regs, tmps):
                A(f"v_mov_b32 {v(t)}, {v(r)}")
            A("s_nop 1")
            for r, t in zip(regs, tmps):
                A(f"{op} {v(r)}, {v(t)}")
            A("s_nop 1")
            for r, t in zip(regs, tmps):
                A(f"v_add_f32 {v(r)}, {v(r)}, {v(t)}")

    def touch(self, vaddr, srd):
        self.A.vmem(f"buffer_load_dword {v(JUNK)}, {v(vaddr)}, {s(srd,4)}, 0 offen", "touch")

    def touch_w(self, srd, n):
        A = self.A
        A(f"s_mul_i32 {s(S_T0)}, {s(S_GW)}, {n*128}")
        A(f"v_lshl_add_u32 {v(TG)}, {v(V_L)}, 7, {s(S_T0)}")
        A(f"v_cmp_gt_u32 vcc, {n}, {v(V_L)}")
        A(f"v_mov_b32 {v(TH)}, {OOB:#x}")
        A("s_nop 0")
        A(f"v_cndmask_b32 {v(TG)}, {v(TH)}, {v(TG)}, vcc")
        self.touch(TG, srd)

    def build(self):
        A = self.A
        o = self.o
        T = V_T
        A("s_cmp_ge_u32 s2, 256")
        A("s_cbranch_scc1 L_end")
        A(f"s_load_dwordx16 {s(S_KA,16)}, s[0:1], 0")
        if self.profile:
            A("s_memtime s[98:99]")
        self.stamp("start")
        A(f"v_lshrrev_b32 {v(T)}, 6, v0")
        A(f"v_and_b32 {v(V_L)}, 63, v0")
        A(f"s_lshr_b32 {s(S_J)}, s2, 3")
        A(f"v_readfirstlane_b32 {s(S_W)}, {v(T)}")
        A(f"s_and_b32 {s(S_M)}, {s(S_J)}, 7")
        A(f"s_and_b32 {s(S_T0)}, s2, 7")
        A(f"s_lshl_b32 {s(S_B)}, {s(S_T0)}, 2")
        A(f"s_lshr_b32 {s(S_T1)}, {s(S_J)}, 3")
        A(f"s_add_u32 {s(S_B)}, {s(S_B)}, {s(S_T1)}")
        A(f"v_lshrrev_b32 {v(V_Q)}, 4, {v(V_L)}")
        A(f"v_and_b32 {v(V_I)}, 15, {v(V_L)}")
        A(f"v_lshlrev_b32 {v(V_L16)}, 4, {v(V_L)}")
        A(f"v_lshrrev_b32 {v(T)}, 3, {v(V_L)}")
        A(f"v_lshlrev_b32 {v(T)}, 10, {v(T)}")
        A(f"v_and_b32 {v(T+1)}, 7, {v(V_L)}")
        A(f"s_and_b32 {s(S_T0)}, {s(S_W)}, 1")
        A(f"s_lshl_b32 {s(S_T0)}, {s(S_T0)}, 2")
        A(f"v_xor_b32 {v(T+2)}, {v(T+1)}, {v(V_Q)}")
        A(f"v_xor_b32 {v(T+2)}, {s(S_T0)}, {v(T+2)}")
        A(f"v_lshl_add_u32 {v(T+2)}, {v(T+2)}, 4, {v(T)}")
        A(f"s_lshl_b32 {s(S_T0)}, {s(S_B)}, 15")
        A(f"s_lshl_b32 {s(S_T1)}, {s(S_W)}, 13")
        A(f"s_add_u32 {s(S_T0)}, {s(S_T0)}, {s(S_T1)}")
        A(f"v_add_u32 {v(V_XD)}, {s(S_T0)}, {v(T+2)}")
        A(f"v_and_b32 {v(T+2)}, 1, {v(V_Q)}")
        A(f"v_lshlrev_b32 {v(T+2)}, 1, {v(T+2)}")
        A(f"v_xor_b32 {v(T+2)}, {v(T+1)}, {v(T+2)}")
        A(f"v_lshl_add_u32 {v(T+2)}, {v(T+2)}, 4, {v(T)}")
        A(f"s_lshl_b32 {s(S_T0)}, {s(S_M)}, 7")
        A(f"s_lshl_b32 {s(S_T1)}, {s(S_W)}, 15")
        A(f"s_add_u32 {s(S_T1)}, {s(S_T1)}, {s(S_T0)}")
        A(f"v_add_u32 {v(V_W1D)}, {s(S_T1)}, {v(T+2)}")
        A(f"v_xor_b32 {v(V_W1D+1)}, 64, {v(V_W1D)}")
        A(f"s_lshl_b32 {s(S_GW)}, s2, 2")
        A(f"s_add_u32 {s(S_GW)}, {s(S_GW)}, {s(S_W)}")
        for srd, size in ((SRD_X, 1 << 20), (SRD_W1, 1 << 19), (SRD_W2, 1 << 19), (SRD_W3, 512 * 3584),
                          (SRD_W4, 1792 * 1024), (SRD_O, 1 << 20), (SRD_WS, WS_SIZE)):
            A(f"s_mov_b32 {s(srd+2)}, {size}")
            A(f"s_mov_b32 {s(srd+3)}, 0x20000")
        A(f"s_lshr_b32 {s(S_PG)}, {s(S_B)}, 1")
        A(f"s_and_b32 {s(S_U)}, {s(S_J)}, 15")
        A(f"s_and_b32 {s(S_B0)}, {s(S_B)}, 0xfe")
        if o["codepf"]:
            A(f"s_getpc_b64 {s(S_PC,2)}")
            A("L_pc0:")
            A(f"s_lshl_b32 {s(S_T3)}, {s(S_J)}, 2")
            A(f"s_add_u32 {s(S_T3)}, {s(S_T3)}, {s(S_W)}")
            A(f"s_lshl_b32 {s(S_T3)}, {s(S_T3)}, 8")
            A(f"v_lshl_add_u32 {v(TE)}, {v(V_L)}, 7, {s(S_T3)}")
            A(f"s_mov_b32 {s(S_T4)}, L_code_end-L_pc0")
            A(f"v_cmp_gt_u32 vcc, 2, {v(V_L)}")
            A(f"v_cmp_gt_u32 {s(S_T0-1 if False else 60,2)}, {s(S_T4)}, {v(TE)}") if False else None
        A("s_waitcnt lgkmcnt(0)")
        order = (SRD_X, SRD_W1, SRD_W2, SRD_W3, SRD_W4, SRD_O, None, SRD_WS)
        for i in (0, 1, 7, 2, 3, 4, 5):
            srd = order[i]
            A(f"s_mov_b32 {s(srd)}, {s(S_KA+2*i)}")
            A(f"s_mov_b32 {s(srd+1)}, {s(S_KA+2*i+1)}")
        A(f"s_lshl_b32 {s(S_L8)}, {s(S_W)}, 13")
        A(f"s_lshl_b32 {s(S_L16)}, {s(S_W)}, 14")
        A(f"s_lshl_b32 {s(S_L4)}, {s(S_W)}, 12")
        A(f"s_lshr_b32 {s(S_A)}, {s(S_J)}, 3")
        for k in (1, 2, 3):
            A(f"s_mov_b32 {s(S_C+k-1)}, {7168*k}")
        if o["codepf"]:
            A(f"v_cmp_gt_u32 {s(S_EX,2)}, {s(S_T4)}, {v(TE)}")
            A("s_nop 1")
            A(f"s_and_b64 vcc, vcc, {s(S_EX,2)}")
            A(f"s_and_saveexec_b64 {s(S_EX,2)}, vcc")
            A("s_cbranch_execz L_nopf")
            A(f"global_load_dword {v(JUNK)}, {v(TE)}, {s(S_PC,2)}")
            A("L_nopf:")
            A(f"s_mov_b64 exec, {s(S_EX,2)}")
        A(f"s_lshl_b32 {s(S_T0)}, {s(S_PG)}, 7")
        A(f"s_add_u32 {s(S_T0)}, {s(S_T0)}, {EPO}")
        A(f"v_mov_b32 {v(V_TAG)}, {s(S_T0)}")
        A.vmem(f"buffer_load_dword {v(V_TAG)}, {v(V_TAG)}, {s(SRD_WS,4)}, 0 offen sc1", "epoch")
        if o["t_w"]:
            A(f"v_cmp_gt_u32 vcc, 14, {v(V_L)}")
            A(f"s_mul_i32 {s(S_T0)}, {s(S_GW)}, {14*128}")
            A(f"v_lshl_add_u32 {v(TG)}, {v(V_L)}, 7, {s(S_T0)}")
            A(f"v_mov_b32 {v(TH)}, {OOB:#x}")
            A(f"v_cndmask_b32 {v(TG)}, {v(TH)}, {v(TG)}, vcc")
            A(f"v_cmp_gt_u32 vcc, 4, {v(V_L)}")
            A(f"s_lshl_b32 {s(S_T0)}, {s(S_GW)}, 9")
            A(f"v_lshl_add_u32 {v(TF)}, {v(V_L)}, 7, {s(S_T0)}")
            A(f"v_cndmask_b32 {v(TF)}, {v(TH)}, {v(TF)}, vcc")
            self.touch(TF, SRD_W2)
            self.touch(TG, SRD_W3)
            self.touch(TG, SRD_W4)
        for i in range(8):
            A(f"s_add_u32 m0, {s(S_L8)}, {R0 + 896*i}")
            if i == 0:
                A("s_nop 0")
            off = f" offset:{128*i}" if i else ""
            if i:
                A("s_nop 0")
            A.vmem(f"buffer_load_dwordx4 {v(V_XD)}, {s(SRD_X,4)}, 0 offen{off} lds", "x")
        if o["rot"]:
            A(f"s_lshl_b32 {s(S_T0)}, {s(S_A)}, 17")
            A(f"v_xor_b32 {v(V_W1D)}, {s(S_T0)}, {v(V_W1D)}")
            A(f"v_xor_b32 {v(V_W1D+1)}, {s(S_T0)}, {v(V_W1D+1)}")
        for p in range(4):
            A(f"s_add_u32 m0, {s(S_L4)}, {R1 + p*16384}")
            if p:
                A(f"v_xor_b32 {v(V_W1D)}, {(p ^ (p-1))*131072}, {v(V_W1D)}")
                A(f"v_xor_b32 {v(V_W1D+1)}, {(p ^ (p-1))*131072}, {v(V_W1D+1)}")
            else:
                A("s_nop 0")
            for k in range(4):
                so = "0" if k == 0 else s(S_C + k - 1)
                off = f" offset:{1024*k}" if k else ""
                A.vmem(f"buffer_load_dwordx4 {v(V_W1D + (k & 1))}, {s(SRD_W1,4)}, {so} offen{off} lds", f"w1_{p}")
        self.stamp("issued")
        A(f"v_lshrrev_b32 {v(V_H)}, 5, {v(V_L)}")
        A(f"v_and_b32 {v(V_J)}, 31, {v(V_L)}")
        A(f"s_mov_b32 {s(S_4096)}, 4096")
        for k in (1, 2, 3):
            A(f"s_mov_b32 {s(S_D+k-1)}, {13312*k}")
        A(f"s_lshl_b32 {s(S_T0)}, {s(S_B)}, 15")
        A(f"s_lshl_b32 {s(S_T1)}, {s(S_M)}, 12")
        A(f"s_add_u32 {s(S_T0)}, {s(S_T0)}, {s(S_T1)}")
        A(f"s_lshl_b32 {s(S_T1)}, {s(S_W)}, 10")
        A(f"s_add_u32 {s(S_T2)}, {s(S_T0)}, {s(S_T1)}")
        A(f"v_and_b32 {v(T)}, 1, {v(V_Q)}")
        A(f"v_lshlrev_b32 {v(T)}, 9, {v(T)}")
        A(f"v_lshl_add_u32 {v(T)}, {v(V_I)}, 4, {v(T)}")
        A(f"v_lshrrev_b32 {v(T+1)}, 1, {v(V_Q)}")
        A(f"v_lshl_add_u32 {v(T)}, {v(T+1)}, 3, {v(T)}")
        A(f"v_add_u32 {v(V_FO)}, {s(S_T2)}, {v(T)}")
        A(f"s_lshl_b32 {s(S_T0)}, {s(S_B)}, 7")
        A(f"s_lshl_b32 {s(S_T1)}, {s(S_M)}, 4")
        A(f"s_add_u32 {s(S_T0)}, {s(S_T0)}, {s(S_T1)}")
        A(f"s_lshl_b32 {s(S_T1)}, {s(S_W)}, 2")
        A(f"s_add_u32 {s(S_FLO)}, {s(S_T0)}, {s(S_T1)}")
        if o["t_ex"]:
            A(f"v_and_b32 {v(TE)}, 7, {v(V_L)}")
            A(f"v_lshl_add_u32 {v(TE)}, {v(TE)}, 7, {s(S_T2)}")
            A(f"v_lshrrev_b32 {v(TF)}, 3, {v(V_L)}")
            A(f"v_lshl_add_u32 {v(TE)}, {v(TF)}, 20, {v(TE)}")
            A(f"s_lshl_b32 {s(S_T0)}, {s(S_B)}, 13")
            A(f"s_lshl_b32 {s(S_T1)}, {s(S_M)}, 10")
            A(f"s_add_u32 {s(S_T0)}, {s(S_T0)}, {s(S_T1)}")
            A(f"s_lshl_b32 {s(S_T1)}, {s(S_W)}, 8")
            A(f"s_add_u32 {s(S_T0)}, {s(S_T0)}, {s(S_T1)}")
            A(f"s_add_u32 {s(S_T0)}, {s(S_T0)}, {STB - 16*128}")
            A(f"v_lshl_add_u32 {v(TF)}, {v(V_L)}, 7, {s(S_T0)}")
            A(f"v_cmp_gt_u32 vcc, 16, {v(V_L)}")
            A(f"s_lshl_b32 {s(S_T0)}, {s(S_B)}, 7")
            A(f"s_add_u32 {s(S_T0)}, {s(S_T0)}, {FL1}")
            A(f"v_cndmask_b32 {v(TE)}, {v(TF)}, {v(TE)}, vcc")
            A(f"v_lshlrev_b32 {v(TF)}, 13, {v(V_L)}")
            A(f"v_add_u32 {v(TF)}, {s(S_T0)}, {v(TF)}")
            A(f"v_subrev_u32 {v(TF)}, {18*0x2000}, {v(TF)}")
            A(f"v_cmp_gt_u32 vcc, 18, {v(V_L)}")
            A(f"s_lshl_b32 {s(S_T0)}, {s(S_PG)}, 8")
            A(f"s_add_u32 {s(S_T0)}, {s(S_T0)}, {FL3 - 20*128}")
            A(f"v_cndmask_b32 {v(TE)}, {v(TF)}, {v(TE)}, vcc")
            A(f"v_lshl_add_u32 {v(TF)}, {v(V_L)}, 7, {s(S_T0)}")
            A(f"v_cmp_gt_u32 vcc, 20, {v(V_L)}")
            A(f"v_mov_b32 {v(TG)}, {OOB:#x}")
            A("s_nop 0")
            A(f"v_cndmask_b32 {v(TE)}, {v(TF)}, {v(TE)}, vcc")
            A(f"v_cmp_gt_u32 vcc, 22, {v(V_L)}")
            A("s_nop 1")
            A(f"v_cndmask_b32 {v(TE)}, {v(TG)}, {v(TE)}, vcc")
            self.touch(TE, SRD_WS)
        A(f"s_lshl_b32 {s(S_T0)}, {s(S_B)}, 15")
        A(f"s_lshl_b32 {s(S_T1)}, {s(S_M)}, 7")
        A(f"s_add_u32 {s(S_T0)}, {s(S_T0)}, {s(S_T1)}")
        A(f"s_lshl_b32 {s(S_T1)}, {s(S_W)}, 5")
        A(f"s_add_u32 {s(S_T3)}, {s(S_T0)}, {s(S_T1)}")
        A(f"v_lshlrev_b32 {v(T)}, 10, {v(V_I)}")
        A(f"v_lshl_add_u32 {v(T)}, {v(V_Q)}, 3, {v(T)}")
        A(f"v_add_u32 {v(T)}, {s(S_T3)}, {v(T)}")
        A(f"s_mov_b32 {s(S_T0)}, 16384")
        A.vmem(f"buffer_load_dwordx2 {v(XRES,2)}, {v(T)}, {s(SRD_X,4)}, 0 offen", "xres")
        A.vmem(f"buffer_load_dwordx2 {v(XRES+2,2)}, {v(T)}, {s(SRD_X,4)}, {s(S_T0)} offen", "xres")
        A(f"v_lshlrev_b32 {v(T)}, 10, {v(V_J)}")
        A(f"v_lshl_add_u32 {v(T)}, {v(V_H)}, 3, {v(T)}")
        A(f"v_add_u32 {v(V_RO)}, {s(S_T3)}, {v(T)}")
        A(f"v_lshrrev_b32 {v(T)}, 3, {v(V_L)}")
        A(f"v_lshlrev_b32 {v(T)}, 10, {v(T)}")
        A(f"v_and_b32 {v(T+1)}, 7, {v(V_L)}")
        A(f"v_lshlrev_b32 {v(T+2)}, 1, {v(V_Q)}")
        A(f"v_xor_b32 {v(T+2)}, {v(T+1)}, {v(T+2)}")
        A(f"v_lshl_add_u32 {v(T+2)}, {v(T+2)}, 4, {v(T)}")
        A(f"s_lshl_b32 {s(S_T0)}, {s(S_M)}, 7")
        A(f"s_lshl_b32 {s(S_T1)}, {s(S_W)}, 17")
        A(f"s_add_u32 {s(S_T1)}, {s(S_T1)}, {s(S_T0)}")
        A(f"v_add_u32 {v(V_W2D)}, {s(S_T1)}, {v(T+2)}")
        A(f"v_and_b32 {v(T+2)}, 1, {v(V_Q)}")
        A(f"v_lshlrev_b32 {v(T+2)}, 2, {v(T+2)}")
        A(f"v_xor_b32 {v(T+2)}, {v(T+1)}, {v(T+2)}")
        A(f"v_lshl_add_u32 {v(T+2)}, {v(T+2)}, 4, {v(T)}")
        A(f"s_mul_i32 {s(S_T1)}, {s(S_W)}, {448*1024}")
        A(f"s_add_u32 {s(S_T1)}, {s(S_T1)}, {s(S_T0)}")
        A(f"v_add_u32 {v(V_WD)}, {s(S_T1)}, {v(T+2)}")
        A(f"v_lshlrev_b32 {v(T+1)}, 2, {v(V_Q)}")
        A(f"v_xor_b32 {v(T+1)}, {v(T+1)}, {v(V_I)}")
        A(f"v_lshlrev_b32 {v(T+1)}, 4, {v(T+1)}")
        A(f"v_mul_u32_u24 {v(T)}, 3584, {v(V_Q)}")
        A(f"v_add_u32 {v(T)}, {v(T)}, {v(T+1)}")
        A(f"s_lshl_b32 {s(S_T0)}, {s(S_U)}, 8")
        A(f"s_mul_i32 {s(S_T1)}, {s(S_W)}, {32*3584}")
        A(f"s_add_u32 {s(S_T0)}, {s(S_T0)}, {s(S_T1)}")
        A(f"s_cmp_ge_u32 {s(S_U)}, 14")
        A(f"s_cselect_b32 {s(S_T0)}, {OOB}, {s(S_T0)}")
        A(f"v_add_u32 {v(V_W3D)}, {s(S_T0)}, {v(T)}")
        RHO, PR, LO = T, T + 1, T + 2
        A(f"v_lshrrev_b32 {v(RHO)}, 2, {v(V_I)}")
        A(f"v_bfe_u32 {v(PR)}, {v(V_L)}, 1, 1")
        A(f"v_and_b32 {v(LO)}, 1, {v(V_L)}")
        A(f"v_and_b32 {v(T+3)}, 1, {v(V_Q)}")
        A(f"v_lshl_add_u32 {v(T+3)}, {v(T+3)}, 1, {v(PR)}")
        A(f"s_lshl_b32 {s(S_T0)}, {s(S_W)}, 2")
        A(f"v_add_u32 {v(TE)}, {s(S_T0)}, {v(T+3)}")
        A(f"v_lshlrev_b32 {v(TF)}, 2, {v(RHO)}")
        A(f"v_xor_b32 {v(TE)}, {v(TE)}, {v(TF)}")
        A(f"v_lshlrev_b32 {v(TE)}, 4, {v(TE)}")
        A(f"v_lshl_add_u32 {v(TE)}, {v(LO)}, 3, {v(TE)}")
        A(f"v_lshl_add_u32 {v(TF)}, {v(V_H)}, 2, {v(RHO)}")
        A(f"v_lshl_add_u32 {v(V_TR3)}, {v(TF)}, 8, {v(TE)}")
        A(f"v_lshrrev_b32 {v(TE)}, 1, {v(RHO)}")
        A(f"v_lshl_add_u32 {v(TE)}, {v(TE)}, 2, {v(T+3)}")
        A(f"v_lshlrev_b32 {v(TE)}, 4, {v(TE)}")
        A(f"v_lshl_add_u32 {v(TE)}, {v(LO)}, 3, {v(TE)}")
        A(f"s_lshl_b32 {s(S_T0)}, {s(S_W)}, 5")
        A(f"v_xor_b32 {v(TE)}, {s(S_T0)}, {v(TE)}")
        A(f"v_lshl_add_u32 {v(TE)}, {v(TF)}, 7, {v(TE)}")
        A(f"s_add_u32 {s(S_T0)}, {s(S_L16)}, {R3}")
        A(f"v_add_u32 {v(V_A0)}, {s(S_T0)}, {v(TE)}")
        A(f"v_xor_b32 {v(V_A1)}, 64, {v(V_A0)}")
        S1A, S2A = SCOL, SCOL + 1
        A(f"v_and_b32 {v(TE)}, 1, {v(V_Q)}")
        A(f"v_lshlrev_b32 {v(TE)}, 1, {v(TE)}")
        A(f"v_lshrrev_b32 {v(TF)}, 1, {v(RHO)}")
        A(f"v_add_u32 {v(TE)}, {v(TE)}, {v(TF)}")
        A(f"v_lshlrev_b32 {v(TE)}, 1, {v(TE)}")
        A(f"s_lshl_b32 {s(S_T0)}, {s(S_W)}, 1")
        A(f"v_add_u32 {v(TG)}, {s(S_T0)}, {v(PR)}")
        A(f"v_xor_b32 {v(TE)}, {v(TE)}, {v(TG)}")
        A(f"v_lshlrev_b32 {v(TE)}, 4, {v(TE)}")
        A(f"v_lshl_add_u32 {v(TE)}, {v(LO)}, 3, {v(TE)}")
        A(f"v_lshl_add_u32 {v(TH)}, {v(V_Q)}, 3, {v(RHO)}")
        A(f"v_lshl_add_u32 {v(TE)}, {v(TH)}, 7, {v(TE)}")
        A(f"v_add_u32 {v(S1A)}, {R1}, {v(TE)}")
        A(f"v_and_b32 {v(TE)}, 1, {v(V_Q)}")
        A(f"v_lshlrev_b32 {v(TE)}, 1, {v(TE)}")
        A(f"v_add_u32 {v(TE)}, {v(TE)}, {v(TF)}")
        A(f"v_lshlrev_b32 {v(TE)}, 1, {v(TE)}")
        A(f"v_xor_b32 {v(TE)}, {v(TE)}, {v(TG)}")
        A(f"v_lshlrev_b32 {v(TE)}, 4, {v(TE)}")
        A(f"v_lshl_add_u32 {v(TE)}, {v(LO)}, 3, {v(TE)}")
        A(f"v_lshrrev_b32 {v(TH)}, 1, {v(V_Q)}")
        A(f"v_lshlrev_b32 {v(TH)}, 4, {v(TH)}")
        A(f"v_and_b32 {v(TF)}, 1, {v(V_Q)}")
        A(f"v_lshl_add_u32 {v(TH)}, {v(TF)}, 2, {v(TH)}")
        A(f"v_add_u32 {v(TH)}, {v(TH)}, {v(RHO)}")
        A(f"v_lshl_add_u32 {v(TE)}, {v(TH)}, 7, {v(TE)}")
        A(f"v_add_u32 {v(S2A)}, {R3}, {v(TE)}")
        XB0, XB1, XS0, XS1 = SCOL + 2, SCOL + 3, SCOL + 4, SCOL + 5
        A(f"v_bfe_u32 {v(TE)}, {v(V_L)}, 1, 3")
        A(f"v_xor_b32 {v(TE)}, {v(TE)}, {v(V_Q)}")
        A(f"v_lshlrev_b32 {v(TE)}, 4, {v(TE)}")
        A(f"v_and_b32 {v(TF)}, 7, {v(V_L)}")
        A(f"v_lshl_add_u32 {v(TE)}, {v(TF)}, 7, {v(TE)}")
        A(f"v_bfe_u32 {v(TF)}, {v(V_L)}, 3, 1")
        A(f"v_lshl_add_u32 {v(XB0)}, {v(TF)}, 13, {v(TE)}")
        A(f"v_xor_b32 {v(XB1)}, 64, {v(XB0)}")
        A(f"s_lshl_b32 {s(S_T0)}, {s(S_W)}, 11")
        A(f"v_add_u32 {v(XS0)}, {s(S_T0)}, {v(XB0)}")
        A(f"v_add_u32 {v(XS1)}, {s(S_T0)}, {v(XB1)}")
        if o["rot"]:
            A(f"s_lshl_b32 {s(S_T0)}, {s(S_A)}, 11")
            A(f"v_xor_b32 {v(XB0)}, {s(S_T0)}, {v(XB0)}")
            A(f"v_xor_b32 {v(XB1)}, {s(S_T0)}, {v(XB1)}")
        HBASE = SCOL + 6
        A(f"v_lshrrev_b32 {v(TE)}, 1, {v(V_Q)}")
        A(f"v_lshlrev_b32 {v(TE)}, 10, {v(TE)}")
        A(f"v_and_b32 {v(TF)}, 1, {v(V_Q)}")
        A(f"v_lshl_add_u32 {v(TE)}, {v(TF)}, 9, {v(TE)}")
        A(f"v_lshl_add_u32 {v(HBASE)}, {v(V_I)}, 4, {v(TE)}")
        c = (2.0 / 3.141592653589793) ** 0.5
        k1 = -2.0 * c * 1.4426950408889634
        k2 = k1 * 0.044715
        A(f"s_mov_b32 {s(S_K2)}, {f2u(k2):#x}")
        A(f"s_mov_b32 {s(S_K2+1)}, {f2u(k2):#x}")
        A(f"v_mov_b32 {v(V_K1)}, {f2u(k1):#x}")
        A(f"v_mov_b32 {v(V_ONES)}, 0x3f803f80")
        A(f"v_add_u32 {v(V_RED)}, {s(S_L8)}, {v(V_L16)}")
        ONES4 = SCOL + 8
        for r in range(4):
            A(f"v_mov_b32 {v(ONES4+r)}, 0x3f803f80")
        A(f"s_getreg_b32 {s(S_XCC)}, hwreg(HW_REG_XCC_ID)")
        A(f"s_and_b32 {s(S_XCC)}, {s(S_XCC)}, 15")
        self.stamp("proend")
        A.wait_vm("epoch")
        A(f"v_readfirstlane_b32 {s(S_TAG)}, {v(V_TAG)}")
        A("s_nop 3")
        A(f"s_add_u32 {s(S_TAG)}, {s(S_TAG)}, 1")
        A(f"v_mov_b32 {v(V_TAG)}, {s(S_TAG)}")

        A.c("S1: row statistics")
        A.wait_vm("x")
        self.barrier()
        self.stamp("xland")
        fr = []
        for Tt in range(2):
            for ln in range(2):
                for e in range(2):
                    r = BF + 4 * len(fr)
                    A.lds(f"ds_read_b128 {v(r,4)}, {v(XS0+e)} offset:{Tt*16384+ln*1024}", f"xs{len(fr)}")
                    fr.append((Tt, r))
        for r in (SUM, SQ, P0, P1):
            A(f"v_mov_b32 {v(r)}, 0")
        if self.force is None:
            A(f"s_lshl_b32 {s(S_T0)}, {s(S_PG)}, 7")
            A(f"s_lshl_b32 {s(S_T1)}, {s(S_U)}, 3")
            A(f"s_add_u32 {s(S_T0)}, {s(S_T0)}, {s(S_T1)}")
            A(f"s_add_u32 {s(S_T0)}, {s(S_T0)}, {HS}")
            A(f"s_cmp_eq_u32 {s(S_W)}, 0")
            A(f"s_cselect_b32 {s(S_T0)}, {s(S_T0)}, {OOB}")
            A(f"v_mov_b32 {v(TE)}, {s(S_T0)}")
            A(f"v_mov_b32 {v(TG)}, {s(S_TAG)}")
            A(f"v_mov_b32 {v(TH)}, {s(S_XCC)}")
            A.vmem(f"buffer_store_dwordx2 {v(TG,2)}, {v(TE)}, {s(SRD_WS,4)}, 0 offen sc1", "hs")
        for i, (Tt, r) in enumerate(fr):
            A.wait_lg(f"xs{i}")
            sm, sq = (SUM, SQ) if Tt == 0 else (P0, P1)
            for d in range(4):
                A(f"v_dot2_f32_bf16 {v(sm)}, {v(r+d)}, {v(V_ONES)}, {v(sm)}")
                A(f"v_dot2_f32_bf16 {v(sq)}, {v(r+d)}, {v(r+d)}, {v(sq)}")
        A.nop(3)
        self.lane_sum([SUM, SQ, P0, P1], [TE, TF, TG, TH], True, True)
        A(f"s_lshl_b32 {s(S_T0)}, {s(S_W)}, 8")
        A(f"s_add_u32 {s(S_T0)}, {s(S_T0)}, {PART}")
        A(f"v_lshl_add_u32 {v(TE)}, {v(V_I)}, 3, {s(S_T0)}")
        A.lds(f"ds_write_b64 {v(TE)}, {v(SUM,2)}")
        A.lds(f"ds_write_b64 {v(TE)}, {v(P0,2)} offset:128")
        A(f"v_lshlrev_b32 {v(TE)}, 3, {v(V_I)}")
        A(f"v_add_u32 {v(TE)}, {PART}, {v(TE)}")
        self.stamp("xstat")

        A.c("S1: GEMM")
        w2items = self.wdma_items(SRD_W2, [V_W2D], 16, S_L16, R3, S_C, 32768, "w2")
        n_in = o["w2_in_s1"]
        self.bgq = w2items[:n_in]
        AR, BR_ = 44, BF
        ACC0, ACC1, ACCS = ACC, ACC + 4, ACC + 8

        def s1_reads(st):
            ar = AR + 4 * (st % 3)
            br = BR_ + 8 * (st % 4)
            A.lds(f"ds_read_b64_tr_b16 {v(ar,2)}, {v(S1A)} offset:{st*4096}", f"k{st}")
            A.lds(f"ds_read_b64_tr_b16 {v(ar+2,2)}, {v(S1A)} offset:{st*4096+512}", f"k{st}")
            xb = XB0 + (st & 1)
            A.lds(f"ds_read_b128 {v(br,4)}, {v(xb)} offset:{((st>>1)&1)*1024}", f"k{st}")
            A.lds(f"ds_read_b128 {v(br+4,4)}, {v(xb)} offset:{((st>>1)&1)*1024+16384}", f"k{st}")

        def s1_mfma(st):
            ar = AR + 4 * (st % 3)
            br = BR_ + 8 * (st % 4)
            c = lambda r: "0" if st == 0 else v(r, 4)
            A(f"v_mfma_f32_16x16x32_bf16 {v(ACC0,4)}, {v(ar,4)}, {v(br,4)}, {c(ACC0)}")
            A(f"v_mfma_f32_16x16x32_bf16 {v(ACC1,4)}, {v(ar,4)}, {v(br+4,4)}, {c(ACC1)}")
            A(f"v_mfma_f32_16x16x32_bf16 {v(ACCS,4)}, {v(ar,4)}, {v(ONES4,4)}, {c(ACCS)}")
        for p in range(4):
            A.wait_vm(f"w1_{p}")
            A.wait_lg()
            self.barrier()
            if p == 0:
                for src in range(4):
                    A.lds(f"ds_read_b64 {v(56+2*src,2)}, {v(TE)} offset:{src*256}", "pt")
                    A.lds(f"ds_read_b64 {v(SCOL+10+0,2) if False else v(96+2*src,2)}, {v(TE)} offset:{src*256+128}", "pt")
                A.wait_lg()
                for src in range(1, 4):
                    A(f"v_pk_add_f32 {v(56,2)}, {v(56,2)}, {v(56+2*src,2)}")
                    A(f"v_pk_add_f32 {v(96,2)}, {v(96,2)}, {v(96+2*src,2)}")
                self.ln_scalars(56, 57, V_R0, V_Q0, TF)
                self.ln_scalars(96, 97, V_R1, V_Q1, TF)
            if p:
                A(f"v_xor_b32 {v(XB0)}, {(p ^ (p-1))*2048}, {v(XB0)}")
                A(f"v_xor_b32 {v(XB1)}, {(p ^ (p-1))*2048}, {v(XB1)}")
            s1_reads(4 * p)
            s1_reads(4 * p + 1)
            for st in range(4 * p, 4 * p + 4):
                A.wait_lg(f"k{st}")
                s1_mfma(st)
                if st + 2 < 4 * p + 4:
                    s1_reads(st + 2)
                if p >= 1:
                    self.bg(1)
            if p >= 1:
                self.bg(-(-n_in // 3) - 4 if n_in > 12 else 0)
        self.bg_flush()
        self.stamp("s1loop")
        A.nop(8)
        for Tt, (ac, vr) in enumerate(((ACC0, V_R0), (ACC1, V_R1))):
            for p in range(2):
                A(f"v_pk_mul_f32 {v(ac+2*p,2)}, {v(ac+2*p,2)}, {v(vr,2)} op_sel_hi:[1,0]")
        for Tt, (ac, vr) in enumerate(((ACC0, V_R0), (ACC1, V_R1))):
            for p in range(2):
                A(f"v_pk_fma_f32 {v(ac+2*p,2)}, {v(ACCS+2*p,2)}, {v(vr,2)}, {v(ac+2*p,2)} op_sel:[0,1,0] op_sel_hi:[1,1,1]")
        HP = 60
        for t in self.gelu_a(ACC, 4, BF) + self.gelu_b(ACC, 4, HP, BF, True):
            A(t)
        g1 = " sc1" if self.force is False else ""
        A.vmem(f"buffer_store_dwordx2 {v(HP,2)}, {v(V_FO)}, {s(SRD_WS,4)}, 0 offen{g1}")
        A.vmem(f"buffer_store_dwordx2 {v(HP+2,2)}, {v(V_FO)}, {s(SRD_WS,4)}, 0 offen offset:256{g1}")
        A(f"s_add_u32 {s(S_T0)}, {s(S_FLO)}, {FL1G if self.force is False else FL1}")
        A(f"v_mov_b32 {v(TE)}, {s(S_T0)}")
        self.stamp("s1epi")
        A.wait_vm()
        A.vmem(f"buffer_store_dword {v(V_TAG)}, {v(TE)}, {s(SRD_WS,4)}, 0 offen{g1}")
        self.stamp("flag1")

        A.c("rest of w2")
        for it in w2items[n_in:]:
            it()
        A(f"s_lshl_b32 {s(S_T0)}, {s(S_B)}, 7")
        A(f"s_lshl_b32 {s(S_T2)}, {s(S_W)}, 5")
        A(f"s_add_u32 {s(S_T0)}, {s(S_T0)}, {s(S_T2)}")
        A(f"s_add_u32 {s(S_T0)}, {s(S_T0)}, {FL1G if self.force is False else FL1}")
        A(f"v_and_b32 {v(TE)}, 7, {v(V_L)}")
        A(f"v_lshl_add_u32 {v(TE)}, {v(TE)}, 2, {s(S_T0)}")
        A(f"s_lshr_b32 {s(S_T0)}, {s(S_W)}, 1")
        A(f"s_add_u32 {s(S_T0)}, {s(S_T0)}, 1")
        A(f"s_sub_u32 {s(S_T2)}, 0, {s(S_T0)}")
        A(f"s_bitcmp1_b32 {s(S_W)}, 0")
        A(f"s_cselect_b32 {s(S_T0)}, {s(S_T2)}, {s(S_T0)}")
        A(f"v_subrev_u32 {v(TF)}, {s(S_T0)}, {v(V_J)}")
        A(f"v_cmp_gt_u32 vcc, 32, {v(TF)}")
        A(f"v_lshlrev_b32 {v(TF)}, 4, {v(TF)}")
        A(f"v_lshl_add_u32 {v(TF)}, {v(V_H)}, 9, {v(TF)}")
        A(f"v_mov_b32 {v(TG)}, {OOB:#x}")
        A(f"v_cndmask_b32 {v(TF)}, {v(TG)}, {v(TF)}, vcc")
        w3all = self.w3_items(0)
        for it in w3all[:o["c_pre1"]]:
            it()
        rest0 = w3all[o["c_pre1"]:]
        A.wait_vm("w2")
        self.barrier()
        self.stamp("b2")
        w2f = lambda st, f: (lambda o_, n: v(WF + 64 + 4 * st + o_, n))
        trs = self.tr_items(w2f, [S2A], 16, 4096, 1024, 1, "w2f")

        def park_w2():
            for it in trs:
                it()
            A.wait_lg()
            self.barrier()

        A.c("S2")
        if self.force is None:
            self.poll1(HP, park_w2)
        else:
            self.poll(TE, TG, park_w2)
        self.stamp("poll1")
        A(f"s_lshl_b32 {s(S_T3)}, {s(S_B)}, 15")
        A(f"s_add_u32 {s(S_T3)}, {s(S_T3)}, {s(S_L8)}")
        self.lin_dma(TF, 8, S_L8, R0, S_T3, HB, "h")
        self.bgq = rest0
        self.bg(o["c_s2"])
        for p in range(4):
            A(f"v_lshlrev_b32 {v(56+2*p)}, 16, {v(XRES+p)}")
            A(f"v_and_b32 {v(56+2*p+1)}, 0xffff0000, {v(XRES+p)}")
        A.wait_vm("h")
        self.barrier()
        self.stamp("hland")

        def s2_read(i):
            st, Tt = i >> 1, i & 1
            A.lds(f"ds_read_b128 {v(BF+4*(i%8),4)}, {v(HBASE)} offset:{R0+st*2048+Tt*256}", f"hb{i}")
        for i in range(4):
            s2_read(i)
        for i in range(32):
            st, Tt = i >> 1, i & 1
            if i % 2 == 0:
                A.wait_lg(f"hb{i+1}")
            ac = ACC0 if Tt == 0 else ACC1
            c0 = "0" if st == 0 else v(ac, 4)
            A(f"v_mfma_f32_16x16x32_bf16 {v(ac,4)}, {v(WF+64+4*st,4)}, {v(BF+4*(i%8),4)}, {c0}")
            if i + 4 < 32:
                s2_read(i + 4)
        self.stamp("s2mfma")
        A(f"v_add_u32 {v(TE)}, {X1B}, {v(V_FO)}")
        A(f"s_lshl_b32 {s(S_T0)}, {s(S_B)}, 13")
        A(f"s_lshl_b32 {s(S_T1)}, {s(S_M)}, 10")
        A(f"s_lshl_b32 {s(S_T2)}, {s(S_W)}, 8")
        A(f"s_add_u32 {s(S_T0)}, {s(S_T0)}, {s(S_T1)}")
        A(f"s_add_u32 {s(S_T0)}, {s(S_T0)}, {s(S_T2)}")
        A(f"s_add_u32 {s(S_T0)}, {s(S_T0)}, {STB}")
        A(f"v_lshl_add_u32 {v(TH)}, {v(V_I)}, 3, {s(S_T0)}")
        for r in (SUM, SQ, P0, P1):
            A(f"v_mov_b32 {v(r)}, 0")
        for p in range(4):
            A(f"v_pk_add_f32 {v(ACC+2*p,2)}, {v(ACC+2*p,2)}, {v(56+2*p,2)}")
        for p in range(4):
            A(f"v_cvt_pk_bf16_f32 {v(X1P+p)}, {v(ACC+2*p)}, {v(ACC+2*p+1)}")
        self.publish([f"buffer_store_dwordx2 {v(X1P,2)}, {v(TE)}, {s(SRD_WS,4)}, 0 offen{{F}}",
                      f"buffer_store_dwordx2 {v(X1P+2,2)}, {v(TE)}, {s(SRD_WS,4)}, 0 offen offset:256{{F}}"])
        for d in range(2):
            A(f"v_dot2_f32_bf16 {v(SUM)}, {v(X1P+d)}, {v(V_ONES)}, {v(SUM)}")
            A(f"v_dot2_f32_bf16 {v(SQ)}, {v(X1P+d)}, {v(X1P+d)}, {v(SQ)}")
            A(f"v_dot2_f32_bf16 {v(P0)}, {v(X1P+2+d)}, {v(V_ONES)}, {v(P0)}")
            A(f"v_dot2_f32_bf16 {v(P1)}, {v(X1P+2+d)}, {v(X1P+2+d)}, {v(P1)}")
        A(f"s_add_u32 {s(S_T0)}, {s(S_FLO)}, {FL2}")
        A(f"v_mov_b32 {v(TE)}, {s(S_T0)}")
        A.nop(1)
        self.lane_sum([SUM, SQ, P0, P1], [56, 57, 58, 59], True, True)
        self.publish([f"buffer_store_dwordx2 {v(SUM,2)}, {v(TH)}, {s(SRD_WS,4)}, 0 offen{{F}}",
                      f"buffer_store_dwordx2 {v(P0,2)}, {v(TH)}, {s(SRD_WS,4)}, 0 offen offset:128{{F}}"])
        self.stamp("s2epi")
        A.wait_vm()
        self.publish([f"buffer_store_dword {v(V_TAG)}, {v(TE)}, {s(SRD_WS,4)}, 0 offen{{F}}"])
        self.stamp("flag2")

        A.c("w3 rest, park c0")
        self.barrier()
        self.bg_flush()

        def park_chunk(c):
            A(f"v_add_u32 {v(TF)}, {R1 + c*32768}, {v(V_TR3)}")
            w3f = lambda st, f, c=c: (lambda o_, n: v(WF + 4 * (8 * c + st) + o_, n))
            for it in self.tr_items(w3f, [TF], 8, 4096, 2048, 1, f"w3f{c}"):
                it()

        def colsum(c):
            for st in range(8 * c, 8 * c + 8):
                for d in range(4):
                    r = (SUM, SQ, P0, P1)[d]
                    A(f"v_dot2_f32_bf16 {v(r)}, {v(WF+4*st+d)}, {v(V_ONES)}, {v(r)}")
        A(f"s_lshl_b32 {s(S_T0)}, {s(S_B0)}, 7")
        A(f"s_add_u32 {s(S_T0)}, {s(S_T0)}, {FL2}")
        A(f"v_lshl_add_u32 {v(TE)}, {v(V_L)}, 2, {s(S_T0)}")

        def pre2():
            park_chunk(0)
            for r in (SUM, SQ, P0, P1):
                A(f"v_mov_b32 {v(r)}, 0")
            A.wait_lg()
            colsum(0)
            self.stamp("prepoll2")

        A.c("S3")
        self.poll(TE, TG, pre2)
        A.wait_vm()
        self.barrier()
        self.stamp("poll2")
        A(f"s_lshl_b32 {s(S_T0)}, {s(S_B0)}, 15")
        A(f"s_add_u32 {s(S_T3)}, {s(S_T0)}, {s(S_L8)}")
        self.lin_dma(V_L16, 8, S_L8, R1, S_T3, X1B, "x1t0")
        A(f"s_lshr_b32 {s(S_T2)}, {s(S_W)}, 1")
        A(f"s_add_u32 {s(S_T2)}, {s(S_T2)}, {s(S_B0)}")
        A(f"s_lshl_b32 {s(S_T2)}, {s(S_T2)}, 13")
        A(f"s_add_u32 {s(S_T2)}, {s(S_T2)}, {STB}")
        A(f"s_bitcmp1_b32 {s(S_W)}, 0")
        A(f"s_cselect_b32 {s(S_T2)}, {OOB}, {s(S_T2)}")
        A(f"v_add_u32 {v(TE)}, {s(S_T2)}, {v(V_L16)}")
        for i in range(8):
            so = "0" if i < 4 else s(S_4096)
            off = f" offset:{(i%4)*1024}" if i % 4 else ""
            A.vmem(f"buffer_load_dwordx4 {v(BF+4*i,4)}, {v(TE)}, {s(SRD_WS,4)}, {so} offen{off} sc1", "st")
        park_chunk(1)
        A.wait_lg()
        self.barrier()
        self.stamp("b4b")
        self.lin_dma(V_L16, 8, S_L8, R2, S_T3, X1B + 32768, "x1t1")
        if o["t_g"] and not o["g_sc1"]:
            A(f"s_mul_i32 {s(S_T0)}, {s(S_B0)}, {GBATCH}")
            A(f"s_lshl_b32 {s(S_T1)}, {s(S_U)}, 13")
            A(f"s_add_u32 {s(S_T0)}, {s(S_T0)}, {s(S_T1)}")
            A(f"s_lshl_b32 {s(S_T1)}, {s(S_W)}, 11")
            A(f"s_add_u32 {s(S_T0)}, {s(S_T0)}, {s(S_T1)}")
            A(f"s_add_u32 {s(S_T0)}, {s(S_T0)}, {GB}")
            A(f"s_cmp_ge_u32 {s(S_U)}, 14")
            A(f"s_cselect_b32 {s(S_T0)}, {OOB}, {s(S_T0)}")
            A(f"v_mul_u32_u24 {v(TG)}, {GBATCH}, {v(V_Q)}")
            A(f"v_lshl_add_u32 {v(TG)}, {v(V_I)}, 7, {v(TG)}")
            A(f"v_add_u32 {v(TG)}, {s(S_T0)}, {v(TG)}")
            A(f"v_cmp_gt_u32 vcc, 32, {v(V_L)}")
            A(f"v_mov_b32 {v(TH)}, {OOB:#x}")
            A("s_nop 0")
            A(f"v_cndmask_b32 {v(TG)}, {v(TH)}, {v(TG)}, vcc")
            self.touch(TG, SRD_WS)
        A(f"s_lshl_b32 {s(S_T0)}, {s(S_PG)}, 7")
        A(f"s_add_u32 {s(S_T0)}, {s(S_T0)}, {EPO}")
        A(f"s_or_b32 {s(S_T2)}, {s(S_U)}, {s(S_W)}")
        A(f"s_cmp_eq_u32 {s(S_T2)}, 0")
        A(f"s_cselect_b32 {s(S_T0)}, {s(S_T0)}, {OOB}")
        A(f"v_mov_b32 {v(TG)}, {s(S_T0)}")
        A.vmem(f"buffer_store_dword {v(V_TAG)}, {v(TG)}, {s(SRD_WS,4)}, 0 offen sc1")
        park_chunk(2)
        colsum(1)
        A.wait_lg()
        park_chunk(3)
        colsum(2)
        A.wait_lg()
        colsum(3)
        self.stamp("colsum")
        AX = SCOL
        A.nop(2)
        A(f"v_add_f32 {v(SUM)}, {v(SUM)}, {v(SQ)}")
        A(f"v_add_f32 {v(P0)}, {v(P0)}, {v(P1)}")
        A(f"v_add_f32 {v(SUM)}, {v(SUM)}, {v(P0)}")
        self.lane_sum([SUM], [SQ], True, False)
        self.round_to(SUM, SQ, P0)
        A(f"v_sub_f32 {v(P0)}, {v(SUM)}, {v(P0)}")
        A(f"v_cvt_pk_bf16_f32 {v(AX)}, {v(SUM)}, {v(P0)}")
        A(f"v_cmp_gt_u32 vcc, 32, {v(V_L)}")
        for r in range(1, 4):
            A(f"v_mov_b32 {v(AX+r)}, 0")
        A(f"v_cndmask_b32 {v(AX)}, {v(AX+1)}, {v(AX)}, vcc")
        A.wait_vm("st")
        for i in range(1, 8):
            A(f"v_pk_add_f32 {v(BF,2)}, {v(BF,2)}, {v(BF+4*i,2)}")
            A(f"v_pk_add_f32 {v(BF+2,2)}, {v(BF+2,2)}, {v(BF+4*i+2,2)}")
        self.lane_sum([BF, BF + 1, BF + 2, BF + 3], [BF + 4, BF + 5, BF + 6, BF + 7], True, True)
        self.ln_scalars(BF, BF + 1, BF + 8, BF + 9, BF + 12, mpair=True)
        self.ln_scalars(BF + 2, BF + 3, BF + 10, BF + 11, BF + 12, mpair=True)
        A(f"s_lshr_b32 {s(S_T2)}, {s(S_W)}, 1")
        A(f"s_lshl_b32 {s(S_T2)}, {s(S_T2)}, 8")
        A(f"s_add_u32 {s(S_T2)}, {s(S_T2)}, {LNST}")
        A(f"s_bitcmp1_b32 {s(S_W)}, 0")
        A(f"s_cselect_b32 {s(S_T2)}, {LNDUMMY}, {s(S_T2)}")
        A(f"v_lshl_add_u32 {v(TE)}, {v(V_I)}, 4, {s(S_T2)}")
        A.lds(f"ds_write_b128 {v(TE)}, {v(BF+8,4)}")
        A(f"s_mul_i32 {s(S_T0)}, {s(S_B0)}, {GBATCH}")
        A(f"s_lshl_b32 {s(S_T2)}, {s(S_U)}, 13")
        A(f"s_add_u32 {s(S_T0)}, {s(S_T0)}, {s(S_T2)}")
        A(f"s_lshl_b32 {s(S_T2)}, {s(S_W)}, 11")
        A(f"s_add_u32 {s(S_T0)}, {s(S_T0)}, {s(S_T2)}")
        A(f"s_add_u32 {s(S_T0)}, {s(S_T0)}, {GB}")
        A(f"s_cmp_ge_u32 {s(S_U)}, 14")
        A(f"s_cselect_b32 {s(S_T0)}, {OOB}, {s(S_T0)}")
        A(f"v_add_u32 {v(V_GS)}, {s(S_T0)}, {v(V_L16)}")
        A(f"s_lshl_b32 {s(S_T0)}, {s(S_PG)}, 8")
        A(f"s_lshl_b32 {s(S_T2)}, {s(S_U)}, 4")
        A(f"s_add_u32 {s(S_T0)}, {s(S_T0)}, {s(S_T2)}")
        A(f"s_lshl_b32 {s(S_T2)}, {s(S_W)}, 2")
        A(f"s_add_u32 {s(S_T0)}, {s(S_T0)}, {s(S_T2)}")
        A(f"s_add_u32 {s(S_T0)}, {s(S_T0)}, {FL3}")
        A(f"s_cmp_ge_u32 {s(S_U)}, 14")
        A(f"s_cselect_b32 {s(S_T0)}, {OOB}, {s(S_T0)}")
        A(f"v_mov_b32 {v(V_F3)}, {s(S_T0)}")
        A(f"v_add_u32 {v(TF)}, {R1}, {v(V_L16)}")
        A(f"v_lshlrev_b32 {v(TE)}, 3, {v(V_J)}")
        BX0, BX1 = XRES, X1P
        for r in range(1, 4):
            A(f"v_mov_b32 {v(BX0+r)}, 0")
            A(f"v_mov_b32 {v(BX1+r)}, 0")
        A.wait_vm("x1t0")
        A.wait_lg()
        self.barrier()
        self.stamp("b5")
        A.lds(f"ds_read_b32 {v(V_R0)}, {v(TE)} offset:{LNST}", "ln")
        A.lds(f"ds_read_b32 {v(BX0)}, {v(TE)} offset:{LNST+4}", "ln")
        A.lds(f"ds_read_b32 {v(V_R1)}, {v(TE)} offset:{LNST+256}", "ln")
        A.lds(f"ds_read_b32 {v(BX1)}, {v(TE)} offset:{LNST+260}", "ln")
        q = []
        NH = 7

        def w4dma(hh):
            return self.wdma_items(SRD_W4, [V_WD], 8, S_L16, R3 + (hh % 2) * 8192, S_C, 32768, f"w4d{hh}")

        def w4park(hh):
            w4f = lambda st, f, hh=hh: (lambda o_, n: a(8 * (4 * hh + st) + 4 * f + o_, n))
            its = self.tr_items(w4f, [V_A0, V_A1], 4, 2048, 1024, 2, f"w4f{hh}", off0=(hh % 2) * 8192)
            first = its[0]
            its[0] = lambda: (A.wait_vm(f"w4d{hh}"), first())
            return its

        def after_park(hh, items):
            first = items[0]
            items[0] = lambda: (A.wait_lg(f"w4f{hh}"), first())
            return items
        q += w4dma(0) + w4dma(1)
        for hh in range(NH):
            q += w4park(hh)
            if hh + 2 < NH:
                q += after_park(hh, w4dma(hh + 2))
        self.bgq = q
        NB = 4
        BR = 224

        def tile_loop(t, base_off, bx, extra_ops, nbg):
            acc = ACC + 16 * t
            for st in range(NB):
                A.lds(f"ds_read_b128 {a(BR+4*(st%8),4)}, {v(TF)} offset:{base_off+st*1024}", f"b{st}")
            A.wait_lg("ln")
            A(f"v_mfma_f32_32x32x16_bf16 {v(acc,16)}, {v(AX,4)}, {v(bx,4)}, 0")
            done_bg = 0
            for st in range(32):
                if st % 2 == 0:
                    A.wait_lg(f"b{st+1}")
                A(f"v_mfma_f32_32x32x16_bf16 {v(acc,16)}, {v(WF+4*st,4)}, {a(BR+4*(st%8),4)}, {v(acc,16)}")
                if st + NB < 32:
                    n = st + NB
                    A.lds(f"ds_read_b128 {a(BR+4*(n%8),4)}, {v(TF)} offset:{base_off+n*1024}", f"b{n}")
                if extra_ops:
                    k = -(-len(extra_ops) // (32 - st))
                    for _ in range(k):
                        if extra_ops:
                            op = extra_ops.pop(0)
                            op() if callable(op) else A(op)
                want = (st + 1) * nbg // 32
                self.bg(want - done_bg)
                done_bg = want
        tile_loop(0, 0, BX0, [], o["bg_t0"])
        self.stamp("t0")
        A.wait_vm("x1t1")
        self.barrier()
        E0, GT = BF + 16, BF
        A.nop(10)
        for p in range(8):
            A(f"v_pk_mul_f32 {v(ACC+2*p,2)}, {v(ACC+2*p,2)}, {v(V_R0,2)} op_sel_hi:[1,0]")
        for t in self.gelu_a(ACC, 8, GT):
            A(t)
        ops0 = self.gelu_b(ACC, 8, E0, GT, False)
        ops0.append(lambda: self.publish([
            f"buffer_store_dwordx4 {v(E0,4)}, {v(V_GS)}, {s(SRD_WS,4)}, 0 offen{{F}}",
            f"buffer_store_dwordx4 {v(E0+4,4)}, {v(V_GS)}, {s(SRD_WS,4)}, 0 offen offset:1024{{F}}"], sc1=o["g_sc1"]))
        tile_loop(1, 32768, BX1, ops0, o["bg_t1"])
        self.stamp("t1")
        A(f"s_mov_b32 {s(S_T0)}, {GBATCH}")
        A.nop(11)
        E1 = BF + 24
        for p in range(8):
            A(f"v_pk_mul_f32 {v(ACC+16+2*p,2)}, {v(ACC+16+2*p,2)}, {v(V_R1,2)} op_sel_hi:[1,0]")
        for t in self.gelu_a(ACC + 16, 8, GT) + self.gelu_b(ACC + 16, 8, E1, GT, True):
            A(t)
        self.publish([
            f"buffer_store_dwordx4 {v(E1,4)}, {v(V_GS)}, {s(SRD_WS,4)}, {s(S_T0)} offen{{F}}",
            f"buffer_store_dwordx4 {v(E1+4,4)}, {v(V_GS)}, {s(SRD_WS,4)}, {s(S_T0)} offen offset:1024{{F}}"], sc1=o["g_sc1"])
        self.stamp("epi1")
        A.wait_vm()
        self.publish([f"buffer_store_dword {v(V_TAG)}, {v(V_F3)}, {s(SRD_WS,4)}, 0 offen{{F}}"])
        self.stamp("flag3")

        A.c("w4 rest")
        A(f"s_lshl_b32 {s(S_T0)}, {s(S_B)}, 15")
        A(f"s_lshl_b32 {s(S_T1)}, {s(S_M)}, 12")
        A(f"s_add_u32 {s(S_T0)}, {s(S_T0)}, {s(S_T1)}")
        A(f"s_lshl_b32 {s(S_T1)}, {s(S_W)}, 10")
        A(f"s_add_u32 {s(S_T0)}, {s(S_T0)}, {s(S_T1)}")
        A(f"s_add_u32 {s(S_T0)}, {s(S_T0)}, {X1B}")
        A(f"v_add_u32 {v(TE)}, {s(S_T0)}, {v(V_L16)}")
        A.vmem(f"buffer_load_dwordx4 {v(X1P,4)}, {v(TE)}, {s(SRD_WS,4)}, 0 offen sc1", "res")
        self.bg_flush()
        A.wait_lg()
        self.stamp("w4done")

        A.c("S4")
        A(f"s_lshl_b32 {s(S_T0)}, {s(S_PG)}, 8")
        A(f"s_mul_i32 {s(S_T2)}, {s(S_W)}, 56")
        A(f"s_add_u32 {s(S_T0)}, {s(S_T0)}, {s(S_T2)}")
        A(f"s_add_u32 {s(S_T0)}, {s(S_T0)}, {FL3}")
        A(f"v_min_u32 {v(TE)}, 13, {v(V_L)}")
        A(f"v_lshl_add_u32 {v(TE)}, {v(TE)}, 2, {s(S_T0)}")
        A(f"s_mul_i32 {s(S_T0)}, {s(S_B)}, {GBATCH}")
        A(f"s_mul_i32 {s(S_T2)}, {s(S_W)}, {28*1024}")
        A(f"s_add_u32 {s(S_T0)}, {s(S_T0)}, {s(S_T2)}")
        A(f"s_add_u32 {s(S_T0)}, {s(S_T0)}, {GB}")
        A(f"v_add_u32 {v(TF)}, {s(S_T0)}, {v(V_L16)}")
        A.wait_vm("res")
        for p in range(4):
            A(f"v_lshlrev_b32 {v(SCOL+2*p)}, 16, {v(X1P+p)}")
            A(f"v_and_b32 {v(SCOL+2*p+1)}, 0xffff0000, {v(X1P+p)}")
        self.poll(TE, TG)
        self.stamp("poll3")
        for i in range(28):
            if i % 4 == 0:
                A(f"s_mov_b32 {s(S_OFF)}, {(i//4)*4096}")
            off = f" offset:{(i%4)*1024}" if i % 4 else ""
            A.vmem(f"buffer_load_dwordx4 {v(WF+4*i,4)}, {v(TF)}, {s(SRD_WS,4)}, {s(S_OFF)} offen{off} sc1", f"g{i}")
        for k in (1, 2, 3):
            A(f"v_xor_b32 {v(TE+k)}, {k*8192}, {v(V_RED)}")
        for st in range(28):
            A.wait_vm(f"g{st}")
            c0 = "0" if st == 0 else v(ACC, 16)
            c1 = "0" if st == 0 else v(ACC + 16, 16)
            A(f"v_mfma_f32_32x32x16_bf16 {v(ACC,16)}, {a(8*st,4)}, {v(WF+4*st,4)}, {c0}")
            A(f"v_mfma_f32_32x32x16_bf16 {v(ACC+16,16)}, {a(8*st+4,4)}, {v(WF+4*st,4)}, {c1}")
        self.stamp("s4mfma")
        A.nop(12)
        for k in (1, 2, 3):
            A.lds(f"ds_write_b128 {v(V_RED)}, {v(ACC+8*k,4)} offset:{k*2048}")
            A.lds(f"ds_write_b128 {v(V_RED)}, {v(ACC+8*k+4,4)} offset:{k*2048+1024}")
        A.wait_lg()
        self.barrier()
        self.stamp("s4bar")
        for k in (1, 2, 3):
            A.lds(f"ds_read_b128 {v(BF+8*(k-1),4)}, {v(TE+k)} offset:{k*2048}", f"red{k}")
            A.lds(f"ds_read_b128 {v(BF+8*(k-1)+4,4)}, {v(TE+k)} offset:{k*2048+1024}", f"red{k}")
        for p in range(4):
            A(f"v_pk_add_f32 {v(ACC+2*p,2)}, {v(ACC+2*p,2)}, {v(SCOL+2*p,2)}")
        for k in (1, 2, 3):
            A.wait_lg(f"red{k}")
            for p in range(4):
                A(f"v_pk_add_f32 {v(ACC+2*p,2)}, {v(ACC+2*p,2)}, {v(BF+8*(k-1)+2*p,2)}")
        for p in range(4):
            A(f"v_cvt_pk_bf16_f32 {v(BF+24+p)}, {v(ACC+2*p)}, {v(ACC+2*p+1)}")
        A.vmem(f"buffer_store_dwordx2 {v(BF+24,2)}, {v(V_RO)}, {s(SRD_O,4)}, 0 offen")
        A.vmem(f"buffer_store_dwordx2 {v(BF+26,2)}, {v(V_RO)}, {s(SRD_O,4)}, 0 offen offset:16")
        self.stamp("end")
        if self.profile:
            A("s_memtime s[100:101]")
            A("s_waitcnt lgkmcnt(0)")
            A("s_sub_u32 s100, s100, s98")
            A(f"s_lshl_b32 {s(S_T0)}, s2, 2")
            A(f"s_add_u32 {s(S_T0)}, {s(S_T0)}, {s(S_W)}")
            A(f"s_lshl_b32 {s(S_T0)}, {s(S_T0)}, 7")
            A(f"s_add_u32 {s(S_T0)}, {s(S_T0)}, {PROF}")
            A(f"v_mov_b32 {v(V_T)}, {s(S_T0)}")
            for i in range(self.nstamp):
                A(f"v_mov_b32 {v(V_T+1)}, {s(S_STAMP+2*i)}")
                A(f"buffer_store_dword {v(V_T+1)}, {v(V_T)}, {s(SRD_WS,4)}, 0 offen offset:{4*i}")
            A(f"v_mov_b32 {v(V_T+1)}, s100")
            A(f"buffer_store_dword {v(V_T+1)}, {v(V_T)}, {s(SRD_WS,4)}, 0 offen offset:{4*31}")
        A("L_end:")
        A("s_endpgm")
        for b in self.slow_blocks:
            A(b)
        A("L_code_end:")
        A("s_endpgm")

    def round_to(self, src, tmp, dst):
        A = self.A
        A(f"v_cvt_pk_bf16_f32 {v(tmp)}, {v(src)}, {v(src)}")
        A(f"v_lshlrev_b32 {v(dst)}, 16, {v(tmp)}")

    def w3_items(self, _):
        A = self.A
        items = []
        for c in range(4):
            for i in range(8):
                def item(c=c, i=i):
                    k = i % 4
                    if k == 0:
                        A(f"s_add_u32 m0, {s(S_L8)}, {R1 + c*32768 + 1024*i}")
                        if c == 0 and i == 0:
                            A("s_nop 0")
                        elif i == 4:
                            A(f"v_add_u32 {v(V_W3D)}, {16*3584}, {v(V_W3D)}")
                        else:
                            A(f"v_add_u32 {v(V_W3D)}, {(128-16)*3584}, {v(V_W3D)}")
                    so = "0" if k == 0 else s(S_D + k - 1)
                    off = f" offset:{1024*k}" if k else ""
                    A.vmem(f"buffer_load_dwordx4 {v(V_W3D)}, {s(SRD_W3,4)}, {so} offen{off} lds", f"c{c}")
                items.append(item)
        self.w3_all = items
        return items

    def poll1(self, HP, between=None):
        A = self.A
        L, Ld, Ln, Lg = A.label("L_p1"), A.label("L_p1d"), A.label("L_p1n"), A.label("L_p1g")
        A(f"s_lshl_b32 {s(S_T0)}, {s(S_PG)}, 7")
        A(f"s_add_u32 {s(S_T0)}, {s(S_T0)}, {HS}")
        A(f"v_lshl_add_u32 {v(TH)}, {v(V_I)}, 3, {s(S_T0)}")
        A.vmem(f"buffer_load_dword {v(TG)}, {v(TE)}, {s(SRD_WS,4)}, 0 offen sc1", "poll")
        A.vmem(f"buffer_load_dwordx2 {v(SUM,2)}, {v(TH)}, {s(SRD_WS,4)}, 0 offen sc1", "poll")
        if between:
            between()
        A(f"s_mov_b32 {s(S_MODE)}, 1")
        A(f"s_mov_b32 {s(S_CNT)}, 0x8000")
        A.wait_vm("poll")
        A(f"v_cmp_ne_u32 vcc, {s(S_TAG)}, {v(SUM)}")
        A(f"v_cmp_ne_u32 {s(S_EX,2)}, {s(S_TAG)}, {v(TG)}")
        A(f"v_cmp_ne_u32 {s(62,2)}, {s(S_XCC)}, {v(SQ)}")
        A("s_nop 3")
        A(f"s_or_b64 vcc, vcc, {s(S_EX,2)}")
        A(f"s_or_b64 vcc, vcc, {s(62,2)}")
        A(f"s_cbranch_scc1 {L}")
        A(f"{Ld}:")
        blk = f"""{L}:
s_mov_b32 {s(S_MODE)}, 0
buffer_load_dword {v(TG)}, {v(TE)}, {s(SRD_WS,4)}, 0 offen sc1
buffer_load_dwordx2 {v(SUM,2)}, {v(TH)}, {s(SRD_WS,4)}, 0 offen sc1
s_sub_u32 {s(S_CNT)}, {s(S_CNT)}, 1
s_cmp_eq_u32 {s(S_CNT)}, 0
s_cbranch_scc1 {Ld}
s_waitcnt vmcnt(0)
v_cmp_ne_u32 vcc, {s(S_TAG)}, {v(SUM)}
v_cmp_ne_u32 {s(S_EX,2)}, {s(S_TAG)}, {v(TG)}
s_nop 4
s_cmp_eq_u64 vcc, 0
s_cbranch_scc0 {L}
v_cmp_ne_u32 vcc, {s(S_XCC)}, {v(SQ)}
s_nop 4
s_cmp_eq_u64 vcc, 0
s_cbranch_scc0 {Ln}
s_cmp_eq_u64 {s(S_EX,2)}, 0
s_cbranch_scc0 {L}
s_mov_b32 {s(S_MODE)}, 1
s_branch {Ld}
{Ln}:
buffer_store_dwordx2 {v(HP,2)}, {v(V_FO)}, {s(SRD_WS,4)}, 0 offen sc1
buffer_store_dwordx2 {v(HP+2,2)}, {v(V_FO)}, {s(SRD_WS,4)}, 0 offen offset:256 sc1
s_add_u32 {s(S_T0)}, {s(S_FLO)}, {FL1G}
v_mov_b32 {v(TG)}, {s(S_T0)}
s_waitcnt vmcnt(0)
buffer_store_dword {v(V_TAG)}, {v(TG)}, {s(SRD_WS,4)}, 0 offen sc1
v_add_u32 {v(TE)}, {FL1G-FL1}, {v(TE)}
{Lg}:
buffer_load_dword {v(TG)}, {v(TE)}, {s(SRD_WS,4)}, 0 offen sc1
s_sub_u32 {s(S_CNT)}, {s(S_CNT)}, 1
s_cmp_eq_u32 {s(S_CNT)}, 0
s_cbranch_scc1 {Ld}
s_waitcnt vmcnt(0)
v_cmp_ne_u32 vcc, {s(S_TAG)}, {v(TG)}
s_nop 4
s_cmp_eq_u64 vcc, 0
s_cbranch_scc0 {Lg}
s_branch {Ld}"""
        self.slow_blocks.append(blk)


HEADER = """; Kernarg layout: x, w1, w2, w3, w4, out, debug, ws (8 pointers)
; @launch grid=(256,1,1) block=(256,1,1) lds=163840
.amdgcn_target "amdgcn-amd-amdhsa--gfx950"
.text
.globl {name}_kernel
.p2align 8
.type {name}_kernel,@function
{name}_kernel:
"""
FOOTER = """.section .rodata,"a"
.p2align 6
.amdhsa_kernel {name}_kernel
  .amdhsa_next_free_vgpr 512
  .amdhsa_next_free_sgpr 102
  .amdhsa_accum_offset 256
  .amdhsa_group_segment_fixed_size 0
  .amdhsa_kernarg_size 64
  .amdhsa_user_sgpr_count 2
  .amdhsa_user_sgpr_kernarg_segment_ptr 1
  .amdhsa_system_sgpr_workgroup_id_x 1
  .amdhsa_float_denorm_mode_32 3
.end_amdhsa_kernel
"""


def generate(**kw):
    g = Gen(**kw)
    g.build()
    return HEADER.format(name=NAME) + g.A.text() + FOOTER.format(name=NAME), g


if __name__ == "__main__":
    import argparse
    ap = argparse.ArgumentParser()
    ap.add_argument("-o", default="cdna_kernels/" + NAME + ".s")
    ap.add_argument("--mode", default="auto", choices=["auto", "local", "global"])
    ap.add_argument("--profile", action="store_true")
    ap.add_argument("--opt", action="append", default=[])
    args = ap.parse_args()
    opts = {}
    for t in args.opt:
        k, val = t.split("=")
        opts[k] = val.split(",") if k == "stamps" else int(val)
    txt, g = generate(local={"auto": None, "local": True, "global": False}[args.mode], profile=args.profile, opts=opts)
    open(args.o, "w").write(txt)
    print("instructions:", g.A.ninstr, "stamps:", g.nstamp, ",".join(g.stamp_names))
    if args.profile:
        open(args.o, "a").write("; STAMPS " + ",".join(g.stamp_names) + "\n")
```

```python
import sys
import os
import struct
sys.path.insert(0, os.path.dirname(os.path.abspath(__file__)))
from asmlib import Asm, v, a, s

NAME = "standalone__mixer_s_mlp__sampling"

HB = 0
X1B = 1 << 20
GB = 2 << 20
GBATCH = 112 * 1024
STB = 6 << 20
FL = 7 << 20
FL1 = FL
FL1G = FL + 0x1000
FL2 = FL + 0x2000
FL3 = FL + 0x3000
EPO = FL + 0x4000
HS = FL + 0x5000
PROF = FL + 0x10000
WS_SIZE = 8 << 20
OOB = 0x80000000

R0, R1, R2, R3, R4 = 0, 32768, 65536, 98304, 131072
PART = R4 + 32768 - 1024
LNST = R2
LNDUMMY = R2 + 1024

S_T0, S_T1 = 3, 4
S_J, S_M, S_B, S_U, S_B0, S_PG, S_W = 5, 6, 7, 8, 9, 10, 11
S_TAG = 12
S_T2, S_T3 = 14, 15
SRD_X, SRD_W1, SRD_W2, SRD_W3, SRD_W4, SRD_WS, SRD_O = 16, 20, 24, 32, 36, 40, 44
S_KA = 48
S_L8, S_L16, S_L4 = 48, 49, 50
S_C = 51
S_D = 54
S_R4 = 57
S_EX = 58
S_A, S_R2, S_MODE, S_XCC = 60, 61, 62, 63
S_OFF, S_CNT, S_4096, S_T4 = 64, 65, 66, 67
S_K2 = 68
S_PC = 70
S_FRAG, S_HSRC, S_X1SRC, S_FLO, S_SL, S_IDLE, S_HSP, S_GW, S_HSV = 72, 73, 74, 75, 76, 77, 78, 79, 80
S_HP = 82
S_STAMP = 86

V_L, V_H, V_J, V_L16 = 0, 1, 2, 3
V_WD = 4
V_W2D = 5
V_W1D = 6
V_XD = 8
V_Q, V_I = 9, 10
V_W3D, V_TR3 = 11, 12
V_RED = 13
V_K1 = 14
V_T = 16
SUM, SQ, P0, P1 = 20, 21, 22, 23
TE, TF, TG, TH = 24, 25, 26, 27
V_GS, V_HSH, V_FO, V_RO = 28, 29, 30, 31
ACC = 32
SCOL = 64
BF = 80
X1P = 112
XRES = 116
V_A0, V_A1 = 120, 121
V_R0, V_Q0, V_R1, V_Q1 = 122, 123, 124, 125
V_ONES = 126
V_TAG = 127
WF = 128
JUNK = 15
V_FS1, V_FS2, V_FS3 = 8, 6, 7
V_A2, V_A3 = 18, 19
V_ST = 5


def f2u(x):
    return struct.unpack("<I", struct.pack("<f", x))[0]


class Gen:
    def __init__(self, local=None, profile=False, opts=None):
        self.A = Asm()
        self.force = local
        self.profile = profile
        self.nstamp = 0
        self.stamp_names = []
        self.slow_blocks = []
        self.bgq = []
        self.o = dict(codepf=1, t_ex=1, g_sc1=0, t_g=2, t_w2=1, mimic_ln=0, rot=1, xrot=1, t_idle=1,
                      w2_s1=12,
                      c_e=0,
                      c_h=0,
                      c_s2=16,
                      c_p2=4,
                      bg_t0=12, bg_a=2, bg_t1=20, bg_e1=4)
        if opts:
            self.o.update(opts)

    def stamp(self, name="?"):
        if not self.profile:
            return
        want = self.o.get("stamps")
        if want is not None and name not in want:
            return
        A = self.A
        r = S_STAMP + 2 * self.nstamp
        assert r + 1 <= 101, "too many stamps"
        self.nstamp += 1
        self.stamp_names.append(name)
        A(f"s_memrealtime {s(r,2)}")
        A.force_lg0 = True

    def bg(self, n=1):
        for _ in range(n):
            if self.bgq:
                self.bgq.pop(0)()

    def bg_flush(self):
        self.bg(len(self.bgq))

    def wdma_items(self, srd, vaddrs, n, lds_sgpr, lds_const, consts, group_step, tag, xor=False, last=None):
        A = self.A
        items = []
        for i in range(n):
            def item(i=i):
                k = i % 4
                if k == 0:
                    A(f"s_add_u32 m0, {s(lds_sgpr)}, {lds_const + 1024*i}")
                    if i == 0:
                        A("s_nop 0")
                    else:
                        g = i // 4
                        for va in sorted(set(vaddrs)):
                            if xor:
                                A(f"v_xor_b32 {v(va)}, {(g ^ (g-1))*group_step}, {v(va)}")
                            else:
                                A(f"v_add_u32 {v(va)}, {group_step}, {v(va)}")
                so = "0" if k == 0 else s(consts + k - 1)
                off = f" offset:{1024*k}" if k else ""
                A.vmem(f"buffer_load_dwordx4 {v(vaddrs[i % len(vaddrs)])}, {s(srd,4)}, {so} offen{off} lds", tag)
                if i == n - 1:
                    if last:
                        last()
                    elif not xor:
                        for va in sorted(set(vaddrs)):
                            A(f"v_add_u32 {v(va)}, {group_step}, {v(va)}")
            items.append(item)
        return items

    def lin_dma(self, vaddr, n, lds_sgpr, lds_const, g_sgpr, g_const, tag):
        A = self.A
        for i in range(n):
            if i % 4 == 0:
                A(f"s_add_u32 m0, {s(lds_sgpr)}, {lds_const + 1024*i}")
                A(f"s_add_u32 {s(S_OFF)}, {s(g_sgpr)}, {g_const + 1024*i}")
            off = f" offset:{1024*(i%4)}" if i % 4 else ""
            A.vmem(f"buffer_load_dwordx4 {v(vaddr)}, {s(SRD_WS,4)}, {s(S_OFF)} offen{off} sc1 lds", tag)

    def tr_items(self, dst_fn, base_v, nsteps, step_bytes, second, tiles, tag, off0=0):
        A = self.A
        items = []
        for st in range(nsteps):
            for f in range(tiles):
                def item(st=st, f=f):
                    reg = dst_fn(st, f)
                    bv = base_v[f]
                    A.lds(f"ds_read_b64_tr_b16 {reg(0,2)}, {v(bv)} offset:{off0+st*step_bytes}", tag)
                    A.lds(f"ds_read_b64_tr_b16 {reg(2,2)}, {v(bv)} offset:{off0+st*step_bytes+second}", tag)
                items.append(item)
        return items

    def publish(self, stores, sc1=False, tag=None):
        A = self.A
        if sc1 or self.force is False:
            for t in stores:
                A.vmem(t.replace("{F}", " sc1"), tag)
            return
        if self.force is True:
            for t in stores:
                A.vmem(t.replace("{F}", ""), tag)
            return
        Ls, Lb = A.label("L_slow"), A.label("L_back")
        A(f"s_cmp_eq_u32 {s(S_MODE)}, 1")
        A(f"s_cbranch_scc0 {Ls}")
        for t in stores:
            A.vmem(t.replace("{F}", ""), tag)
        A(f"{Lb}:")
        blk = [f"{Ls}:"] + [t.replace("{F}", " sc1") for t in stores] + [f"s_branch {Lb}"]
        self.slow_blocks.append("\n".join(blk))

    def poll(self, vaddr, vtmp, between=None):
        A = self.A
        L = A.label("L_poll")
        Ld = A.label("L_polld")
        A.vmem(f"buffer_load_dword {v(vtmp)}, {v(vaddr)}, {s(SRD_WS,4)}, 0 offen sc1", "poll")
        if between:
            between()
        A.wait_vm("poll")
        A(f"v_cmp_ne_u32 vcc, {s(S_TAG)}, {v(vtmp)}")
        A(f"s_mov_b32 {s(S_CNT)}, 0x8000")
        A("s_nop 3")
        A("s_cmp_eq_u64 vcc, 0")
        A(f"s_cbranch_scc0 {L}")
        A(f"{Ld}:")
        blk = f"""{L}:
buffer_load_dword {v(vtmp)}, {v(vaddr)}, {s(SRD_WS,4)}, 0 offen sc1
s_sub_u32 {s(S_CNT)}, {s(S_CNT)}, 1
s_cmp_eq_u32 {s(S_CNT)}, 0
s_cbranch_scc1 {Ld}
s_waitcnt vmcnt(0)
v_cmp_ne_u32 vcc, {s(S_TAG)}, {v(vtmp)}
s_nop 4
s_cmp_eq_u64 vcc, 0
s_cbranch_scc0 {L}
s_branch {Ld}"""
        self.slow_blocks.append(blk)

    def barrier(self):
        self.A("s_barrier")

    def gelu_a(self, src, n, t0):
        ops = []
        for p in range(n):
            ops.append(f"v_pk_mul_f32 {v(t0+2*p,2)}, {v(src+2*p,2)}, {v(src+2*p,2)}")
        for p in range(n):
            ops.append(f"v_pk_fma_f32 {v(t0+2*p,2)}, {v(t0+2*p,2)}, {s(S_K2,2)}, {v(V_K1,2)} op_sel_hi:[1,1,0]")
        for p in range(n):
            ops.append(f"v_pk_mul_f32 {v(t0+2*p,2)}, {v(t0+2*p,2)}, {v(src+2*p,2)}")
        return ops

    def gelu_b(self, src, n, dst, t0, packed):
        ops = []
        for e in range(2 * n):
            ops.append(f"v_exp_f32 {v(t0+e)}, {v(t0+e)}")
        if packed:
            for p in range(n):
                ops.append(f"v_pk_add_f32 {v(t0+2*p,2)}, {v(t0+2*p,2)}, 1.0 op_sel_hi:[1,0]")
        else:
            for e in range(2 * n):
                ops.append(f"v_add_f32 {v(t0+e)}, 1.0, {v(t0+e)}")
        for e in range(2 * n):
            ops.append(f"v_rcp_f32 {v(t0+e)}, {v(t0+e)}")
        if packed:
            for p in range(n):
                ops.append(f"v_pk_mul_f32 {v(t0+2*p,2)}, {v(t0+2*p,2)}, {v(src+2*p,2)}")
        else:
            for e in range(2 * n):
                ops.append(f"v_mul_f32 {v(t0+e)}, {v(t0+e)}, {v(src+e)}")
        for p in range(n):
            ops.append(f"v_cvt_pk_bf16_f32 {v(dst+p)}, {v(t0+2*p)}, {v(t0+2*p+1)}")
        return ops

    def round_bf16(self, reg, tmp):
        A = self.A
        A(f"v_cvt_pk_bf16_f32 {v(tmp)}, {v(reg)}, {v(reg)}")
        A(f"v_lshlrev_b32 {v(reg)}, 16, {v(tmp)}")

    def round_to(self, src, tmp, dst):
        A = self.A
        A(f"v_cvt_pk_bf16_f32 {v(tmp)}, {v(src)}, {v(src)}")
        A(f"v_lshlrev_b32 {v(dst)}, 16, {v(tmp)}")

    def ln_scalars(self, vsum, vsq, vr, vq, t, mpair=False):
        A = self.A
        if not self.o["mimic_ln"]:
            A(f"v_mul_f32 {v(vsum)}, 0xbb000000, {v(vsum)}")
            A(f"v_mul_f32 {v(vsq)}, 0x3b000000, {v(vsq)}")
            A(f"v_fma_f32 {v(vsq)}, -{v(vsum)}, {v(vsum)}, {v(vsq)}")
            A(f"v_max_f32 {v(vsq)}, 0, {v(vsq)}")
            A(f"v_add_f32 {v(vsq)}, 0x3727c5ac, {v(vsq)}")
            A(f"v_rsq_f32 {v(vr)}, {v(vsq)}")
            if mpair:
                A(f"v_cvt_pk_bf16_f32 {v(vq)}, {v(vsum)}, {v(vsum)}")
            else:
                A("s_nop 0")
                A(f"v_mul_f32 {v(vq)}, {v(vsum)}, {v(vr)}")
            return
        A(f"v_mul_f32 {v(vsum)}, 0x3b000000, {v(vsum)}")
        A(f"v_mul_f32 {v(vsq)}, 0x3b000000, {v(vsq)}")
        A(f"v_fma_f32 {v(vsq)}, -{v(vsum)}, {v(vsum)}, {v(vsq)}")
        A(f"v_max_f32 {v(vsq)}, 0, {v(vsq)}")
        if mpair:
            A(f"v_sub_f32 {v(vsum)}, 0, {v(vsum)}")
            A(f"v_cvt_pk_bf16_f32 {v(vq)}, {v(vsum)}, {v(vsum)}")
        else:
            self.round_bf16(vsum, t)
        self.round_bf16(vsq, t)
        A(f"v_add_f32 {v(vsq)}, 0x3727c5ac, {v(vsq)}")
        self.round_bf16(vsq, t)
        A(f"v_sqrt_f32 {v(vsq)}, {v(vsq)}")
        A("s_nop 0")
        self.round_bf16(vsq, t)
        A(f"v_rcp_f32 {v(vr)}, {v(vsq)}")
        if not mpair:
            A("s_nop 0")
            A(f"v_mul_f32_e64 {v(vq)}, -{v(vsum)}, {v(vr)}")

    def lane_sum(self, regs, tmps, x32=True, x16=False):
        A = self.A
        for op, on in (("v_permlane32_swap_b32", x32), ("v_permlane16_swap_b32", x16)):
            if not on:
                continue
            for r, t in zip(regs, tmps):
                A(f"v_mov_b32 {v(t)}, {v(r)}")
            A.nop(max(0, 3 - len(regs)) if len(regs) < 3 else 0)
            if len(regs) >= 3:
                A("s_nop 0")
            for r, t in zip(regs, tmps):
                A(f"{op} {v(r)}, {v(t)}")
            A("s_nop 1")
            for r, t in zip(regs, tmps):
                A(f"v_add_f32 {v(r)}, {v(r)}, {v(t)}")

    def touch(self, vaddr, srd, so="0"):
        self.A.vmem(f"buffer_load_dword {v(JUNK)}, {v(vaddr)}, {s(srd,4)}, {so} offen", "touch")

    def wave0_addr(self, vdst, sreg):
        A = self.A
        A(f"s_cmp_eq_u32 {s(S_W)}, 0")
        A(f"s_cselect_b32 {s(sreg)}, {s(sreg)}, {OOB}")
        A(f"v_mov_b32 {v(vdst)}, {s(sreg)}")

    def build(self):
        A = self.A
        o = self.o
        T = V_T
        A("s_cmp_ge_u32 s2, 256")
        A("s_cbranch_scc1 L_end")
        A(f"s_load_dwordx16 {s(S_KA,16)}, s[0:1], 0")
        if self.profile:
            A("s_memtime s[84:85]")
        self.stamp("start")
        A(f"v_lshrrev_b32 {v(T)}, 6, v0")
        A(f"v_and_b32 {v(V_L)}, 63, v0")
        A(f"s_lshr_b32 {s(S_J)}, s2, 3")
        A(f"v_readfirstlane_b32 {s(S_W)}, {v(T)}")
        A(f"s_and_b32 {s(S_M)}, {s(S_J)}, 7")
        A(f"s_and_b32 {s(S_T0)}, s2, 7")
        A(f"s_lshl_b32 {s(S_B)}, {s(S_T0)}, 2")
        A(f"s_lshr_b32 {s(S_T1)}, {s(S_J)}, 3")
        A(f"s_add_u32 {s(S_B)}, {s(S_B)}, {s(S_T1)}")
        A(f"v_lshrrev_b32 {v(V_Q)}, 4, {v(V_L)}")
        A(f"v_and_b32 {v(V_I)}, 15, {v(V_L)}")
        A(f"v_lshrrev_b32 {v(T)}, 3, {v(V_L)}")
        A(f"v_lshlrev_b32 {v(T)}, 10, {v(T)}")
        A(f"v_and_b32 {v(T+1)}, 7, {v(V_L)}")
        A(f"s_and_b32 {s(S_T0)}, {s(S_W)}, 1")
        A(f"s_lshl_b32 {s(S_T0)}, {s(S_T0)}, 2")
        A(f"v_xor_b32 {v(T+2)}, {v(T+1)}, {v(V_Q)}")
        A(f"v_xor_b32 {v(T+2)}, {s(S_T0)}, {v(T+2)}")
        A(f"v_lshl_add_u32 {v(T+2)}, {v(T+2)}, 4, {v(T)}")
        A(f"s_lshl_b32 {s(S_T0)}, {s(S_B)}, 15")
        A(f"s_lshl_b32 {s(S_T1)}, {s(S_W)}, 13")
        A(f"s_add_u32 {s(S_HSRC)}, {s(S_T0)}, {s(S_T1)}")
        A(f"v_add_u32 {v(V_XD)}, {s(S_HSRC)}, {v(T+2)}")
        A(f"v_and_b32 {v(T+2)}, 1, {v(V_Q)}")
        A(f"v_lshlrev_b32 {v(T+2)}, 1, {v(T+2)}")
        A(f"v_xor_b32 {v(T+2)}, {v(T+1)}, {v(T+2)}")
        A(f"v_lshl_add_u32 {v(T+2)}, {v(T+2)}, 4, {v(T)}")
        A(f"s_lshl_b32 {s(S_T0)}, {s(S_M)}, 7")
        A(f"s_lshl_b32 {s(S_T1)}, {s(S_W)}, 15")
        A(f"s_add_u32 {s(S_T1)}, {s(S_T1)}, {s(S_T0)}")
        if o["rot"]:
            A(f"s_lshr_b32 {s(S_T0)}, {s(S_J)}, 3")
            A(f"s_lshl_b32 {s(S_T0)}, {s(S_T0)}, 17")
            A(f"s_add_u32 {s(S_T1)}, {s(S_T1)}, {s(S_T0)}")
        A(f"v_add_u32 {v(V_W1D)}, {s(S_T1)}, {v(T+2)}")
        A(f"v_xor_b32 {v(V_W1D+1)}, 64, {v(V_W1D)}")
        for srd, size in ((SRD_X, 1 << 20), (SRD_W1, 1 << 19), (SRD_WS, WS_SIZE), (SRD_W2, 1 << 19), (SRD_W3, 512 * 3584),
                          (SRD_W4, 1792 * 1024), (SRD_O, 1 << 20)):
            A(f"s_mov_b32 {s(srd+2)}, {size}")
            A(f"s_mov_b32 {s(srd+3)}, 0x20000")
        A(f"s_lshr_b32 {s(S_PG)}, {s(S_B)}, 1")
        A(f"s_and_b32 {s(S_U)}, {s(S_J)}, 15")
        A(f"s_and_b32 {s(S_B0)}, {s(S_B)}, 0xfe")
        A(f"s_cmp_gt_u32 {s(S_U)}, 3")
        A(f"s_cselect_b32 {s(S_T0)}, 1, 0")
        A(f"s_sub_u32 {s(S_SL)}, {s(S_U)}, {s(S_T0)}")
        A(f"s_cmp_gt_u32 {s(S_U)}, 11")
        A(f"s_cselect_b32 {s(S_T0)}, 1, 0")
        A(f"s_sub_u32 {s(S_SL)}, {s(S_SL)}, {s(S_T0)}")
        A(f"s_cmp_eq_u32 {s(S_M)}, 3")
        A(f"s_cselect_b32 {s(S_IDLE)}, 1, 0")
        if o["codepf"]:
            A(f"s_getpc_b64 {s(S_PC,2)}")
            A("L_pc0:")
            A(f"s_lshl_b32 {s(S_T3)}, {s(S_J)}, 2")
            A(f"s_add_u32 {s(S_T3)}, {s(S_T3)}, {s(S_W)}")
            A(f"s_lshl_b32 {s(S_T3)}, {s(S_T3)}, 8")
            A(f"v_lshl_add_u32 {v(TE)}, {v(V_L)}, 7, {s(S_T3)}")
            A(f"s_mov_b32 {s(S_T4)}, L_code_end-L_pc0")
            A(f"v_cmp_gt_u32 vcc, 2, {v(V_L)}")
        A("s_waitcnt lgkmcnt(0)")
        order = (SRD_X, SRD_W1, SRD_W2, SRD_W3, SRD_W4, SRD_O, None, SRD_WS)
        for i in (0, 1):
            A(f"s_mov_b32 {s(order[i])}, {s(S_KA+2*i)}")
            A(f"s_mov_b32 {s(order[i]+1)}, {s(S_KA+2*i+1)}")
        A(f"s_lshl_b32 {s(S_T0)}, {s(S_W)}, 13")
        for i in range(8):
            A(f"s_add_u32 m0, {s(S_T0)}, {R0 + 896*i}")
            A("s_nop 0")
            off = f" offset:{128*i}" if i else ""
            A.vmem(f"buffer_load_dwordx4 {v(V_XD)}, {s(SRD_X,4)}, 0 offen{off} lds", "x" if i == 7 else f"x{i}")
        for i in (7, 2, 3, 4, 5):
            A(f"s_mov_b32 {s(order[i])}, {s(S_KA+2*i)}")
            A(f"s_mov_b32 {s(order[i]+1)}, {s(S_KA+2*i+1)}")
        A(f"s_lshl_b32 {s(S_L8)}, {s(S_W)}, 13")
        A(f"s_lshl_b32 {s(S_L16)}, {s(S_W)}, 14")
        A(f"s_lshl_b32 {s(S_L4)}, {s(S_W)}, 12")
        for k in (1, 2, 3):
            A(f"s_mov_b32 {s(S_C+k-1)}, {7168*k}")

        def w1stage(p):
            A(f"s_add_u32 m0, {s(S_L4)}, {R1 + p*16384}")
            if p:
                A(f"v_xor_b32 {v(V_W1D)}, {(p ^ (p-1))*131072}, {v(V_W1D)}")
                A(f"v_xor_b32 {v(V_W1D+1)}, {(p ^ (p-1))*131072}, {v(V_W1D+1)}")
            else:
                A("s_nop 0")
            for k in range(4):
                so = "0" if k == 0 else s(S_C + k - 1)
                off = f" offset:{1024*k}" if k else ""
                A.vmem(f"buffer_load_dwordx4 {v(V_W1D + (k & 1))}, {s(SRD_W1,4)}, {so} offen{off} lds", f"w1_{p}")
        w1stage(0)
        if o["codepf"]:
            A(f"v_cmp_gt_u32 {s(S_EX,2)}, {s(S_T4)}, {v(TE)}")
            A("s_nop 1")
            A(f"s_and_b64 vcc, vcc, {s(S_EX,2)}")
            A(f"s_and_saveexec_b64 {s(S_EX,2)}, vcc")
            A("s_cbranch_execz L_nopf")
            A(f"global_load_dword {v(JUNK)}, {v(TE)}, {s(S_PC,2)}")
            A("L_nopf:")
            A(f"s_mov_b64 exec, {s(S_EX,2)}")
        A(f"s_lshl_b32 {s(S_T0)}, {s(S_PG)}, 7")
        A(f"s_add_u32 {s(S_T0)}, {s(S_T0)}, {EPO}")
        A(f"v_mov_b32 {v(V_TAG)}, {s(S_T0)}")
        A.vmem(f"buffer_load_dword {v(V_TAG)}, {v(V_TAG)}, {s(SRD_WS,4)}, 0 offen sc1", "epoch")
        if o["t_w2"]:
            A(f"s_lshl_b32 {s(S_T0)}, s2, 2")
            A(f"s_add_u32 {s(S_T0)}, {s(S_T0)}, {s(S_W)}")
            A(f"s_lshl_b32 {s(S_T0)}, {s(S_T0)}, 9")
            A(f"v_cmp_gt_u32 vcc, 4, {v(V_L)}")
            A(f"v_lshl_add_u32 {v(TF)}, {v(V_L)}, 7, {s(S_T0)}")
            A(f"v_mov_b32 {v(TH)}, {OOB:#x}")
            A(f"v_cndmask_b32 {v(TF)}, {v(TH)}, {v(TF)}, vcc")
            self.touch(TF, SRD_W2)
        self.stamp("issued")

        A(f"v_lshlrev_b32 {v(V_L16)}, 4, {v(V_L)}")
        A(f"v_lshrrev_b32 {v(V_H)}, 5, {v(V_L)}")
        A(f"v_and_b32 {v(V_J)}, 31, {v(V_L)}")
        A(f"s_mov_b32 {s(S_4096)}, 4096")
        for k in (1, 2, 3):
            A(f"s_mov_b32 {s(S_D+k-1)}, {13312*k}")
        A(f"s_lshr_b32 {s(S_A)}, {s(S_J)}, 3")
        A(f"s_and_b32 {s(S_T0)}, s2, 7")
        A(f"s_and_b32 {s(S_R2)}, {s(S_T0)}, {3 if o['xrot'] else 0}")
        if o["xrot"]:
            if o.get("r4m", 1):
                A(f"s_add_u32 {s(S_R4)}, {s(S_T0)}, {s(S_M)}")
            else:
                A(f"s_mov_b32 {s(S_R4)}, {s(S_T0)}")
            A(f"s_cmp_ge_u32 {s(S_R4)}, 7")
            A(f"s_cselect_b32 {s(S_T1)}, 7, 0")
            A(f"s_sub_u32 {s(S_R4)}, {s(S_R4)}, {s(S_T1)}")
            A(f"s_cmp_ge_u32 {s(S_R4)}, 7")
            A(f"s_cselect_b32 {s(S_T1)}, 7, 0")
            A(f"s_sub_u32 {s(S_R4)}, {s(S_R4)}, {s(S_T1)}")
        else:
            A(f"s_mov_b32 {s(S_R4)}, 0")
        A(f"s_lshl_b32 {s(S_GW)}, s2, 2")
        A(f"s_add_u32 {s(S_GW)}, {s(S_GW)}, {s(S_W)}")
        A(f"s_lshl_b32 {s(S_T0)}, {s(S_B)}, 15")
        A(f"s_lshl_b32 {s(S_T1)}, {s(S_M)}, 12")
        A(f"s_add_u32 {s(S_T0)}, {s(S_T0)}, {s(S_T1)}")
        A(f"s_lshl_b32 {s(S_T1)}, {s(S_W)}, 10")
        A(f"s_add_u32 {s(S_FRAG)}, {s(S_T0)}, {s(S_T1)}")
        A(f"v_and_b32 {v(T)}, 1, {v(V_Q)}")
        A(f"v_lshlrev_b32 {v(T)}, 9, {v(T)}")
        A(f"v_lshl_add_u32 {v(T)}, {v(V_I)}, 4, {v(T)}")
        A(f"v_lshrrev_b32 {v(T+1)}, 1, {v(V_Q)}")
        A(f"v_lshl_add_u32 {v(T)}, {v(T+1)}, 3, {v(T)}")
        A(f"v_add_u32 {v(V_FO)}, {s(S_FRAG)}, {v(T)}")
        A(f"s_lshl_b32 {s(S_T0)}, {s(S_B)}, 7")
        A(f"s_lshl_b32 {s(S_T1)}, {s(S_M)}, 4")
        A(f"s_add_u32 {s(S_T0)}, {s(S_T0)}, {s(S_T1)}")
        A(f"s_lshl_b32 {s(S_T1)}, {s(S_W)}, 2")
        A(f"s_add_u32 {s(S_FLO)}, {s(S_T0)}, {s(S_T1)}")
        A(f"s_lshl_b32 {s(S_T0)}, {s(S_PG)}, 7")
        A(f"s_add_u32 {s(S_HSP)}, {s(S_T0)}, {HS}")
        A(f"s_lshl_b32 {s(S_T0)}, {s(S_B0)}, 15")
        A(f"s_add_u32 {s(S_X1SRC)}, {s(S_T0)}, {s(S_L8)}")
        A(f"s_lshl_b32 {s(S_T0)}, {s(S_B)}, 15")
        A(f"s_lshl_b32 {s(S_T1)}, {s(S_M)}, 7")
        A(f"s_add_u32 {s(S_T0)}, {s(S_T0)}, {s(S_T1)}")
        A(f"s_lshl_b32 {s(S_T1)}, {s(S_W)}, 5")
        A(f"s_add_u32 {s(S_T3)}, {s(S_T0)}, {s(S_T1)}")
        A(f"v_lshlrev_b32 {v(T)}, 10, {v(V_I)}")
        A(f"v_lshl_add_u32 {v(T)}, {v(V_Q)}, 3, {v(T)}")
        A(f"v_add_u32 {v(T)}, {s(S_T3)}, {v(T)}")
        A(f"s_mov_b32 {s(S_T0)}, 16384")
        A.vmem(f"buffer_load_dwordx2 {v(XRES,2)}, {v(T)}, {s(SRD_X,4)}, 0 offen", "xres")
        A.vmem(f"buffer_load_dwordx2 {v(XRES+2,2)}, {v(T)}, {s(SRD_X,4)}, {s(S_T0)} offen", "xres")
        A(f"v_lshlrev_b32 {v(T)}, 10, {v(V_J)}")
        A(f"v_lshl_add_u32 {v(T)}, {v(V_H)}, 3, {v(T)}")
        A(f"v_add_u32 {v(V_RO)}, {s(S_T3)}, {v(T)}")
        A(f"v_lshrrev_b32 {v(T)}, 3, {v(V_L)}")
        A(f"v_lshlrev_b32 {v(T)}, 10, {v(T)}")
        A(f"v_and_b32 {v(T+1)}, 7, {v(V_L)}")
        A(f"v_lshlrev_b32 {v(T+2)}, 1, {v(V_Q)}")
        A(f"v_xor_b32 {v(T+2)}, {v(T+1)}, {v(T+2)}")
        A(f"v_lshl_add_u32 {v(T+2)}, {v(T+2)}, 4, {v(T)}")
        A(f"s_lshl_b32 {s(S_T0)}, {s(S_M)}, 7")
        A(f"s_lshl_b32 {s(S_T1)}, {s(S_W)}, 17")
        A(f"s_add_u32 {s(S_T1)}, {s(S_T1)}, {s(S_T0)}")
        A(f"s_lshl_b32 {s(S_T2)}, {s(S_R2)}, 15")
        A(f"s_add_u32 {s(S_T1)}, {s(S_T1)}, {s(S_T2)}")
        A(f"v_add_u32 {v(V_W2D)}, {s(S_T1)}, {v(T+2)}")
        A(f"v_and_b32 {v(T+2)}, 1, {v(V_Q)}")
        A(f"v_lshlrev_b32 {v(T+2)}, 2, {v(T+2)}")
        A(f"v_xor_b32 {v(T+2)}, {v(T+1)}, {v(T+2)}")
        A(f"v_lshl_add_u32 {v(T+2)}, {v(T+2)}, 4, {v(T)}")
        A(f"s_mul_i32 {s(S_T1)}, {s(S_W)}, {448*1024}")
        A(f"s_add_u32 {s(S_T1)}, {s(S_T1)}, {s(S_T0)}")
        A(f"s_lshl_b32 {s(S_T0)}, {s(S_R4)}, 16")
        A(f"s_add_u32 {s(S_T1)}, {s(S_T1)}, {s(S_T0)}")
        A(f"v_add_u32 {v(V_WD)}, {s(S_T1)}, {v(T+2)}")
        A(f"v_lshlrev_b32 {v(T+1)}, 2, {v(V_Q)}")
        A(f"v_xor_b32 {v(T+1)}, {v(T+1)}, {v(V_I)}")
        A(f"v_lshlrev_b32 {v(T+1)}, 4, {v(T+1)}")
        A(f"v_mul_u32_u24 {v(T)}, 3584, {v(V_Q)}")
        A(f"v_add_u32 {v(T)}, {v(T)}, {v(T+1)}")
        A(f"s_lshl_b32 {s(S_T0)}, {s(S_SL)}, 8")
        A(f"s_mul_i32 {s(S_T1)}, {s(S_W)}, {32*3584}")
        A(f"s_add_u32 {s(S_T0)}, {s(S_T0)}, {s(S_T1)}")
        A(f"s_mul_i32 {s(S_T1)}, {s(S_R2)}, {128*3584}")
        A(f"s_add_u32 {s(S_T0)}, {s(S_T0)}, {s(S_T1)}")
        A(f"s_cmp_eq_u32 {s(S_IDLE)}, 1")
        A(f"s_cselect_b32 {s(S_T0)}, {OOB}, {s(S_T0)}")
        A(f"v_add_u32 {v(V_W3D)}, {s(S_T0)}, {v(T)}")
        A(f"s_mul_i32 {s(S_T0)}, {s(S_B0)}, {GBATCH}")
        A(f"s_lshl_b32 {s(S_T2)}, {s(S_SL)}, 13")
        A(f"s_add_u32 {s(S_T0)}, {s(S_T0)}, {s(S_T2)}")
        A(f"s_lshl_b32 {s(S_T2)}, {s(S_W)}, 11")
        A(f"s_add_u32 {s(S_T0)}, {s(S_T0)}, {s(S_T2)}")
        A(f"s_add_u32 {s(S_T0)}, {s(S_T0)}, {GB}")
        A(f"v_add_u32 {v(V_GS)}, {s(S_T0)}, {v(V_L16)}")
        A(f"s_lshr_b32 {s(S_T0)}, {s(S_W)}, 1")
        A(f"s_add_u32 {s(S_T0)}, {s(S_T0)}, 1")
        A(f"s_sub_u32 {s(S_T2)}, 0, {s(S_T0)}")
        A(f"s_bitcmp1_b32 {s(S_W)}, 0")
        A(f"s_cselect_b32 {s(S_T0)}, {s(S_T2)}, {s(S_T0)}")
        A(f"v_subrev_u32 {v(TF)}, {s(S_T0)}, {v(V_J)}")
        A(f"v_cmp_gt_u32 vcc, 32, {v(TF)}")
        A(f"v_lshlrev_b32 {v(TF)}, 4, {v(TF)}")
        A(f"v_lshl_add_u32 {v(TF)}, {v(V_H)}, 9, {v(TF)}")
        A(f"v_mov_b32 {v(TG)}, {OOB:#x}")
        A(f"v_cndmask_b32 {v(V_HSH)}, {v(TG)}, {v(TF)}, vcc")
        RHO, PR, LO = T, T + 1, T + 2
        A(f"v_lshrrev_b32 {v(RHO)}, 2, {v(V_I)}")
        A(f"v_bfe_u32 {v(PR)}, {v(V_L)}, 1, 1")
        A(f"v_and_b32 {v(LO)}, 1, {v(V_L)}")
        A(f"v_and_b32 {v(T+3)}, 1, {v(V_Q)}")
        A(f"v_lshl_add_u32 {v(T+3)}, {v(T+3)}, 1, {v(PR)}")
        A(f"s_lshl_b32 {s(S_T0)}, {s(S_W)}, 2")
        A(f"v_add_u32 {v(TE)}, {s(S_T0)}, {v(T+3)}")
        A(f"v_lshlrev_b32 {v(TF)}, 2, {v(RHO)}")
        A(f"v_xor_b32 {v(TE)}, {v(TE)}, {v(TF)}")
        A(f"v_lshlrev_b32 {v(TE)}, 4, {v(TE)}")
        A(f"v_lshl_add_u32 {v(TE)}, {v(LO)}, 3, {v(TE)}")
        A(f"v_lshl_add_u32 {v(TF)}, {v(V_H)}, 2, {v(RHO)}")
        A(f"v_lshl_add_u32 {v(V_TR3)}, {v(TF)}, 8, {v(TE)}")
        A(f"v_lshrrev_b32 {v(TE)}, 1, {v(RHO)}")
        A(f"v_lshl_add_u32 {v(TE)}, {v(TE)}, 2, {v(T+3)}")
        A(f"v_lshlrev_b32 {v(TE)}, 4, {v(TE)}")
        A(f"v_lshl_add_u32 {v(TE)}, {v(LO)}, 3, {v(TE)}")
        A(f"s_lshl_b32 {s(S_T0)}, {s(S_W)}, 5")
        A(f"v_xor_b32 {v(TE)}, {s(S_T0)}, {v(TE)}")
        A(f"v_lshl_add_u32 {v(TE)}, {v(TF)}, 7, {v(TE)}")
        A(f"s_add_u32 {s(S_T0)}, {s(S_L16)}, {R3}")
        A(f"v_add_u32 {v(V_A0)}, {s(S_T0)}, {v(TE)}")
        A(f"v_xor_b32 {v(V_A1)}, 64, {v(V_A0)}")
        S1A, S2A = SCOL, SCOL + 1
        A(f"v_and_b32 {v(TE)}, 1, {v(V_Q)}")
        A(f"v_lshlrev_b32 {v(TE)}, 1, {v(TE)}")
        A(f"v_lshrrev_b32 {v(TF)}, 1, {v(RHO)}")
        A(f"v_add_u32 {v(TE)}, {v(TE)}, {v(TF)}")
        A(f"v_lshlrev_b32 {v(TE)}, 1, {v(TE)}")
        A(f"s_lshl_b32 {s(S_T0)}, {s(S_W)}, 1")
        A(f"v_add_u32 {v(TG)}, {s(S_T0)}, {v(PR)}")
        A(f"v_xor_b32 {v(TE)}, {v(TE)}, {v(TG)}")
        A(f"v_lshlrev_b32 {v(TE)}, 4, {v(TE)}")
        A(f"v_lshl_add_u32 {v(TE)}, {v(LO)}, 3, {v(TE)}")
        A(f"v_lshl_add_u32 {v(TH)}, {v(V_Q)}, 3, {v(RHO)}")
        A(f"v_lshl_add_u32 {v(S1A)}, {v(TH)}, 7, {v(TE)}")
        A(f"v_add_u32 {v(S1A)}, {R1}, {v(S1A)}")
        A(f"v_lshrrev_b32 {v(TH)}, 1, {v(V_Q)}")
        A(f"v_lshlrev_b32 {v(TH)}, 4, {v(TH)}")
        A(f"v_and_b32 {v(TF)}, 1, {v(V_Q)}")
        A(f"v_lshl_add_u32 {v(TH)}, {v(TF)}, 2, {v(TH)}")
        A(f"v_add_u32 {v(TH)}, {v(TH)}, {v(RHO)}")
        A(f"v_lshl_add_u32 {v(S2A)}, {v(TH)}, 7, {v(TE)}")
        A(f"v_add_u32 {v(S2A)}, {R3}, {v(S2A)}")
        XB0, XB1, XS0, XS1 = SCOL + 2, SCOL + 3, SCOL + 4, SCOL + 5
        A(f"v_bfe_u32 {v(TE)}, {v(V_L)}, 1, 3")
        A(f"v_xor_b32 {v(TE)}, {v(TE)}, {v(V_Q)}")
        A(f"v_lshlrev_b32 {v(TE)}, 4, {v(TE)}")
        A(f"v_and_b32 {v(TF)}, 7, {v(V_L)}")
        A(f"v_lshl_add_u32 {v(TE)}, {v(TF)}, 7, {v(TE)}")
        A(f"v_bfe_u32 {v(TF)}, {v(V_L)}, 3, 1")
        A(f"v_lshl_add_u32 {v(XB0)}, {v(TF)}, 13, {v(TE)}")
        A(f"v_xor_b32 {v(XB1)}, 64, {v(XB0)}")
        A(f"s_lshl_b32 {s(S_T0)}, {s(S_W)}, 11")
        A(f"v_add_u32 {v(XS0)}, {s(S_T0)}, {v(XB0)}")
        A(f"v_add_u32 {v(XS1)}, {s(S_T0)}, {v(XB1)}")
        if o["rot"]:
            A(f"s_lshl_b32 {s(S_T0)}, {s(S_A)}, 11")
            A(f"v_xor_b32 {v(XB0)}, {s(S_T0)}, {v(XB0)}")
            A(f"v_xor_b32 {v(XB1)}, {s(S_T0)}, {v(XB1)}")
        HBK = SCOL + 12
        A(f"v_lshrrev_b32 {v(TE)}, 1, {v(V_Q)}")
        A(f"v_lshlrev_b32 {v(TE)}, 10, {v(TE)}")
        A(f"v_and_b32 {v(TF)}, 1, {v(V_Q)}")
        A(f"v_lshl_add_u32 {v(TE)}, {v(TF)}, 9, {v(TE)}")
        A(f"v_lshl_add_u32 {v(TE)}, {v(V_I)}, 4, {v(TE)}")
        for k in range(4):
            A(f"s_xor_b32 {s(S_T0)}, {s(S_R2)}, {k}")
            A(f"s_lshl_b32 {s(S_T0)}, {s(S_T0)}, 11")
            A(f"v_add_u32 {v(HBK+k)}, {s(S_T0)}, {v(TE)}")
        c = (2.0 / 3.141592653589793) ** 0.5
        k1 = -2.0 * c * 1.4426950408889634
        k2 = k1 * 0.044715
        A(f"s_mov_b32 {s(S_K2)}, {f2u(k2):#x}")
        A(f"s_mov_b32 {s(S_K2+1)}, {f2u(k2):#x}")
        A(f"v_mov_b32 {v(V_K1)}, {f2u(k1):#x}")
        A(f"v_mov_b32 {v(V_ONES)}, 0x3f803f80")
        A(f"v_add_u32 {v(V_RED)}, {s(S_L8)}, {v(V_L16)}")
        ONES4 = SCOL + 8
        for r in range(4):
            A(f"v_mov_b32 {v(ONES4+r)}, 0x3f803f80")
        A(f"s_getreg_b32 {s(S_XCC)}, hwreg(HW_REG_XCC_ID)")
        A(f"s_and_b32 {s(S_XCC)}, {s(S_XCC)}, 15")
        VT = SCOL + 6
        if o["t_ex"]:
            A(f"v_and_b32 {v(VT)}, 7, {v(V_L)}")
            A(f"v_lshl_add_u32 {v(VT)}, {v(VT)}, 7, {s(S_FRAG)}")
            A(f"v_lshrrev_b32 {v(TF)}, 3, {v(V_L)}")
            A(f"v_lshl_add_u32 {v(VT)}, {v(TF)}, 20, {v(VT)}")
            A(f"s_lshr_b32 {s(S_T0)}, {s(S_FRAG)}, 2")
            A(f"s_add_u32 {s(S_T0)}, {s(S_T0)}, {STB - 16*128}")
            A(f"v_lshl_add_u32 {v(TF)}, {v(V_L)}, 7, {s(S_T0)}")
            A(f"v_cmp_gt_u32 vcc, 16, {v(V_L)}")
            A(f"s_lshl_b32 {s(S_T0)}, {s(S_B)}, 7")
            A(f"s_add_u32 {s(S_T0)}, {s(S_T0)}, {FL1 - 18*0x2000}")
            A(f"v_cndmask_b32 {v(VT)}, {v(TF)}, {v(VT)}, vcc")
            A(f"v_lshl_add_u32 {v(TF)}, {v(V_L)}, 13, {s(S_T0)}")
            A(f"v_cmp_gt_u32 vcc, 18, {v(V_L)}")
            A(f"s_lshl_b32 {s(S_T0)}, {s(S_PG)}, 8")
            A(f"s_add_u32 {s(S_T0)}, {s(S_T0)}, {FL3 - 20*128}")
            A(f"v_cndmask_b32 {v(VT)}, {v(TF)}, {v(VT)}, vcc")
            A(f"v_lshl_add_u32 {v(TF)}, {v(V_L)}, 7, {s(S_T0)}")
            A(f"v_cmp_gt_u32 vcc, 20, {v(V_L)}")
            A(f"v_mov_b32 {v(TG)}, {OOB:#x}")
            A("s_nop 0")
            A(f"v_cndmask_b32 {v(VT)}, {v(TF)}, {v(VT)}, vcc")
            A(f"v_cmp_gt_u32 vcc, 22, {v(V_L)}")
            A("s_nop 1")
            A(f"v_cndmask_b32 {v(VT)}, {v(TG)}, {v(VT)}, vcc")
        if o["t_ex"] and o.get("early_touch", 1):
            self.touch(VT, SRD_WS)
        self.stamp("proend")

        A.c("S1: row statistics")
        if o.get("early_w1", 1):
            A.wait_vm("x3")
            w1stage(1)
            A.wait_vm("x")
            w1stage(2)
            self.barrier()
            self.stamp("xland")
        else:
            A.wait_vm("x")
            self.barrier()
            self.stamp("xland")
            w1stage(1)
            w1stage(2)
        fr = []
        for Tt in range(2):
            for ln in range(2):
                for e in range(2):
                    r = BF + 4 * len(fr)
                    A.lds(f"ds_read_b128 {v(r,4)}, {v(XS0+e)} offset:{Tt*16384+ln*1024}", f"xs{len(fr)}")
                    fr.append((Tt, r))
        for r in (SUM, SQ, P0, P1):
            A(f"v_mov_b32 {v(r)}, 0")
        for i, (Tt, r) in enumerate(fr):
            A.wait_lg(f"xs{i}")
            sm, sq = (SUM, SQ) if Tt == 0 else (P0, P1)
            for d in range(4):
                A(f"v_dot2_f32_bf16 {v(sm)}, {v(r+d)}, {v(V_ONES)}, {v(sm)}")
                A(f"v_dot2_f32_bf16 {v(sq)}, {v(r+d)}, {v(r+d)}, {v(sq)}")
            if i == 3:
                w1stage(3)
        A(f"s_lshl_b32 {s(S_T0)}, {s(S_W)}, 8")
        A(f"s_add_u32 {s(S_T0)}, {s(S_T0)}, {PART}")
        A(f"v_lshl_add_u32 {v(BF)}, {v(V_I)}, 3, {s(S_T0)}")
        self.lane_sum([SUM, SQ, P0, P1], [TE, TF, TG, TH], True, True)
        A.lds(f"ds_write_b64 {v(BF)}, {v(SUM,2)}")
        A.lds(f"ds_write_b64 {v(BF)}, {v(P0,2)} offset:128")
        A(f"v_lshlrev_b32 {v(TE)}, 3, {v(V_I)}")
        A(f"v_add_u32 {v(TE)}, {PART}, {v(TE)}")
        A.wait_vm("epoch")
        A(f"v_readfirstlane_b32 {s(S_TAG)}, {v(V_TAG)}")
        A("s_nop 3")
        A(f"s_add_u32 {s(S_TAG)}, {s(S_TAG)}, 1")
        A(f"s_mov_b32 {s(S_TAG+1)}, {s(S_TAG)}")
        A(f"v_mov_b32 {v(V_TAG)}, {s(S_TAG)}")
        if self.force is None:
            A(f"s_lshl_b32 {s(S_T1)}, {s(S_U)}, 3")
            A(f"s_add_u32 {s(S_T0)}, {s(S_HSP)}, {s(S_T1)}")
            self.wave0_addr(TF, S_T0)
            A(f"v_mov_b32 {v(TG)}, {s(S_TAG)}")
            A(f"v_mov_b32 {v(TH)}, {s(S_XCC)}")
            A.vmem(f"buffer_store_dwordx2 {v(TG,2)}, {v(TF)}, {s(SRD_WS,4)}, 0 offen sc1", "hs")
        if o["t_ex"] and not o.get("early_touch", 1):
            self.touch(VT, SRD_WS)
        self.stamp("xstat")

        A.c("S1: GEMM")
        w2items = self.wdma_items(SRD_W2, [V_W2D], 16, S_L16, R3, S_C, 32768, "w2", xor=True)
        n_in = o["w2_s1"]
        assert n_in <= 12
        self.bgq = w2items[:n_in]
        AR, BR_ = 44, BF
        ACC0, ACC1, ACCS = ACC, ACC + 4, ACC + 8

        def s1_reads(st):
            ar = AR + 4 * (st % 3)
            br = BR_ + 8 * (st % 4)
            A.lds(f"ds_read_b64_tr_b16 {v(ar,2)}, {v(S1A)} offset:{st*4096}", f"k{st}")
            A.lds(f"ds_read_b64_tr_b16 {v(ar+2,2)}, {v(S1A)} offset:{st*4096+512}", f"k{st}")
            xb = XB0 + (st & 1)
            A.lds(f"ds_read_b128 {v(br,4)}, {v(xb)} offset:{((st>>1)&1)*1024}", f"k{st}")
            A.lds(f"ds_read_b128 {v(br+4,4)}, {v(xb)} offset:{((st>>1)&1)*1024+16384}", f"k{st}")

        def s1_mfma(st):
            ar = AR + 4 * (st % 3)
            br = BR_ + 8 * (st % 4)
            c = lambda r: "0" if st == 0 else v(r, 4)
            A(f"v_mfma_f32_16x16x32_bf16 {v(ACC0,4)}, {v(ar,4)}, {v(br,4)}, {c(ACC0)}")
            A(f"v_mfma_f32_16x16x32_bf16 {v(ACC1,4)}, {v(ar,4)}, {v(br+4,4)}, {c(ACC1)}")
            A(f"v_mfma_f32_16x16x32_bf16 {v(ACCS,4)}, {v(ar,4)}, {v(ONES4,4)}, {c(ACCS)}")
        for p in range(4):
            A.wait_vm(f"w1_{p}")
            A.wait_lg()
            self.barrier()
            if p:
                A(f"v_xor_b32 {v(XB0)}, {(p ^ (p-1))*2048}, {v(XB0)}")
                A(f"v_xor_b32 {v(XB1)}, {(p ^ (p-1))*2048}, {v(XB1)}")
            if p == 0:
                for src in range(4):
                    A.lds(f"ds_read_b64 {v(56+2*src,2)}, {v(TE)} offset:{src*256}", "pt")
                    A.lds(f"ds_read_b64 {v(104+2*src,2)}, {v(TE)} offset:{src*256+128}", "pt")
            s1_reads(4 * p)
            s1_reads(4 * p + 1)
            if p == 0:
                A.wait_lg("pt")
                for src in range(1, 4):
                    A(f"v_pk_add_f32 {v(56,2)}, {v(56,2)}, {v(56+2*src,2)}")
                    A(f"v_pk_add_f32 {v(104,2)}, {v(104,2)}, {v(104+2*src,2)}")
                self.ln_scalars(56, 57, V_R0, V_Q0, TF)
                self.ln_scalars(104, 105, V_R1, V_Q1, TF)
            for st in range(4 * p, 4 * p + 4):
                A.wait_lg(f"k{st}")
                s1_mfma(st)
                if st + 2 < 4 * p + 4:
                    s1_reads(st + 2)
                if p >= 1:
                    self.bg(1)
        self.bg_flush()
        self.stamp("s1loop")
        A(f"s_add_u32 {s(S_T0)}, {s(S_FLO)}, {FL1G if self.force is False else FL1}")
        A(f"v_mov_b32 {v(V_FS1)}, {s(S_T0)}")
        A(f"s_add_u32 {s(S_T0)}, {s(S_FLO)}, {FL2}")
        A(f"v_mov_b32 {v(V_FS2)}, {s(S_T0)}")
        A(f"s_lshl_b32 {s(S_T0)}, {s(S_PG)}, 8")
        A(f"s_lshl_b32 {s(S_T1)}, {s(S_SL)}, 4")
        A(f"s_add_u32 {s(S_T0)}, {s(S_T0)}, {s(S_T1)}")
        A(f"s_lshl_b32 {s(S_T1)}, {s(S_W)}, 2")
        A(f"s_add_u32 {s(S_T0)}, {s(S_T0)}, {s(S_T1)}")
        A(f"s_add_u32 {s(S_T0)}, {s(S_T0)}, {FL3}")
        A(f"v_mov_b32 {v(V_FS3)}, {s(S_T0)}")
        for Tt, (ac, vr) in enumerate(((ACC0, V_R0), (ACC1, V_R1))):
            for p in range(2):
                A(f"v_pk_mul_f32 {v(ac+2*p,2)}, {v(ac+2*p,2)}, {v(vr,2)} op_sel_hi:[1,0]")
        for Tt, (ac, vr) in enumerate(((ACC0, V_R0), (ACC1, V_R1))):
            for p in range(2):
                A(f"v_pk_fma_f32 {v(ac+2*p,2)}, {v(ACCS+2*p,2)}, {v(vr,2)}, {v(ac+2*p,2)} op_sel:[0,1,0] op_sel_hi:[1,1,1]")
        HP = 60
        for t in self.gelu_a(ACC, 4, BF) + self.gelu_b(ACC, 4, HP, BF, True):
            A(t)
        g1 = " sc1" if self.force is False else ""
        A.vmem(f"buffer_store_dwordx2 {v(HP,2)}, {v(V_FO)}, {s(SRD_WS,4)}, 0 offen{g1}", "hst")
        A.vmem(f"buffer_store_dwordx2 {v(HP+2,2)}, {v(V_FO)}, {s(SRD_WS,4)}, 0 offen offset:256{g1}", "hst")
        self.stamp("s1epi")
        A(f"s_lshl_b32 {s(S_T0)}, {s(S_B)}, 7")
        A(f"s_lshl_b32 {s(S_T2)}, {s(S_W)}, 5")
        A(f"s_add_u32 {s(S_T0)}, {s(S_T0)}, {s(S_T2)}")
        A(f"s_add_u32 {s(S_T0)}, {s(S_T0)}, {FL1G if self.force is False else FL1}")
        A(f"v_and_b32 {v(TE)}, 7, {v(V_L)}")
        A(f"v_lshl_add_u32 {v(TE)}, {v(TE)}, 2, {s(S_T0)}")
        A.wait_vm("hst")
        A.vmem(f"buffer_store_dword {v(V_TAG)}, {v(V_FS1)}, {s(SRD_WS,4)}, 0 offen{g1}")
        self.stamp("flag1")
        for it in w2items[n_in:]:
            it()

        A.c("park w2")
        w3all = self.w3_items()
        self.bgq = list(w3all)
        A(f"s_lshr_b32 {s(S_T0)}, {s(S_FRAG)}, 2")
        A(f"s_add_u32 {s(S_T0)}, {s(S_T0)}, {STB}")
        A(f"v_lshl_add_u32 {v(V_ST)}, {v(V_I)}, 3, {s(S_T0)}")
        A.wait_vm("w2")
        self.barrier()
        self.stamp("b2")
        w2f = lambda st, f: (lambda o_, n: v(WF + 64 + 4 * st + o_, n))
        trs = self.tr_items(w2f, [S2A], 16, 4096, 1024, 1, "w2f")

        def park_w2():
            self.bg(o["c_e"])
            for it in trs:
                it()
            A.wait_lg()
            self.barrier()

        A.c("S2")
        if self.force is None:
            self.poll1(HP, park_w2)
        else:
            self.poll(TE, TG, park_w2)
        self.stamp("poll1")
        self.lin_dma(V_HSH, 8, S_L8, R0, S_HSRC, HB, "h")
        if o["t_g"] == 2 and not o["g_sc1"]:
            A(f"v_sub_u32 {v(TF)}, {v(V_GS)}, {v(V_L16)}")
            A(f"v_mul_u32_u24 {v(TG)}, {GBATCH}, {v(V_Q)}")
            A(f"v_lshl_add_u32 {v(TG)}, {v(V_I)}, 7, {v(TG)}")
            A(f"v_add_u32 {v(TF)}, {v(TF)}, {v(TG)}")
            A(f"v_cmp_gt_u32 vcc, 32, {v(V_L)}")
            A(f"s_lshl_b32 {s(S_T0)}, {s(S_IDLE)}, 31")
            A(f"v_add_u32 {v(TF)}, {s(S_T0)}, {v(TF)}")
            A(f"v_mov_b32 {v(TG)}, {OOB:#x}")
            A(f"v_cndmask_b32 {v(TF)}, {v(TG)}, {v(TF)}, vcc")
            self.touch(TF, SRD_WS)
        self.bg(o["c_h"])
        for p in range(4):
            A(f"v_lshlrev_b32 {v(56+2*p)}, 16, {v(XRES+p)}")
            A(f"v_and_b32 {v(56+2*p+1)}, 0xffff0000, {v(XRES+p)}")
        for r in (SUM, SQ, P0, P1):
            A(f"v_mov_b32 {v(r)}, 0")
        A(f"v_add_u32 {v(TE)}, {X1B}, {v(V_FO)}")
        A.wait_vm("h")
        self.barrier()
        self.stamp("hland")

        def s2_read(i):
            st, Tt = i >> 1, i & 1
            A.lds(f"ds_read_b128 {v(BF+4*(i%8),4)}, {v(HBK+(st&3))} offset:{R0+(st>>2)*8192+Tt*256}", f"hb{i}")
        for i in range(4):
            s2_read(i)
        nb = o["c_s2"]
        done = 0
        for i in range(32):
            st, Tt = i >> 1, i & 1
            if i % 2 == 0:
                A.wait_lg(f"hb{i+1}")
            ac = ACC0 if Tt == 0 else ACC1
            c0 = "0" if st == 0 else v(ac, 4)
            A(f"v_mfma_f32_16x16x32_bf16 {v(ac,4)}, {v(WF+64+4*st,4)}, {v(BF+4*(i%8),4)}, {c0}")
            if i + 4 < 32:
                s2_read(i + 4)
            want = (i + 1) * nb // 32
            self.bg(want - done)
            done = want
        self.stamp("s2mfma")
        A.nop(8)
        for p in range(4):
            A(f"v_pk_add_f32 {v(ACC+2*p,2)}, {v(ACC+2*p,2)}, {v(56+2*p,2)}")
        for p in range(4):
            A(f"v_cvt_pk_bf16_f32 {v(X1P+p)}, {v(ACC+2*p)}, {v(ACC+2*p+1)}")
        self.publish([f"buffer_store_dwordx2 {v(X1P,2)}, {v(TE)}, {s(SRD_WS,4)}, 0 offen{{F}}",
                      f"buffer_store_dwordx2 {v(X1P+2,2)}, {v(TE)}, {s(SRD_WS,4)}, 0 offen offset:256{{F}}"], tag="x1st")
        for d in range(2):
            A(f"v_dot2_f32_bf16 {v(SUM)}, {v(X1P+d)}, {v(V_ONES)}, {v(SUM)}")
            A(f"v_dot2_f32_bf16 {v(SQ)}, {v(X1P+d)}, {v(X1P+d)}, {v(SQ)}")
            A(f"v_dot2_f32_bf16 {v(P0)}, {v(X1P+2+d)}, {v(V_ONES)}, {v(P0)}")
            A(f"v_dot2_f32_bf16 {v(P1)}, {v(X1P+2+d)}, {v(X1P+2+d)}, {v(P1)}")
        A.nop(3)
        self.lane_sum([SUM, SQ, P0, P1], [56, 57, 58, 59], True, True)
        self.publish([f"buffer_store_dwordx2 {v(SUM,2)}, {v(V_ST)}, {s(SRD_WS,4)}, 0 offen{{F}}",
                      f"buffer_store_dwordx2 {v(P0,2)}, {v(V_ST)}, {s(SRD_WS,4)}, 0 offen offset:128{{F}}"], tag="x1st")
        self.stamp("s2epi")
        A.wait_vm("x1st")
        self.publish([f"buffer_store_dword {v(V_TAG)}, {v(V_FS2)}, {s(SRD_WS,4)}, 0 offen{{F}}"])
        self.barrier()
        assert o["c_e"] + o["c_h"] + o["c_s2"] >= 8
        self.stamp("flag2")

        A.c("w3 rest")
        A(f"s_cmp_eq_u32 {s(S_IDLE)}, 1")
        A("s_cbranch_scc1 L_idle")
        self.idle_vm = list(A.vm)

        def park_chunk(c):
            A(f"v_add_u32 {v(TF)}, {R1 + c*32768}, {v(V_TR3)}")
            w3f = lambda st, f, c=c: (lambda o_, n: v(WF + 4 * (8 * c + st) + o_, n))
            its = self.tr_items(w3f, [TF], 8, 4096, 2048, 1, f"w3f{c}")
            for it in its:
                it()

        def colsum(c, nbg=0):
            k = 0
            for st in range(8 * c, 8 * c + 8):
                for d in range(4):
                    r = (SUM, SQ, P0, P1)[d]
                    A(f"v_dot2_f32_bf16 {v(r)}, {v(WF+4*st+d)}, {v(V_ONES)}, {v(r)}")
                if k < nbg:
                    self.bg(1)
                    k += 1
        A(f"s_lshl_b32 {s(S_T0)}, {s(S_B0)}, 7")
        A(f"s_add_u32 {s(S_T0)}, {s(S_T0)}, {FL2}")
        A(f"v_lshl_add_u32 {v(TE)}, {v(V_L)}, 2, {s(S_T0)}")
        self.bg(o["c_p2"])
        park_chunk(0)
        for r in (SUM, SQ, P0, P1):
            A(f"v_mov_b32 {v(r)}, 0")
        A.wait_lg()

        def pre2():
            colsum(0, o.get("c_cs", 8))
            self.stamp("prepoll2")

        A.c("S3")
        self.poll(TE, TG, pre2)
        self.bg_flush()
        self.stamp("poll2")
        self.lin_dma(V_L16, 8, S_L8, R0, S_X1SRC, X1B, "x1t0")
        A(f"s_lshr_b32 {s(S_T2)}, {s(S_W)}, 1")
        A(f"s_add_u32 {s(S_T2)}, {s(S_T2)}, {s(S_B0)}")
        A(f"s_lshl_b32 {s(S_T2)}, {s(S_T2)}, 13")
        A(f"s_add_u32 {s(S_T2)}, {s(S_T2)}, {STB}")
        A(f"s_bitcmp1_b32 {s(S_W)}, 0")
        A(f"s_cselect_b32 {s(S_T2)}, {OOB}, {s(S_T2)}")
        A(f"v_add_u32 {v(TE)}, {s(S_T2)}, {v(V_L16)}")
        A.wait_vm("c3")
        for i in range(8):
            so = "0" if i < 4 else s(S_4096)
            off = f" offset:{(i%4)*1024}" if i % 4 else ""
            A.vmem(f"buffer_load_dwordx4 {v(BF+4*i,4)}, {v(TE)}, {s(SRD_WS,4)}, {so} offen{off} sc1", "st")
        self.barrier()
        self.stamp("b4")
        self.lin_dma(V_L16, 8, S_L8, R1, S_X1SRC, X1B + 32768, "x1t1")
        A(f"s_lshl_b32 {s(S_T0)}, {s(S_PG)}, 7")
        A(f"s_add_u32 {s(S_T0)}, {s(S_T0)}, {EPO}")
        A(f"s_or_b32 {s(S_T2)}, {s(S_U)}, {s(S_W)}")
        A(f"s_cmp_eq_u32 {s(S_T2)}, 0")
        A(f"s_cselect_b32 {s(S_T0)}, {s(S_T0)}, {OOB}")
        A(f"v_mov_b32 {v(TG)}, {s(S_T0)}")
        A.vmem(f"buffer_store_dword {v(V_TAG)}, {v(TG)}, {s(SRD_WS,4)}, 0 offen sc1")
        park_chunk(1)
        A.wait_lg()
        park_chunk(2)
        colsum(1)
        A.wait_lg()
        park_chunk(3)
        colsum(2)
        A.wait_lg()
        self.barrier()
        colsum(3)
        self.stamp("colsum")
        AX = SCOL
        A.nop(2)
        A(f"v_add_f32 {v(SUM)}, {v(SUM)}, {v(SQ)}")
        A(f"v_add_f32 {v(P0)}, {v(P0)}, {v(P1)}")
        A(f"v_add_f32 {v(SUM)}, {v(SUM)}, {v(P0)}")
        self.lane_sum([SUM], [SQ], True, False)
        self.round_to(SUM, SQ, P0)
        A(f"v_sub_f32 {v(P0)}, {v(SUM)}, {v(P0)}")
        A(f"v_cvt_pk_bf16_f32 {v(AX)}, {v(SUM)}, {v(P0)}")
        A(f"v_cmp_gt_u32 vcc, 32, {v(V_L)}")
        for r in range(1, 4):
            A(f"v_mov_b32 {v(AX+r)}, 0")
        A(f"v_cndmask_b32 {v(AX)}, {v(AX+1)}, {v(AX)}, vcc")
        A.wait_vm("st")
        for i in range(1, 8):
            A(f"v_pk_add_f32 {v(BF,2)}, {v(BF,2)}, {v(BF+4*i,2)}")
            A(f"v_pk_add_f32 {v(BF+2,2)}, {v(BF+2,2)}, {v(BF+4*i+2,2)}")
        self.lane_sum([BF, BF + 1, BF + 2, BF + 3], [BF + 4, BF + 5, BF + 6, BF + 7], True, True)
        self.ln_scalars(BF, BF + 1, BF + 8, BF + 9, BF + 12, mpair=True)
        self.ln_scalars(BF + 2, BF + 3, BF + 10, BF + 11, BF + 12, mpair=True)
        A(f"s_lshr_b32 {s(S_T2)}, {s(S_W)}, 1")
        A(f"s_lshl_b32 {s(S_T2)}, {s(S_T2)}, 8")
        A(f"s_add_u32 {s(S_T2)}, {s(S_T2)}, {LNST}")
        A(f"s_bitcmp1_b32 {s(S_W)}, 0")
        A(f"s_cselect_b32 {s(S_T2)}, {LNDUMMY}, {s(S_T2)}")
        A(f"v_lshl_add_u32 {v(TE)}, {v(V_I)}, 4, {s(S_T2)}")
        A.lds(f"ds_write_b128 {v(TE)}, {v(BF+8,4)}")
        VB = SCOL + 4
        for c in range(4):
            A(f"s_add_u32 {s(S_T0)}, {s(S_R2)}, {c}")
            A(f"s_and_b32 {s(S_T0)}, {s(S_T0)}, 3")
            A(f"s_lshl_b32 {s(S_T0)}, {s(S_T0)}, 13")
            A(f"v_add_u32 {v(VB+c)}, {s(S_T0)}, {v(V_L16)}")
        A(f"s_add_u32 {s(S_T0)}, {s(S_L16)}, {R3 - R2}")
        A(f"s_sub_u32 {s(S_T0)}, {s(S_L8)}, {s(S_T0)}")
        A(f"v_add_u32 {v(V_A2)}, {s(S_T0)}, {v(V_A0)}")
        A(f"v_xor_b32 {v(V_A3)}, 64, {v(V_A2)}")
        A(f"v_lshlrev_b32 {v(TE)}, 3, {v(V_J)}")
        A(f"v_add_u32 {v(TE)}, {LNST}, {v(TE)}")
        BX0, BX1 = XRES, X1P
        for r in range(1, 4):
            A(f"v_mov_b32 {v(BX0+r)}, 0")
            A(f"v_mov_b32 {v(BX1+r)}, 0")
        NH = 7

        def w4dma(hh):
            slot = hh % 3
            lds_s, lds_c = (S_L16, R3 + slot * 8192) if slot < 2 else (S_L8, R2)

            def last():
                A(f"s_mov_b32 {s(S_OFF)}, 32768")
                A(f"s_cmp_eq_u32 {s(S_R4)}, {6-hh}")
                A(f"s_cselect_b32 {s(S_OFF)}, {(32768 - 7*65536) & 0xffffffff}, {s(S_OFF)}")
                A(f"v_add_u32 {v(V_WD)}, {s(S_OFF)}, {v(V_WD)}")
            return self.wdma_items(SRD_W4, [V_WD], 8, lds_s, lds_c, S_C, 32768, f"w4d{hh}", last=last)

        def w4park(hh):
            slot = hh % 3
            bases, off0 = ([V_A0, V_A1], slot * 8192) if slot < 2 else ([V_A2, V_A3], 0)
            w4f = lambda st, f, hh=hh: (lambda o_, n: a(8 * (4 * hh + st) + 4 * f + o_, n))
            its = self.tr_items(w4f, bases, 4, 2048, 1024, 2, f"w4f{hh}", off0=off0)
            first = its[0]
            its[0] = lambda: (A.wait_vm(f"w4d{hh}"), first())
            return its

        def after_park(hh, items):
            first = items[0]
            items[0] = lambda: (A.wait_lg(f"w4f{hh}"), first())
            return items
        q = w4dma(0) + w4dma(1) + w4dma(2)
        for hh in range(NH):
            q += w4park(hh)
            if hh + 3 < NH:
                q += after_park(hh, w4dma(hh + 3))
        self.bgq = q
        n_pre = o.get("bg_pre", 4)
        self.bg(n_pre)
        assert n_pre + o["bg_t0"] <= 16
        A.wait_vm("x1t0")
        A.wait_lg()
        self.barrier()
        self.stamp("b5")
        A.lds(f"ds_read_b32 {v(V_R0)}, {v(TE)}", "ln")
        A.lds(f"ds_read_b32 {v(BX0)}, {v(TE)} offset:4", "ln")
        A.lds(f"ds_read_b32 {v(V_R1)}, {v(TE)} offset:256", "ln")
        A.lds(f"ds_read_b32 {v(BX1)}, {v(TE)} offset:260", "ln")
        NB = 4
        BR = 224

        def tile_loop(t, base_off, bx, extra_ops, nbg):
            acc = ACC + 16 * t
            for st in range(NB):
                A.lds(f"ds_read_b128 {a(BR+4*(st%8),4)}, {v(VB+st//8)} offset:{base_off+(st%8)*1024}", f"b{st}")
            A.wait_lg("ln")
            A(f"v_mfma_f32_32x32x16_bf16 {v(acc,16)}, {v(AX,4)}, {v(bx,4)}, 0")
            done_bg = 0
            for st in range(32):
                if st % 2 == 0:
                    A.wait_lg(f"b{st+1}")
                A(f"v_mfma_f32_32x32x16_bf16 {v(acc,16)}, {v(WF+4*st,4)}, {a(BR+4*(st%8),4)}, {v(acc,16)}")
                if st + NB < 32:
                    n = st + NB
                    A.lds(f"ds_read_b128 {a(BR+4*(n%8),4)}, {v(VB+n//8)} offset:{base_off+(n%8)*1024}", f"b{n}")
                if extra_ops:
                    k = -(-len(extra_ops) // (32 - st))
                    for _ in range(k):
                        if extra_ops:
                            op = extra_ops.pop(0)
                            op() if callable(op) else A(op)
                want = (st + 1) * nbg // 32
                self.bg(want - done_bg)
                done_bg = want
        tile_loop(0, R0, BX0, [], o["bg_t0"])
        self.stamp("t0")
        A.wait_vm("x1t1")
        self.barrier()
        E0, GT = BF + 16, BF
        A.nop(10)
        for p in range(8):
            A(f"v_pk_mul_f32 {v(ACC+2*p,2)}, {v(ACC+2*p,2)}, {v(V_R0,2)} op_sel_hi:[1,0]")
        ga = self.gelu_a(ACC, 8, GT)
        for i, t in enumerate(ga):
            A(t)
            if i in (7, 15)[:o["bg_a"]]:
                self.bg(1)
        ops0 = self.gelu_b(ACC, 8, E0, GT, False)
        g0 = lambda: self.publish([
            f"buffer_store_dwordx4 {v(E0,4)}, {v(V_GS)}, {s(SRD_WS,4)}, 0 offen{{F}}",
            f"buffer_store_dwordx4 {v(E0+4,4)}, {v(V_GS)}, {s(SRD_WS,4)}, 0 offen offset:1024{{F}}"], sc1=o["g_sc1"], tag="gst")
        if not o.get("g0_late", 0):
            ops0.append(g0)
        tile_loop(1, R1, BX1, ops0, o["bg_t1"])
        self.stamp("t1")
        A(f"s_mov_b32 {s(S_T0)}, {GBATCH}")
        A.nop(11)
        E1 = BF + 24
        for p in range(8):
            A(f"v_pk_mul_f32 {v(ACC+16+2*p,2)}, {v(ACC+16+2*p,2)}, {v(V_R1,2)} op_sel_hi:[1,0]")
        e1 = self.gelu_a(ACC + 16, 8, GT) + self.gelu_b(ACC + 16, 8, E1, GT, True)
        nb = o["bg_e1"]
        for i, t in enumerate(e1):
            A(t)
            if nb and i % 8 == 7 and i < 8 * nb:
                self.bg(1)
        if o.get("g0_late", 0):
            g0()
        self.publish([
            f"buffer_store_dwordx4 {v(E1,4)}, {v(V_GS)}, {s(SRD_WS,4)}, {s(S_T0)} offen{{F}}",
            f"buffer_store_dwordx4 {v(E1+4,4)}, {v(V_GS)}, {s(SRD_WS,4)}, {s(S_T0)} offen offset:1024{{F}}"], sc1=o["g_sc1"], tag="gst")
        self.stamp("epi1")
        A(f"s_add_u32 {s(S_T0)}, {s(S_FRAG)}, {X1B}")
        A(f"v_add_u32 {v(TE)}, {s(S_T0)}, {v(V_L16)}")
        A.vmem(f"buffer_load_dwordx4 {v(X1P,4)}, {v(TE)}, {s(SRD_WS,4)}, 0 offen sc1", "res")
        A.wait_vm("gst")
        self.publish([f"buffer_store_dword {v(V_TAG)}, {v(V_FS3)}, {s(SRD_WS,4)}, 0 offen{{F}}"], sc1=o["g_sc1"])
        self.stamp("flag3")

        A.c("w4 rest")
        self.bg_flush()
        A("L_join:")
        A(f"s_mul_i32 {s(S_T0)}, {s(S_B)}, {GBATCH}")
        A(f"s_mul_i32 {s(S_T2)}, {s(S_W)}, {28*1024}")
        A(f"s_add_u32 {s(S_T0)}, {s(S_T0)}, {s(S_T2)}")
        A(f"s_add_u32 {s(S_T0)}, {s(S_T0)}, {GB}")
        A(f"v_add_u32 {v(TF)}, {s(S_T0)}, {v(V_L16)}")
        A.wait_vm("res")
        for p in range(4):
            A(f"v_lshlrev_b32 {v(SCOL+2*p)}, 16, {v(X1P+p)}")
            A(f"v_and_b32 {v(SCOL+2*p+1)}, 0xffff0000, {v(X1P+p)}")
        A.wait_lg()
        self.stamp("w4done")

        A.c("S4")
        A(f"s_lshl_b32 {s(S_T0)}, {s(S_PG)}, 8")
        A(f"s_mul_i32 {s(S_T2)}, {s(S_W)}, 56")
        A(f"s_add_u32 {s(S_T0)}, {s(S_T0)}, {s(S_T2)}")
        A(f"s_add_u32 {s(S_T0)}, {s(S_T0)}, {FL3}")
        A(f"v_min_u32 {v(TE)}, 13, {v(V_L)}")
        A(f"v_lshl_add_u32 {v(TE)}, {v(TE)}, 2, {s(S_T0)}")
        self.poll(TE, TG)
        self.stamp("poll3")
        def gload(i):
            if i == 0:
                A(f"s_lshl_b32 {s(S_OFF)}, {s(S_R4)}, 12")
            elif i % 4 == 0:
                A(f"s_add_u32 {s(S_OFF)}, {s(S_OFF)}, 4096")
                A(f"s_cmp_eq_u32 {s(S_OFF)}, 28672")
                A(f"s_cselect_b32 {s(S_OFF)}, 0, {s(S_OFF)}")
            off = f" offset:{(i%4)*1024}" if i % 4 else ""
            A.vmem(f"buffer_load_dwordx4 {v(WF+4*i,4)}, {v(TF)}, {s(SRD_WS,4)}, {s(S_OFF)} offen{off} sc1", f"g{i}")
        NG = o.get("g_ahead", 10)
        for i in range(NG):
            gload(i)
        VR = V_T
        for k in (1, 2, 3):
            A(f"v_xor_b32 {v(VR+k-1)}, {k*8192}, {v(V_RED)}")
        for st in range(28):
            A.wait_vm(f"g{st}")
            c0 = "0" if st == 0 else v(ACC, 16)
            c1 = "0" if st == 0 else v(ACC + 16, 16)
            A(f"v_mfma_f32_32x32x16_bf16 {v(ACC,16)}, {a(8*st,4)}, {v(WF+4*st,4)}, {c0}")
            if st + NG < 28:
                gload(st + NG)
            A(f"v_mfma_f32_32x32x16_bf16 {v(ACC+16,16)}, {a(8*st+4,4)}, {v(WF+4*st,4)}, {c1}")
        self.stamp("s4mfma")
        A.nop(12)
        for k in (1, 2, 3):
            A.lds(f"ds_write_b128 {v(V_RED)}, {v(ACC+8*k,4)} offset:{k*2048}")
            A.lds(f"ds_write_b128 {v(V_RED)}, {v(ACC+8*k+4,4)} offset:{k*2048+1024}")
        A.wait_lg()
        self.barrier()
        self.stamp("s4bar")
        for k in (1, 2, 3):
            A.lds(f"ds_read_b128 {v(BF+8*(k-1),4)}, {v(VR+k-1)} offset:{k*2048}", f"red{k}")
            A.lds(f"ds_read_b128 {v(BF+8*(k-1)+4,4)}, {v(VR+k-1)} offset:{k*2048+1024}", f"red{k}")
        for p in range(4):
            A(f"v_pk_add_f32 {v(ACC+2*p,2)}, {v(ACC+2*p,2)}, {v(SCOL+2*p,2)}")
        for k in (1, 2, 3):
            A.wait_lg(f"red{k}")
            for p in range(4):
                A(f"v_pk_add_f32 {v(ACC+2*p,2)}, {v(ACC+2*p,2)}, {v(BF+8*(k-1)+2*p,2)}")
        for p in range(4):
            A(f"v_cvt_pk_bf16_f32 {v(BF+24+p)}, {v(ACC+2*p)}, {v(ACC+2*p+1)}")
        A.vmem(f"buffer_store_dwordx2 {v(BF+24,2)}, {v(V_RO)}, {s(SRD_O,4)}, 0 offen")
        A.vmem(f"buffer_store_dwordx2 {v(BF+26,2)}, {v(V_RO)}, {s(SRD_O,4)}, 0 offen offset:16")
        self.stamp("end")
        if self.profile:
            A("s_memtime s[28:29]")
            A("s_waitcnt lgkmcnt(0)")
            A("s_sub_u32 s28, s28, s84")
            A(f"s_lshl_b32 {s(S_T0)}, s2, 2")
            A(f"s_add_u32 {s(S_T0)}, {s(S_T0)}, {s(S_W)}")
            A(f"s_lshl_b32 {s(S_T0)}, {s(S_T0)}, 7")
            A(f"s_add_u32 {s(S_T0)}, {s(S_T0)}, {PROF}")
            A(f"v_mov_b32 {v(V_T)}, {s(S_T0)}")
            for i in range(self.nstamp):
                A(f"v_mov_b32 {v(V_T+1)}, {s(S_STAMP+2*i)}")
                A(f"buffer_store_dword {v(V_T+1)}, {v(V_T)}, {s(SRD_WS,4)}, 0 offen offset:{4*i}")
            A(f"v_mov_b32 {v(V_T+1)}, s28")
            A(f"buffer_store_dword {v(V_T+1)}, {v(V_T)}, {s(SRD_WS,4)}, 0 offen offset:{4*31}")
        A("L_end:")
        A("s_endpgm")
        self.idle_block()
        for b in self.slow_blocks:
            A(b)
        A("L_code_end:")
        A("s_endpgm")

    def w3_items(self):
        A = self.A
        items = []
        for c in range(4):
            for i in range(8):
                def item(c=c, i=i):
                    k = i % 4
                    if k == 0:
                        A(f"s_add_u32 m0, {s(S_L8)}, {R1 + c*32768 + 1024*i}")
                        if c == 0 and i == 0:
                            A("s_nop 0")
                        elif i == 4:
                            A(f"v_add_u32 {v(V_W3D)}, {16*3584}, {v(V_W3D)}")
                        else:
                            A(f"s_mov_b32 {s(S_OFF)}, {(128-16)*3584}")
                            A(f"s_cmp_eq_u32 {s(S_R2)}, {4-c}")
                            A(f"s_cselect_b32 {s(S_OFF)}, {((128-16-512)*3584) & 0xffffffff}, {s(S_OFF)}")
                            A(f"v_add_u32 {v(V_W3D)}, {s(S_OFF)}, {v(V_W3D)}")
                    so = "0" if k == 0 else s(S_D + k - 1)
                    off = f" offset:{1024*k}" if k else ""
                    A.vmem(f"buffer_load_dwordx4 {v(V_W3D)}, {s(SRD_W3,4)}, {so} offen{off} lds", f"c{c}")
                items.append(item)
        return items

    def idle_block(self):
        A = self.A
        o = self.o
        A.vm = list(self.idle_vm)
        A.lg = []
        A("L_idle:")
        if o["t_idle"]:
            A(f"s_lshl_b32 {s(S_T0)}, {s(S_PG)}, 1")
            A(f"s_lshr_b32 {s(S_T1)}, {s(S_U)}, 3")
            A(f"s_add_u32 {s(S_T0)}, {s(S_T0)}, {s(S_T1)}")
            A(f"s_lshl_b32 {s(S_T0)}, {s(S_T0)}, 2")
            A(f"s_add_u32 {s(S_T0)}, {s(S_T0)}, {s(S_W)}")
            A(f"s_mul_i32 {s(S_T0)}, {s(S_T0)}, {112*128}")
            A(f"v_lshl_add_u32 {v(TG)}, {v(V_L)}, 7, {s(S_T0)}")
            A(f"v_cmp_gt_u32 vcc, 56, {v(V_L)}")
            A(f"v_mov_b32 {v(TH)}, {OOB:#x}")
            A(f"s_mov_b32 {s(S_T1)}, {56*128}")
            A(f"v_cndmask_b32 {v(TG)}, {v(TH)}, {v(TG)}, vcc")
            self.touch(TG, SRD_W4)
            self.touch(TG, SRD_W4, s(S_T1))
        if o["t_g"] == 1 and not o["g_sc1"]:
            A(f"s_lshr_b32 {s(S_T0)}, {s(S_U)}, 3")
            A(f"s_lshl_b32 {s(S_T0)}, {s(S_T0)}, 2")
            A(f"s_add_u32 {s(S_T0)}, {s(S_T0)}, {s(S_W)}")
            A(f"s_mul_i32 {s(S_T0)}, {s(S_T0)}, {224*128}")
            A(f"s_mul_i32 {s(S_T1)}, {s(S_B0)}, {GBATCH}")
            A(f"s_add_u32 {s(S_T0)}, {s(S_T0)}, {s(S_T1)}")
            A(f"s_add_u32 {s(S_T0)}, {s(S_T0)}, {GB}")
            A(f"v_lshl_add_u32 {v(TF)}, {v(V_L)}, 7, {s(S_T0)}")
            A(f"v_cmp_gt_u32 vcc, 56, {v(V_L)}")
            A(f"v_mov_b32 {v(TH)}, {OOB:#x}")
            A("s_nop 0")
            A(f"v_cndmask_b32 {v(TF)}, {v(TH)}, {v(TF)}, vcc")
            for i in range(4):
                A(f"s_mov_b32 {s(S_T1)}, {i*56*128}")
                self.touch(TF, SRD_WS, s(S_T1))
        A(f"s_mul_i32 {s(S_T4)}, {s(S_W)}, 40960")
        A(f"s_add_u32 {s(S_T0)}, {s(S_L16)}, {R3}")
        A(f"s_sub_u32 {s(S_T0)}, {s(S_T4)}, {s(S_T0)}")
        A(f"v_add_u32 {v(V_A2)}, {s(S_T0)}, {v(V_A0)}")
        A(f"v_xor_b32 {v(V_A3)}, 64, {v(V_A2)}")

        def dma(hh):
            def last():
                A(f"s_mov_b32 {s(S_OFF)}, 32768")
                A(f"s_cmp_eq_u32 {s(S_R4)}, {6-hh}")
                A(f"s_cselect_b32 {s(S_OFF)}, {(32768 - 7*65536) & 0xffffffff}, {s(S_OFF)}")
                A(f"v_add_u32 {v(V_WD)}, {s(S_OFF)}, {v(V_WD)}")
            for it in self.wdma_items(SRD_W4, [V_WD], 8, S_T4, (hh % 5) * 8192, S_C, 32768, f"i4d{hh}", last=last):
                it()

        def park(hh):
            w4f = lambda st, f, hh=hh: (lambda o_, n: a(8 * (4 * hh + st) + 4 * f + o_, n))
            A.wait_vm(f"i4d{hh}")
            for it in self.tr_items(w4f, [V_A2, V_A3], 4, 2048, 1024, 2, f"i4f{hh}", off0=(hh % 5) * 8192):
                it()
        for hh in range(5):
            dma(hh)
        park(0)
        park(1)
        A.wait_lg()
        dma(5)
        dma(6)
        A(f"s_add_u32 {s(S_T0)}, {s(S_FRAG)}, {X1B}")
        A(f"v_add_u32 {v(TE)}, {s(S_T0)}, {v(V_L16)}")
        A.vmem(f"buffer_load_dwordx4 {v(X1P,4)}, {v(TE)}, {s(SRD_WS,4)}, 0 offen sc1", "res")
        for hh in range(2, 7):
            park(hh)
        A("s_waitcnt vmcnt(0) lgkmcnt(0)")
        A("s_branch L_join")

    def poll1(self, HP, between=None):
        A = self.A
        L, Ld, Ln, Lg = A.label("L_p1"), A.label("L_p1d"), A.label("L_p1n"), A.label("L_p1g")
        A(f"v_lshl_add_u32 {v(TH)}, {v(V_I)}, 3, {s(S_HSP)}")
        A.vmem(f"buffer_load_dword {v(TG)}, {v(TE)}, {s(SRD_WS,4)}, 0 offen sc1", "poll")
        A.vmem(f"buffer_load_dwordx2 {v(SUM,2)}, {v(TH)}, {s(SRD_WS,4)}, 0 offen sc1", "poll")
        if between:
            between()
        A(f"s_mov_b32 {s(S_MODE)}, 1")
        A(f"s_mov_b32 {s(S_CNT)}, 0x8000")
        A.wait_vm("poll")
        A(f"v_cmp_ne_u32 vcc, {s(S_TAG)}, {v(SUM)}")
        A(f"v_cmp_ne_u32 {s(S_EX,2)}, {s(S_TAG)}, {v(TG)}")
        A(f"v_cmp_ne_u32 {s(16,2)}, {s(S_XCC)}, {v(SQ)}")
        A("s_nop 3")
        A(f"s_or_b64 vcc, vcc, {s(S_EX,2)}")
        A(f"s_or_b64 vcc, vcc, {s(16,2)}")
        A(f"s_cbranch_scc1 {L}")
        A(f"{Ld}:")
        blk = f"""{L}:
s_mov_b32 {s(S_MODE)}, 0
buffer_load_dword {v(TG)}, {v(TE)}, {s(SRD_WS,4)}, 0 offen sc1
buffer_load_dwordx2 {v(SUM,2)}, {v(TH)}, {s(SRD_WS,4)}, 0 offen sc1
s_sub_u32 {s(S_CNT)}, {s(S_CNT)}, 1
s_cmp_eq_u32 {s(S_CNT)}, 0
s_cbranch_scc1 {Ld}
s_waitcnt vmcnt(0)
v_cmp_ne_u32 vcc, {s(S_TAG)}, {v(SUM)}
v_cmp_ne_u32 {s(S_EX,2)}, {s(S_TAG)}, {v(TG)}
s_nop 4
s_cmp_eq_u64 vcc, 0
s_cbranch_scc0 {L}
v_cmp_ne_u32 vcc, {s(S_XCC)}, {v(SQ)}
s_nop 4
s_cmp_eq_u64 vcc, 0
s_cbranch_scc0 {Ln}
s_cmp_eq_u64 {s(S_EX,2)}, 0
s_cbranch_scc0 {L}
s_mov_b32 {s(S_MODE)}, 1
s_branch {Ld}
{Ln}:
buffer_store_dwordx2 {v(HP,2)}, {v(V_FO)}, {s(SRD_WS,4)}, 0 offen sc1
buffer_store_dwordx2 {v(HP+2,2)}, {v(V_FO)}, {s(SRD_WS,4)}, 0 offen offset:256 sc1
v_add_u32 {v(TG)}, {FL1G-FL1}, {v(V_FS1)}
s_waitcnt vmcnt(0)
buffer_store_dword {v(V_TAG)}, {v(TG)}, {s(SRD_WS,4)}, 0 offen sc1
v_add_u32 {v(TE)}, {FL1G-FL1}, {v(TE)}
{Lg}:
buffer_load_dword {v(TG)}, {v(TE)}, {s(SRD_WS,4)}, 0 offen sc1
s_sub_u32 {s(S_CNT)}, {s(S_CNT)}, 1
s_cmp_eq_u32 {s(S_CNT)}, 0
s_cbranch_scc1 {Ld}
s_waitcnt vmcnt(0)
v_cmp_ne_u32 vcc, {s(S_TAG)}, {v(TG)}
s_nop 4
s_cmp_eq_u64 vcc, 0
s_cbranch_scc0 {Lg}
s_branch {Ld}"""
        self.slow_blocks.append(blk)


HEADER = """; Kernarg layout: x, w1, w2, w3, w4, out, debug, ws (8 pointers)
; @launch grid=(256,1,1) block=(256,1,1) lds=163840
.amdgcn_target "amdgcn-amd-amdhsa--gfx950"
.text
.globl {name}_kernel
.p2align 8
.type {name}_kernel,@function
{name}_kernel:
"""
FOOTER = """.section .rodata,"a"
.p2align 6
.amdhsa_kernel {name}_kernel
  .amdhsa_next_free_vgpr 512
  .amdhsa_next_free_sgpr 102
  .amdhsa_accum_offset 256
  .amdhsa_group_segment_fixed_size 0
  .amdhsa_kernarg_size 64
  .amdhsa_user_sgpr_count 2
  .amdhsa_user_sgpr_kernarg_segment_ptr 1
  .amdhsa_system_sgpr_workgroup_id_x 1
  .amdhsa_float_denorm_mode_32 3
.end_amdhsa_kernel
"""


def generate(**kw):
    g = Gen(**kw)
    g.build()
    return HEADER.format(name=NAME) + g.A.text() + FOOTER.format(name=NAME), g


if __name__ == "__main__":
    import argparse
    ap = argparse.ArgumentParser()
    ap.add_argument("-o", default="cdna_kernels/" + NAME + ".s")
    ap.add_argument("--mode", default="auto", choices=["auto", "local", "global"])
    ap.add_argument("--profile", action="store_true")
    ap.add_argument("--opt", action="append", default=[])
    args = ap.parse_args()
    opts = {}
    for t in args.opt:
        k, val = t.split("=")
        opts[k] = val.split(",") if k == "stamps" else int(val)
    txt, g = generate(local={"auto": None, "local": True, "global": False}[args.mode], profile=args.profile, opts=opts)
    open(args.o, "w").write(txt)
    print("instructions:", g.A.ninstr, "stamps:", g.nstamp, ",".join(g.stamp_names))
    if args.profile:
        open(args.o, "a").write("; STAMPS " + ",".join(g.stamp_names) + "\n")
```

```python
import sys
import os
import struct
sys.path.insert(0, os.path.dirname(os.path.abspath(__file__)))
from asmlib import Asm, v, a, s

NAME = "standalone__mixer_s_mlp__sampling"

HB = 0
X1B = 1 << 20
GB = 2 << 20
GBATCH = 112 * 1024
STB = 6 << 20
FL = 7 << 20
FL1 = FL
FL1G = FL + 0x1000
FL2 = FL + 0x2000
FL3 = FL + 0x3000
EPO = FL + 0x4000
HS = FL + 0x5000
PROF = FL + 0x10000
WS_SIZE = 8 << 20
OOB = 0x80000000

R0, R1, R2, R3, R4 = 0, 32768, 65536, 98304, 131072
PART = R4 + 32768 - 1024
LNST = R3 + 3 * 16384 + 8192
LNDUMMY = LNST + 1024

S_T0, S_T1 = 3, 4
S_J, S_M, S_B, S_U, S_B0, S_PG, S_W = 5, 6, 7, 8, 9, 10, 11
S_TAG = 12
S_T2, S_T3 = 14, 15
SRD_X, SRD_W1, SRD_W2, SRD_W3, SRD_W4, SRD_WS, SRD_O = 16, 20, 24, 32, 36, 40, 44
S_KA = 48
S_L8, S_L16, S_L4 = 48, 49, 50
S_C = 51
S_D = 54
S_R4 = 57
S_EX = 58
S_A, S_R2, S_MODE, S_XCC = 60, 61, 62, 63
S_OFF, S_CNT, S_4096, S_T4 = 64, 65, 66, 67
S_K2 = 68
S_PC = 70
S_FRAG, S_HSRC, S_X1SRC, S_FLO, S_SL, S_IDLE, S_HSP, S_GW, S_HSV = 72, 73, 74, 75, 76, 77, 78, 79, 80
S_HP = 82
S_STAMP = 86

V_L, V_H, V_J, V_L16 = 0, 1, 2, 3
V_WD = 4
V_W2D = 5
V_W1D = 6
V_XD = 8
V_Q, V_I = 9, 10
V_W3D, V_TR3 = 11, 12
V_RED = 13
V_K1 = 14
V_T = 16
SUM, SQ, P0, P1 = 20, 21, 22, 23
TE, TF, TG, TH = 24, 25, 26, 27
V_GS, V_HSH, V_FO, V_RO = 28, 29, 30, 31
ACC = 32
SCOL = 64
BF = 80
X1P = 112
XRES = 116
V_A0, V_A1 = 120, 121
V_R0, V_Q0, V_R1, V_Q1 = 122, 123, 124, 125
V_ONES = 126
V_TAG = 127
WF = 128
JUNK = 15
V_FS1, V_FS2, V_FS3 = 8, 6, 7
V_A2, V_A3 = 18, 19
V_ST = 5


def f2u(x):
    return struct.unpack("<I", struct.pack("<f", x))[0]


class Gen:
    def __init__(self, local=None, profile=False, opts=None):
        self.A = Asm()
        self.force = local
        self.profile = profile
        self.nstamp = 0
        self.stamp_names = []
        self.slow_blocks = []
        self.bgq = []
        self.o = dict(codepf=1, t_ex=1, g_sc1=0, t_g=1, t_w2=1, mimic_ln=0, rot=1, xrot=1, t_idle=0,
                      w2_s1=8, s1_stages=1, w2_st=2,
                      c_e=0,
                      c_h=0,
                      c_s2=16,
                      c_p2=6,
                      bg_t0=16, bg_a=2, bg_t1=24, bg_e1=4)
        if opts:
            self.o.update(opts)

    def stamp(self, name="?"):
        if not self.profile:
            return
        want = self.o.get("stamps")
        if want is not None and name not in want:
            return
        A = self.A
        r = S_STAMP + 2 * self.nstamp
        assert r + 1 <= 101, "too many stamps"
        self.nstamp += 1
        self.stamp_names.append(name)
        A(f"s_memrealtime {s(r,2)}")
        A.force_lg0 = True

    def bg(self, n=1):
        for _ in range(n):
            if self.bgq:
                self.bgq.pop(0)()

    def bg_flush(self):
        self.bg(len(self.bgq))

    def wdma_items(self, srd, vaddrs, n, lds_sgpr, lds_const, consts, group_step, tag, xor=False, last=None):
        A = self.A
        items = []
        for i in range(n):
            def item(i=i):
                k = i % 4
                if k == 0:
                    A(f"s_add_u32 m0, {s(lds_sgpr)}, {lds_const + 1024*i}")
                    if i == 0:
                        A("s_nop 0")
                    else:
                        g = i // 4
                        for va in sorted(set(vaddrs)):
                            if xor:
                                A(f"v_xor_b32 {v(va)}, {(g ^ (g-1))*group_step}, {v(va)}")
                            else:
                                A(f"v_add_u32 {v(va)}, {group_step}, {v(va)}")
                so = "0" if k == 0 else s(consts + k - 1)
                off = f" offset:{1024*k}" if k else ""
                A.vmem(f"buffer_load_dwordx4 {v(vaddrs[i % len(vaddrs)])}, {s(srd,4)}, {so} offen{off} lds", tag)
                if i == n - 1:
                    if last:
                        last()
                    elif not xor:
                        for va in sorted(set(vaddrs)):
                            A(f"v_add_u32 {v(va)}, {group_step}, {v(va)}")
            items.append(item)
        return items

    def lin_dma(self, vaddr, n, lds_sgpr, lds_const, g_sgpr, g_const, tag):
        A = self.A
        for i in range(n):
            if i % 4 == 0:
                A(f"s_add_u32 m0, {s(lds_sgpr)}, {lds_const + 1024*i}")
                A(f"s_add_u32 {s(S_OFF)}, {s(g_sgpr)}, {g_const + 1024*i}")
            off = f" offset:{1024*(i%4)}" if i % 4 else ""
            A.vmem(f"buffer_load_dwordx4 {v(vaddr)}, {s(SRD_WS,4)}, {s(S_OFF)} offen{off} sc1 lds", tag)

    def tr_items(self, dst_fn, base_v, nsteps, step_bytes, second, tiles, tag, off0=0):
        A = self.A
        items = []
        for st in range(nsteps):
            for f in range(tiles):
                def item(st=st, f=f):
                    reg = dst_fn(st, f)
                    bv = base_v[f]
                    A.lds(f"ds_read_b64_tr_b16 {reg(0,2)}, {v(bv)} offset:{off0+st*step_bytes}", tag)
                    A.lds(f"ds_read_b64_tr_b16 {reg(2,2)}, {v(bv)} offset:{off0+st*step_bytes+second}", tag)
                items.append(item)
        return items

    def publish(self, stores, sc1=False, tag=None):
        A = self.A
        if sc1 or self.force is False:
            for t in stores:
                A.vmem(t.replace("{F}", " sc1"), tag)
            return
        if self.force is True:
            for t in stores:
                A.vmem(t.replace("{F}", ""), tag)
            return
        Ls, Lb = A.label("L_slow"), A.label("L_back")
        A(f"s_cmp_eq_u32 {s(S_MODE)}, 1")
        A(f"s_cbranch_scc0 {Ls}")
        for t in stores:
            A.vmem(t.replace("{F}", ""), tag)
        A(f"{Lb}:")
        blk = [f"{Ls}:"] + [t.replace("{F}", " sc1") for t in stores] + [f"s_branch {Lb}"]
        self.slow_blocks.append("\n".join(blk))

    def poll(self, vaddr, vtmp, between=None):
        A = self.A
        L = A.label("L_poll")
        Ld = A.label("L_polld")
        A.vmem(f"buffer_load_dword {v(vtmp)}, {v(vaddr)}, {s(SRD_WS,4)}, 0 offen sc1", "poll")
        if between:
            between()
        A.wait_vm("poll")
        A(f"v_cmp_ne_u32 vcc, {s(S_TAG)}, {v(vtmp)}")
        A(f"s_mov_b32 {s(S_CNT)}, 0x8000")
        A("s_nop 3")
        A("s_cmp_eq_u64 vcc, 0")
        A(f"s_cbranch_scc0 {L}")
        A(f"{Ld}:")
        blk = f"""{L}:
buffer_load_dword {v(vtmp)}, {v(vaddr)}, {s(SRD_WS,4)}, 0 offen sc1
s_sub_u32 {s(S_CNT)}, {s(S_CNT)}, 1
s_cmp_eq_u32 {s(S_CNT)}, 0
s_cbranch_scc1 {Ld}
s_waitcnt vmcnt(0)
v_cmp_ne_u32 vcc, {s(S_TAG)}, {v(vtmp)}
s_nop 4
s_cmp_eq_u64 vcc, 0
s_cbranch_scc0 {L}
s_branch {Ld}"""
        self.slow_blocks.append(blk)

    def barrier(self):
        self.A("s_barrier")

    def gelu_a(self, src, n, t0):
        ops = []
        for p in range(n):
            ops.append(f"v_pk_mul_f32 {v(t0+2*p,2)}, {v(src+2*p,2)}, {v(src+2*p,2)}")
        for p in range(n):
            ops.append(f"v_pk_fma_f32 {v(t0+2*p,2)}, {v(t0+2*p,2)}, {s(S_K2,2)}, {v(V_K1,2)} op_sel_hi:[1,1,0]")
        for p in range(n):
            ops.append(f"v_pk_mul_f32 {v(t0+2*p,2)}, {v(t0+2*p,2)}, {v(src+2*p,2)}")
        return ops

    def gelu_b(self, src, n, dst, t0, packed):
        ops = []
        for e in range(2 * n):
            ops.append(f"v_exp_f32 {v(t0+e)}, {v(t0+e)}")
        if packed:
            for p in range(n):
                ops.append(f"v_pk_add_f32 {v(t0+2*p,2)}, {v(t0+2*p,2)}, 1.0 op_sel_hi:[1,0]")
        else:
            for e in range(2 * n):
                ops.append(f"v_add_f32 {v(t0+e)}, 1.0, {v(t0+e)}")
        for e in range(2 * n):
            ops.append(f"v_rcp_f32 {v(t0+e)}, {v(t0+e)}")
        if packed:
            for p in range(n):
                ops.append(f"v_pk_mul_f32 {v(t0+2*p,2)}, {v(t0+2*p,2)}, {v(src+2*p,2)}")
        else:
            for e in range(2 * n):
                ops.append(f"v_mul_f32 {v(t0+e)}, {v(t0+e)}, {v(src+e)}")
        for p in range(n):
            ops.append(f"v_cvt_pk_bf16_f32 {v(dst+p)}, {v(t0+2*p)}, {v(t0+2*p+1)}")
        return ops

    def round_bf16(self, reg, tmp):
        A = self.A
        A(f"v_cvt_pk_bf16_f32 {v(tmp)}, {v(reg)}, {v(reg)}")
        A(f"v_lshlrev_b32 {v(reg)}, 16, {v(tmp)}")

    def round_to(self, src, tmp, dst):
        A = self.A
        A(f"v_cvt_pk_bf16_f32 {v(tmp)}, {v(src)}, {v(src)}")
        A(f"v_lshlrev_b32 {v(dst)}, 16, {v(tmp)}")

    def ln_scalars(self, vsum, vsq, vr, vq, t, mpair=False):
        A = self.A
        if not self.o["mimic_ln"]:
            A(f"v_mul_f32 {v(vsum)}, 0xbb000000, {v(vsum)}")
            A(f"v_mul_f32 {v(vsq)}, 0x3b000000, {v(vsq)}")
            A(f"v_fma_f32 {v(vsq)}, -{v(vsum)}, {v(vsum)}, {v(vsq)}")
            A(f"v_max_f32 {v(vsq)}, 0, {v(vsq)}")
            A(f"v_add_f32 {v(vsq)}, 0x3727c5ac, {v(vsq)}")
            A(f"v_rsq_f32 {v(vr)}, {v(vsq)}")
            if mpair:
                A(f"v_cvt_pk_bf16_f32 {v(vq)}, {v(vsum)}, {v(vsum)}")
            else:
                A("s_nop 0")
                A(f"v_mul_f32 {v(vq)}, {v(vsum)}, {v(vr)}")
            return
        A(f"v_mul_f32 {v(vsum)}, 0x3b000000, {v(vsum)}")
        A(f"v_mul_f32 {v(vsq)}, 0x3b000000, {v(vsq)}")
        A(f"v_fma_f32 {v(vsq)}, -{v(vsum)}, {v(vsum)}, {v(vsq)}")
        A(f"v_max_f32 {v(vsq)}, 0, {v(vsq)}")
        if mpair:
            A(f"v_sub_f32 {v(vsum)}, 0, {v(vsum)}")
            A(f"v_cvt_pk_bf16_f32 {v(vq)}, {v(vsum)}, {v(vsum)}")
        else:
            self.round_bf16(vsum, t)
        self.round_bf16(vsq, t)
        A(f"v_add_f32 {v(vsq)}, 0x3727c5ac, {v(vsq)}")
        self.round_bf16(vsq, t)
        A(f"v_sqrt_f32 {v(vsq)}, {v(vsq)}")
        A("s_nop 0")
        self.round_bf16(vsq, t)
        A(f"v_rcp_f32 {v(vr)}, {v(vsq)}")
        if not mpair:
            A("s_nop 0")
            A(f"v_mul_f32_e64 {v(vq)}, -{v(vsum)}, {v(vr)}")

    def lane_sum(self, regs, tmps, x32=True, x16=False):
        A = self.A
        for op, on in (("v_permlane32_swap_b32", x32), ("v_permlane16_swap_b32", x16)):
            if not on:
                continue
            for r, t in zip(regs, tmps):
                A(f"v_mov_b32 {v(t)}, {v(r)}")
            A.nop(max(0, 3 - len(regs)) if len(regs) < 3 else 0)
            if len(regs) >= 3:
                A("s_nop 0")
            for r, t in zip(regs, tmps):
                A(f"{op} {v(r)}, {v(t)}")
            A("s_nop 1")
            for r, t in zip(regs, tmps):
                A(f"v_add_f32 {v(r)}, {v(r)}, {v(t)}")

    def touch(self, vaddr, srd, so="0"):
        self.A.vmem(f"buffer_load_dword {v(JUNK)}, {v(vaddr)}, {s(srd,4)}, {so} offen", "touch")

    def wave0_addr(self, vdst, sreg):
        A = self.A
        A(f"s_cmp_eq_u32 {s(S_W)}, 0")
        A(f"s_cselect_b32 {s(sreg)}, {s(sreg)}, {OOB}")
        A(f"v_mov_b32 {v(vdst)}, {s(sreg)}")

    def build(self):
        A = self.A
        o = self.o
        T = V_T
        A("s_cmp_ge_u32 s2, 256")
        A("s_cbranch_scc1 L_end")
        A(f"s_load_dwordx16 {s(S_KA,16)}, s[0:1], 0")
        if self.profile:
            A("s_memtime s[84:85]")
        self.stamp("start")
        A(f"v_lshrrev_b32 {v(T)}, 6, v0")
        A(f"v_and_b32 {v(V_L)}, 63, v0")
        A(f"s_lshr_b32 {s(S_J)}, s2, 3")
        A(f"v_readfirstlane_b32 {s(S_W)}, {v(T)}")
        A(f"s_and_b32 {s(S_M)}, {s(S_J)}, 7")
        A(f"s_and_b32 {s(S_T0)}, s2, 7")
        A(f"s_lshl_b32 {s(S_B)}, {s(S_T0)}, 2")
        A(f"s_lshr_b32 {s(S_T1)}, {s(S_J)}, 3")
        A(f"s_add_u32 {s(S_B)}, {s(S_B)}, {s(S_T1)}")
        A(f"v_lshrrev_b32 {v(V_Q)}, 4, {v(V_L)}")
        A(f"v_and_b32 {v(V_I)}, 15, {v(V_L)}")
        A(f"v_lshrrev_b32 {v(T)}, 3, {v(V_L)}")
        A(f"v_lshlrev_b32 {v(T)}, 10, {v(T)}")
        A(f"v_and_b32 {v(T+1)}, 7, {v(V_L)}")
        A(f"s_and_b32 {s(S_T0)}, {s(S_W)}, 1")
        A(f"s_lshl_b32 {s(S_T0)}, {s(S_T0)}, 2")
        A(f"v_xor_b32 {v(T+2)}, {v(T+1)}, {v(V_Q)}")
        A(f"v_xor_b32 {v(T+2)}, {s(S_T0)}, {v(T+2)}")
        A(f"v_lshl_add_u32 {v(T+2)}, {v(T+2)}, 4, {v(T)}")
        A(f"s_lshl_b32 {s(S_T0)}, {s(S_B)}, 15")
        A(f"s_lshl_b32 {s(S_T1)}, {s(S_W)}, 13")
        A(f"s_add_u32 {s(S_HSRC)}, {s(S_T0)}, {s(S_T1)}")
        A(f"v_add_u32 {v(V_XD)}, {s(S_HSRC)}, {v(T+2)}")
        A(f"v_and_b32 {v(T+2)}, 1, {v(V_Q)}")
        A(f"v_lshlrev_b32 {v(T+2)}, 1, {v(T+2)}")
        A(f"v_xor_b32 {v(T+2)}, {v(T+1)}, {v(T+2)}")
        A(f"v_lshl_add_u32 {v(T+2)}, {v(T+2)}, 4, {v(T)}")
        A(f"s_lshl_b32 {s(S_T0)}, {s(S_M)}, 7")
        A(f"s_lshl_b32 {s(S_T1)}, {s(S_W)}, 15")
        A(f"s_add_u32 {s(S_T1)}, {s(S_T1)}, {s(S_T0)}")
        if o["rot"]:
            A(f"s_lshr_b32 {s(S_T0)}, {s(S_J)}, 3")
            A(f"s_lshl_b32 {s(S_T0)}, {s(S_T0)}, 17")
            A(f"s_add_u32 {s(S_T1)}, {s(S_T1)}, {s(S_T0)}")
        A(f"v_add_u32 {v(V_W1D)}, {s(S_T1)}, {v(T+2)}")
        A(f"v_xor_b32 {v(V_W1D+1)}, 64, {v(V_W1D)}")
        for srd, size in ((SRD_X, 1 << 20), (SRD_W1, 1 << 19), (SRD_WS, WS_SIZE), (SRD_W2, 1 << 19), (SRD_W3, 512 * 3584),
                          (SRD_W4, 1792 * 1024), (SRD_O, 1 << 20)):
            A(f"s_mov_b32 {s(srd+2)}, {size}")
            A(f"s_mov_b32 {s(srd+3)}, 0x20000")
        A(f"s_lshr_b32 {s(S_PG)}, {s(S_B)}, 1")
        A(f"s_and_b32 {s(S_U)}, {s(S_J)}, 15")
        A(f"s_and_b32 {s(S_B0)}, {s(S_B)}, 0xfe")
        A(f"s_cmp_gt_u32 {s(S_U)}, 3")
        A(f"s_cselect_b32 {s(S_T0)}, 1, 0")
        A(f"s_sub_u32 {s(S_SL)}, {s(S_U)}, {s(S_T0)}")
        A(f"s_cmp_gt_u32 {s(S_U)}, 11")
        A(f"s_cselect_b32 {s(S_T0)}, 1, 0")
        A(f"s_sub_u32 {s(S_SL)}, {s(S_SL)}, {s(S_T0)}")
        A(f"s_cmp_eq_u32 {s(S_M)}, 3")
        A(f"s_cselect_b32 {s(S_IDLE)}, 1, 0")
        if o["codepf"]:
            A(f"s_getpc_b64 {s(S_PC,2)}")
            A("L_pc0:")
            A(f"s_lshl_b32 {s(S_T3)}, {s(S_J)}, 2")
            A(f"s_add_u32 {s(S_T3)}, {s(S_T3)}, {s(S_W)}")
            A(f"s_lshl_b32 {s(S_T3)}, {s(S_T3)}, 8")
            A(f"v_lshl_add_u32 {v(TE)}, {v(V_L)}, 7, {s(S_T3)}")
            A(f"s_mov_b32 {s(S_T4)}, L_code_end-L_pc0")
            A(f"v_cmp_gt_u32 vcc, 2, {v(V_L)}")
        A("s_waitcnt lgkmcnt(0)")
        order = (SRD_X, SRD_W1, SRD_W2, SRD_W3, SRD_W4, SRD_O, None, SRD_WS)
        for i in (0, 1):
            A(f"s_mov_b32 {s(order[i])}, {s(S_KA+2*i)}")
            A(f"s_mov_b32 {s(order[i]+1)}, {s(S_KA+2*i+1)}")
        def tlb_warm():
            for srd, off in ((SRD_WS, 0), (SRD_W2, 0), (SRD_W3, 0), (SRD_WS, 2 << 20), (SRD_W4, 0), (SRD_WS, 4 << 20), (SRD_O, 0)):
                if off:
                    A(f"s_mov_b32 {s(S_T1)}, {off}")
                A.vmem(f"buffer_load_dword {v(JUNK)}, off, {s(srd,4)}, {s(S_T1) if off else 0}", "touch")
        if o.get("tlbw", 0) == 1:
            for i in (7, 2, 3, 4, 5):
                A(f"s_mov_b32 {s(order[i])}, {s(S_KA+2*i)}")
                A(f"s_mov_b32 {s(order[i]+1)}, {s(S_KA+2*i+1)}")
            tlb_warm()
        A(f"s_lshl_b32 {s(S_T0)}, {s(S_W)}, 13")
        for i in range(8):
            A(f"s_add_u32 m0, {s(S_T0)}, {R0 + 896*i}")
            A("s_nop 0")
            off = f" offset:{128*i}" if i else ""
            A.vmem(f"buffer_load_dwordx4 {v(V_XD)}, {s(SRD_X,4)}, 0 offen{off} lds", "x" if i == 7 else f"x{i}")
        for i in (7, 2, 3, 4, 5):
            A(f"s_mov_b32 {s(order[i])}, {s(S_KA+2*i)}")
            A(f"s_mov_b32 {s(order[i]+1)}, {s(S_KA+2*i+1)}")
        A(f"s_lshl_b32 {s(S_L8)}, {s(S_W)}, 13")
        A(f"s_lshl_b32 {s(S_L16)}, {s(S_W)}, 14")
        A(f"s_lshl_b32 {s(S_L4)}, {s(S_W)}, 12")
        for k in (1, 2, 3):
            A(f"s_mov_b32 {s(S_C+k-1)}, {7168*k}")

        def w1stage(p):
            A(f"s_add_u32 m0, {s(S_L4)}, {R1 + p*16384}")
            if p:
                A(f"v_xor_b32 {v(V_W1D)}, {(p ^ (p-1))*131072}, {v(V_W1D)}")
                A(f"v_xor_b32 {v(V_W1D+1)}, {(p ^ (p-1))*131072}, {v(V_W1D+1)}")
            else:
                A("s_nop 0")
            for k in range(4):
                so = "0" if k == 0 else s(S_C + k - 1)
                off = f" offset:{1024*k}" if k else ""
                A.vmem(f"buffer_load_dwordx4 {v(V_W1D + (k & 1))}, {s(SRD_W1,4)}, {so} offen{off} lds", f"w1_{p}")
        w1stage(0)
        if o.get("tlbw", 0) == 2:
            tlb_warm()
        if o["codepf"]:
            A(f"v_cmp_gt_u32 {s(S_EX,2)}, {s(S_T4)}, {v(TE)}")
            A("s_nop 1")
            A(f"s_and_b64 vcc, vcc, {s(S_EX,2)}")
            A(f"s_and_saveexec_b64 {s(S_EX,2)}, vcc")
            A("s_cbranch_execz L_nopf")
            A(f"global_load_dword {v(JUNK)}, {v(TE)}, {s(S_PC,2)}")
            A("L_nopf:")
            A(f"s_mov_b64 exec, {s(S_EX,2)}")
        A(f"s_lshl_b32 {s(S_T0)}, {s(S_PG)}, 7")
        A(f"s_add_u32 {s(S_T0)}, {s(S_T0)}, {EPO}")
        A(f"v_mov_b32 {v(V_TAG)}, {s(S_T0)}")
        A.vmem(f"buffer_load_dword {v(V_TAG)}, {v(V_TAG)}, {s(SRD_WS,4)}, 0 offen sc1", "epoch")
        if o.get("t_c3", 0):
            A(f"s_lshl_b32 {s(S_T0)}, {s(S_J)}, 2")
            A(f"s_add_u32 {s(S_T0)}, {s(S_T0)}, {s(S_W)}")
            A(f"s_lshl_b32 {s(S_T0)}, {s(S_T0)}, 12")
            A(f"s_add_u32 {s(S_T0)}, {s(S_T0)}, 384")
            A(f"v_cmp_gt_u32 vcc, 4, {v(V_L)}")
            A(f"v_lshl_add_u32 {v(TF)}, {v(V_L)}, 10, {s(S_T0)}")
            A(f"v_mov_b32 {v(TH)}, {OOB:#x}")
            A(f"v_cndmask_b32 {v(TF)}, {v(TH)}, {v(TF)}, vcc")
            self.touch(TF, SRD_W1)
            self.touch(TF, SRD_W2)
        if o["t_w2"]:
            A(f"s_lshl_b32 {s(S_T0)}, s2, 2")
            A(f"s_add_u32 {s(S_T0)}, {s(S_T0)}, {s(S_W)}")
            A(f"s_lshl_b32 {s(S_T0)}, {s(S_T0)}, 9")
            A(f"v_cmp_gt_u32 vcc, 4, {v(V_L)}")
            A(f"v_lshl_add_u32 {v(TF)}, {v(V_L)}, 7, {s(S_T0)}")
            A(f"v_mov_b32 {v(TH)}, {OOB:#x}")
            A(f"v_cndmask_b32 {v(TF)}, {v(TH)}, {v(TF)}, vcc")
            self.touch(TF, SRD_W2)
        self.stamp("issued")

        A(f"v_lshlrev_b32 {v(V_L16)}, 4, {v(V_L)}")
        A(f"v_lshrrev_b32 {v(V_H)}, 5, {v(V_L)}")
        A(f"v_and_b32 {v(V_J)}, 31, {v(V_L)}")
        A(f"s_lshl_b32 {s(S_T0)}, {s(S_B)}, 15")
        A(f"s_lshl_b32 {s(S_T1)}, {s(S_M)}, 12")
        A(f"s_add_u32 {s(S_T0)}, {s(S_T0)}, {s(S_T1)}")
        A(f"s_lshl_b32 {s(S_T1)}, {s(S_W)}, 10")
        A(f"s_add_u32 {s(S_FRAG)}, {s(S_T0)}, {s(S_T1)}")
        A(f"v_and_b32 {v(T)}, 1, {v(V_Q)}")
        A(f"v_lshlrev_b32 {v(T)}, 9, {v(T)}")
        A(f"v_lshl_add_u32 {v(T)}, {v(V_I)}, 4, {v(T)}")
        A(f"v_lshrrev_b32 {v(T+1)}, 1, {v(V_Q)}")
        A(f"v_lshl_add_u32 {v(T)}, {v(T+1)}, 3, {v(T)}")
        A(f"v_add_u32 {v(V_FO)}, {s(S_FRAG)}, {v(T)}")
        VT = SCOL + 6
        if o["t_ex"]:
            A(f"v_and_b32 {v(VT)}, 7, {v(V_L)}")
            A(f"v_lshl_add_u32 {v(VT)}, {v(VT)}, 7, {s(S_FRAG)}")
            A(f"v_lshrrev_b32 {v(TF)}, 3, {v(V_L)}")
            A(f"v_lshl_add_u32 {v(VT)}, {v(TF)}, 20, {v(VT)}")
            A(f"s_lshr_b32 {s(S_T0)}, {s(S_FRAG)}, 2")
            A(f"s_add_u32 {s(S_T0)}, {s(S_T0)}, {STB - 16*128}")
            A(f"v_lshl_add_u32 {v(TF)}, {v(V_L)}, 7, {s(S_T0)}")
            A(f"v_cmp_gt_u32 vcc, 16, {v(V_L)}")
            A(f"s_lshl_b32 {s(S_T0)}, {s(S_B)}, 7")
            A(f"s_add_u32 {s(S_T0)}, {s(S_T0)}, {FL1 - 18*0x2000}")
            A(f"v_cndmask_b32 {v(VT)}, {v(TF)}, {v(VT)}, vcc")
            A(f"v_lshl_add_u32 {v(TF)}, {v(V_L)}, 13, {s(S_T0)}")
            A(f"v_cmp_gt_u32 vcc, 18, {v(V_L)}")
            A(f"s_lshl_b32 {s(S_T0)}, {s(S_PG)}, 8")
            A(f"s_add_u32 {s(S_T0)}, {s(S_T0)}, {FL3 - 20*128}")
            A(f"v_cndmask_b32 {v(VT)}, {v(TF)}, {v(VT)}, vcc")
            A(f"v_lshl_add_u32 {v(TF)}, {v(V_L)}, 7, {s(S_T0)}")
            A(f"v_cmp_gt_u32 vcc, 20, {v(V_L)}")
            A(f"v_mov_b32 {v(TG)}, {OOB:#x}")
            A("s_nop 0")
            A(f"v_cndmask_b32 {v(VT)}, {v(TF)}, {v(VT)}, vcc")
            A(f"v_cmp_gt_u32 vcc, 22, {v(V_L)}")
            A("s_nop 1")
            A(f"v_cndmask_b32 {v(VT)}, {v(TG)}, {v(VT)}, vcc")
        if o["t_ex"] and o.get("early_touch", 0):
            self.touch(VT, SRD_WS)
        A(f"s_lshl_b32 {s(S_T0)}, {s(S_B)}, 15")
        A(f"s_lshl_b32 {s(S_T1)}, {s(S_M)}, 7")
        A(f"s_add_u32 {s(S_T0)}, {s(S_T0)}, {s(S_T1)}")
        A(f"s_lshl_b32 {s(S_T1)}, {s(S_W)}, 5")
        A(f"s_add_u32 {s(S_T3)}, {s(S_T0)}, {s(S_T1)}")
        A(f"v_lshlrev_b32 {v(T)}, 10, {v(V_I)}")
        A(f"v_lshl_add_u32 {v(T)}, {v(V_Q)}, 3, {v(T)}")
        A(f"v_add_u32 {v(T)}, {s(S_T3)}, {v(T)}")
        A(f"s_mov_b32 {s(S_T0)}, 16384")
        A.vmem(f"buffer_load_dwordx2 {v(XRES,2)}, {v(T)}, {s(SRD_X,4)}, 0 offen", "xres")
        A.vmem(f"buffer_load_dwordx2 {v(XRES+2,2)}, {v(T)}, {s(SRD_X,4)}, {s(S_T0)} offen", "xres")
        A(f"v_lshlrev_b32 {v(T)}, 10, {v(V_J)}")
        A(f"v_lshl_add_u32 {v(T)}, {v(V_H)}, 3, {v(T)}")
        A(f"v_add_u32 {v(V_RO)}, {s(S_T3)}, {v(T)}")
        A(f"s_mov_b32 {s(S_4096)}, 4096")
        for k in (1, 2, 3):
            A(f"s_mov_b32 {s(S_D+k-1)}, {13312*k}")
        A(f"s_lshr_b32 {s(S_A)}, {s(S_J)}, 3")
        A(f"s_and_b32 {s(S_T0)}, s2, 7")
        A(f"s_and_b32 {s(S_R2)}, {s(S_T0)}, {3 if o['xrot'] else 0}")
        if o["xrot"]:
            if o.get("r4m", 1):
                A(f"s_add_u32 {s(S_R4)}, {s(S_T0)}, {s(S_M)}")
            else:
                A(f"s_mov_b32 {s(S_R4)}, {s(S_T0)}")
            A(f"s_cmp_ge_u32 {s(S_R4)}, 7")
            A(f"s_cselect_b32 {s(S_T1)}, 7, 0")
            A(f"s_sub_u32 {s(S_R4)}, {s(S_R4)}, {s(S_T1)}")
            A(f"s_cmp_ge_u32 {s(S_R4)}, 7")
            A(f"s_cselect_b32 {s(S_T1)}, 7, 0")
            A(f"s_sub_u32 {s(S_R4)}, {s(S_R4)}, {s(S_T1)}")
        else:
            A(f"s_mov_b32 {s(S_R4)}, 0")
        A(f"s_lshl_b32 {s(S_GW)}, s2, 2")
        A(f"s_add_u32 {s(S_GW)}, {s(S_GW)}, {s(S_W)}")
        A(f"s_lshl_b32 {s(S_T0)}, {s(S_B)}, 7")
        A(f"s_lshl_b32 {s(S_T1)}, {s(S_M)}, 4")
        A(f"s_add_u32 {s(S_T0)}, {s(S_T0)}, {s(S_T1)}")
        A(f"s_lshl_b32 {s(S_T1)}, {s(S_W)}, 2")
        A(f"s_add_u32 {s(S_FLO)}, {s(S_T0)}, {s(S_T1)}")
        A(f"s_lshl_b32 {s(S_T0)}, {s(S_PG)}, 7")
        A(f"s_add_u32 {s(S_HSP)}, {s(S_T0)}, {HS}")
        A(f"s_lshl_b32 {s(S_T0)}, {s(S_B0)}, 15")
        A(f"s_add_u32 {s(S_X1SRC)}, {s(S_T0)}, {s(S_L8)}")
        A(f"v_lshrrev_b32 {v(T)}, 3, {v(V_L)}")
        A(f"v_lshlrev_b32 {v(T)}, 10, {v(T)}")
        A(f"v_and_b32 {v(T+1)}, 7, {v(V_L)}")
        A(f"v_lshlrev_b32 {v(T+2)}, 1, {v(V_Q)}")
        A(f"v_xor_b32 {v(T+2)}, {v(T+1)}, {v(T+2)}")
        A(f"v_lshl_add_u32 {v(T+2)}, {v(T+2)}, 4, {v(T)}")
        A(f"s_lshl_b32 {s(S_T0)}, {s(S_M)}, 7")
        A(f"s_lshl_b32 {s(S_T1)}, {s(S_W)}, 17")
        A(f"s_add_u32 {s(S_T1)}, {s(S_T1)}, {s(S_T0)}")
        A(f"s_lshl_b32 {s(S_T2)}, {s(S_R2)}, 15")
        A(f"s_add_u32 {s(S_T1)}, {s(S_T1)}, {s(S_T2)}")
        A(f"v_add_u32 {v(V_W2D)}, {s(S_T1)}, {v(T+2)}")
        A(f"v_and_b32 {v(T+2)}, 1, {v(V_Q)}")
        A(f"v_lshlrev_b32 {v(T+2)}, 2, {v(T+2)}")
        A(f"v_xor_b32 {v(T+2)}, {v(T+1)}, {v(T+2)}")
        A(f"v_lshl_add_u32 {v(T+2)}, {v(T+2)}, 4, {v(T)}")
        A(f"s_mul_i32 {s(S_T1)}, {s(S_W)}, {448*1024}")
        A(f"s_add_u32 {s(S_T1)}, {s(S_T1)}, {s(S_T0)}")
        A(f"s_lshl_b32 {s(S_T0)}, {s(S_R4)}, 16")
        A(f"s_add_u32 {s(S_T1)}, {s(S_T1)}, {s(S_T0)}")
        A(f"v_add_u32 {v(V_WD)}, {s(S_T1)}, {v(T+2)}")
        A(f"v_lshlrev_b32 {v(T+1)}, 2, {v(V_Q)}")
        A(f"v_xor_b32 {v(T+1)}, {v(T+1)}, {v(V_I)}")
        A(f"v_lshlrev_b32 {v(T+1)}, 4, {v(T+1)}")
        A(f"v_mul_u32_u24 {v(T)}, 3584, {v(V_Q)}")
        A(f"v_add_u32 {v(T)}, {v(T)}, {v(T+1)}")
        A(f"s_lshl_b32 {s(S_T0)}, {s(S_SL)}, 8")
        A(f"s_mul_i32 {s(S_T1)}, {s(S_W)}, {32*3584}")
        A(f"s_add_u32 {s(S_T0)}, {s(S_T0)}, {s(S_T1)}")
        A(f"s_mul_i32 {s(S_T1)}, {s(S_R2)}, {128*3584}")
        A(f"s_add_u32 {s(S_T0)}, {s(S_T0)}, {s(S_T1)}")
        A(f"s_cmp_eq_u32 {s(S_IDLE)}, 1")
        A(f"s_cselect_b32 {s(S_T0)}, {OOB}, {s(S_T0)}")
        A(f"v_add_u32 {v(V_W3D)}, {s(S_T0)}, {v(T)}")
        A(f"s_mul_i32 {s(S_T0)}, {s(S_B0)}, {GBATCH}")
        A(f"s_lshl_b32 {s(S_T2)}, {s(S_SL)}, 13")
        A(f"s_add_u32 {s(S_T0)}, {s(S_T0)}, {s(S_T2)}")
        A(f"s_lshl_b32 {s(S_T2)}, {s(S_W)}, 11")
        A(f"s_add_u32 {s(S_T0)}, {s(S_T0)}, {s(S_T2)}")
        A(f"s_add_u32 {s(S_T0)}, {s(S_T0)}, {GB}")
        A(f"v_add_u32 {v(V_GS)}, {s(S_T0)}, {v(V_L16)}")
        A(f"s_lshr_b32 {s(S_T0)}, {s(S_W)}, 1")
        A(f"s_add_u32 {s(S_T0)}, {s(S_T0)}, 1")
        A(f"s_sub_u32 {s(S_T2)}, 0, {s(S_T0)}")
        A(f"s_bitcmp1_b32 {s(S_W)}, 0")
        A(f"s_cselect_b32 {s(S_T0)}, {s(S_T2)}, {s(S_T0)}")
        A(f"v_subrev_u32 {v(TF)}, {s(S_T0)}, {v(V_J)}")
        A(f"v_cmp_gt_u32 vcc, 32, {v(TF)}")
        A(f"v_lshlrev_b32 {v(TF)}, 4, {v(TF)}")
        A(f"v_lshl_add_u32 {v(TF)}, {v(V_H)}, 9, {v(TF)}")
        A(f"v_mov_b32 {v(TG)}, {OOB:#x}")
        A(f"v_cndmask_b32 {v(V_HSH)}, {v(TG)}, {v(TF)}, vcc")
        RHO, PR, LO = T, T + 1, T + 2
        A(f"v_lshrrev_b32 {v(RHO)}, 2, {v(V_I)}")
        A(f"v_bfe_u32 {v(PR)}, {v(V_L)}, 1, 1")
        A(f"v_and_b32 {v(LO)}, 1, {v(V_L)}")
        A(f"v_and_b32 {v(T+3)}, 1, {v(V_Q)}")
        A(f"v_lshl_add_u32 {v(T+3)}, {v(T+3)}, 1, {v(PR)}")
        A(f"s_lshl_b32 {s(S_T0)}, {s(S_W)}, 2")
        A(f"v_add_u32 {v(TE)}, {s(S_T0)}, {v(T+3)}")
        A(f"v_lshlrev_b32 {v(TF)}, 2, {v(RHO)}")
        A(f"v_xor_b32 {v(TE)}, {v(TE)}, {v(TF)}")
        A(f"v_lshlrev_b32 {v(TE)}, 4, {v(TE)}")
        A(f"v_lshl_add_u32 {v(TE)}, {v(LO)}, 3, {v(TE)}")
        A(f"v_lshl_add_u32 {v(TF)}, {v(V_H)}, 2, {v(RHO)}")
        A(f"v_lshl_add_u32 {v(V_TR3)}, {v(TF)}, 8, {v(TE)}")
        A(f"v_lshrrev_b32 {v(TE)}, 1, {v(RHO)}")
        A(f"v_lshl_add_u32 {v(TE)}, {v(TE)}, 2, {v(T+3)}")
        A(f"v_lshlrev_b32 {v(TE)}, 4, {v(TE)}")
        A(f"v_lshl_add_u32 {v(TE)}, {v(LO)}, 3, {v(TE)}")
        A(f"s_lshl_b32 {s(S_T0)}, {s(S_W)}, 5")
        A(f"v_xor_b32 {v(TE)}, {s(S_T0)}, {v(TE)}")
        A(f"v_lshl_add_u32 {v(TE)}, {v(TF)}, 7, {v(TE)}")
        A(f"s_add_u32 {s(S_T0)}, {s(S_L16)}, {R3}")
        A(f"v_add_u32 {v(V_A0)}, {s(S_T0)}, {v(TE)}")
        A(f"v_xor_b32 {v(V_A1)}, 64, {v(V_A0)}")
        S1A, S2A = SCOL, SCOL + 1
        A(f"v_and_b32 {v(TE)}, 1, {v(V_Q)}")
        A(f"v_lshlrev_b32 {v(TE)}, 1, {v(TE)}")
        A(f"v_lshrrev_b32 {v(TF)}, 1, {v(RHO)}")
        A(f"v_add_u32 {v(TE)}, {v(TE)}, {v(TF)}")
        A(f"v_lshlrev_b32 {v(TE)}, 1, {v(TE)}")
        A(f"s_lshl_b32 {s(S_T0)}, {s(S_W)}, 1")
        A(f"v_add_u32 {v(TG)}, {s(S_T0)}, {v(PR)}")
        A(f"v_xor_b32 {v(TE)}, {v(TE)}, {v(TG)}")
        A(f"v_lshlrev_b32 {v(TE)}, 4, {v(TE)}")
        A(f"v_lshl_add_u32 {v(TE)}, {v(LO)}, 3, {v(TE)}")
        A(f"v_lshl_add_u32 {v(TH)}, {v(V_Q)}, 3, {v(RHO)}")
        A(f"v_lshl_add_u32 {v(S1A)}, {v(TH)}, 7, {v(TE)}")
        A(f"v_add_u32 {v(S1A)}, {R1}, {v(S1A)}")
        A(f"v_lshrrev_b32 {v(TH)}, 1, {v(V_Q)}")
        A(f"v_lshlrev_b32 {v(TH)}, 4, {v(TH)}")
        A(f"v_and_b32 {v(TF)}, 1, {v(V_Q)}")
        A(f"v_lshl_add_u32 {v(TH)}, {v(TF)}, 2, {v(TH)}")
        A(f"v_add_u32 {v(TH)}, {v(TH)}, {v(RHO)}")
        A(f"v_lshl_add_u32 {v(S2A)}, {v(TH)}, 7, {v(TE)}")
        A(f"v_add_u32 {v(S2A)}, {R3}, {v(S2A)}")
        XB0, XB1, XS0, XS1 = SCOL + 2, SCOL + 3, SCOL + 4, SCOL + 5
        A(f"v_bfe_u32 {v(TE)}, {v(V_L)}, 1, 3")
        A(f"v_xor_b32 {v(TE)}, {v(TE)}, {v(V_Q)}")
        A(f"v_lshlrev_b32 {v(TE)}, 4, {v(TE)}")
        A(f"v_and_b32 {v(TF)}, 7, {v(V_L)}")
        A(f"v_lshl_add_u32 {v(TE)}, {v(TF)}, 7, {v(TE)}")
        A(f"v_bfe_u32 {v(TF)}, {v(V_L)}, 3, 1")
        A(f"v_lshl_add_u32 {v(XB0)}, {v(TF)}, 13, {v(TE)}")
        A(f"v_xor_b32 {v(XB1)}, 64, {v(XB0)}")
        A(f"s_lshl_b32 {s(S_T0)}, {s(S_W)}, 11")
        A(f"v_add_u32 {v(XS0)}, {s(S_T0)}, {v(XB0)}")
        A(f"v_add_u32 {v(XS1)}, {s(S_T0)}, {v(XB1)}")
        if o["rot"]:
            A(f"s_lshl_b32 {s(S_T0)}, {s(S_A)}, 11")
            A(f"v_xor_b32 {v(XB0)}, {s(S_T0)}, {v(XB0)}")
            A(f"v_xor_b32 {v(XB1)}, {s(S_T0)}, {v(XB1)}")
        HBK = SCOL + 12
        A(f"v_lshrrev_b32 {v(TE)}, 1, {v(V_Q)}")
        A(f"v_lshlrev_b32 {v(TE)}, 10, {v(TE)}")
        A(f"v_and_b32 {v(TF)}, 1, {v(V_Q)}")
        A(f"v_lshl_add_u32 {v(TE)}, {v(TF)}, 9, {v(TE)}")
        A(f"v_lshl_add_u32 {v(TE)}, {v(V_I)}, 4, {v(TE)}")
        for k in range(4):
            A(f"s_xor_b32 {s(S_T0)}, {s(S_R2)}, {k}")
            A(f"s_lshl_b32 {s(S_T0)}, {s(S_T0)}, 11")
            A(f"v_add_u32 {v(HBK+k)}, {s(S_T0)}, {v(TE)}")
        c = (2.0 / 3.141592653589793) ** 0.5
        k1 = -2.0 * c * 1.4426950408889634
        k2 = k1 * 0.044715
        A(f"s_mov_b32 {s(S_K2)}, {f2u(k2):#x}")
        A(f"s_mov_b32 {s(S_K2+1)}, {f2u(k2):#x}")
        A(f"v_mov_b32 {v(V_K1)}, {f2u(k1):#x}")
        A(f"v_mov_b32 {v(V_ONES)}, 0x3f803f80")
        A(f"v_add_u32 {v(V_RED)}, {s(S_L8)}, {v(V_L16)}")
        ONES4 = SCOL + 8
        for r in range(4):
            A(f"v_mov_b32 {v(ONES4+r)}, 0x3f803f80")
        A(f"s_getreg_b32 {s(S_XCC)}, hwreg(HW_REG_XCC_ID)")
        A(f"s_and_b32 {s(S_XCC)}, {s(S_XCC)}, 15")
        self.stamp("proend")

        A.c("S1: row statistics")
        if o.get("early_w1", 1):
            A.wait_vm("x3")
            w1stage(1)
            A.wait_vm("x")
            w1stage(2)
            self.barrier()
            self.stamp("xland")
        else:
            A.wait_vm("x")
            self.barrier()
            self.stamp("xland")
            w1stage(1)
            w1stage(2)
        w2items = self.wdma_items(SRD_W2, [V_W2D], 16, S_L16, R3, S_C, 32768, "w2", xor=True)
        n_in = o["w2_s1"]
        assert n_in <= 16
        self.bgq = w2items[:n_in]
        fr = []
        for Tt in range(2):
            for ln in range(2):
                for e in range(2):
                    r = BF + 4 * len(fr)
                    A.lds(f"ds_read_b128 {v(r,4)}, {v(XS0+e)} offset:{Tt*16384+ln*1024}", f"xs{len(fr)}")
                    fr.append((Tt, r))
        for r in (SUM, SQ, P0, P1):
            A(f"v_mov_b32 {v(r)}, 0")
        for i, (Tt, r) in enumerate(fr):
            A.wait_lg(f"xs{i}")
            sm, sq = (SUM, SQ) if Tt == 0 else (P0, P1)
            for d in range(4):
                A(f"v_dot2_f32_bf16 {v(sm)}, {v(r+d)}, {v(V_ONES)}, {v(sm)}")
                A(f"v_dot2_f32_bf16 {v(sq)}, {v(r+d)}, {v(r+d)}, {v(sq)}")
            if i == o.get("s3_at", 3):
                w1stage(3)
        A(f"s_lshl_b32 {s(S_T0)}, {s(S_W)}, 8")
        A(f"s_add_u32 {s(S_T0)}, {s(S_T0)}, {PART}")
        A(f"v_lshl_add_u32 {v(BF)}, {v(V_I)}, 3, {s(S_T0)}")
        self.lane_sum([SUM, SQ, P0, P1], [TE, TF, TG, TH], True, True)
        A.lds(f"ds_write_b64 {v(BF)}, {v(SUM,2)}")
        A.lds(f"ds_write_b64 {v(BF)}, {v(P0,2)} offset:128")
        A(f"v_lshlrev_b32 {v(TE)}, 3, {v(V_I)}")
        A(f"v_add_u32 {v(TE)}, {PART}, {v(TE)}")
        self.stamp("xstat")
        if o["t_ex"] and not o.get("early_touch", 0):
            self.touch(VT, SRD_WS)

        A.c("S1: GEMM")
        AR, BR_ = 44, BF
        ACC0, ACC1, ACCS = ACC, ACC + 4, ACC + 8

        def s1_reads(st):
            if st % 4 == 0 and st:
                p = st // 4
                A(f"v_xor_b32 {v(XB0)}, {(p ^ (p-1))*2048}, {v(XB0)}")
                A(f"v_xor_b32 {v(XB1)}, {(p ^ (p-1))*2048}, {v(XB1)}")
            ar = AR + 4 * (st % 3)
            br = BR_ + 8 * (st % 3)
            A.lds(f"ds_read_b64_tr_b16 {v(ar,2)}, {v(S1A)} offset:{st*4096}", f"k{st}")
            A.lds(f"ds_read_b64_tr_b16 {v(ar+2,2)}, {v(S1A)} offset:{st*4096+512}", f"k{st}")
            xb = XB0 + (st & 1)
            A.lds(f"ds_read_b128 {v(br,4)}, {v(xb)} offset:{((st>>1)&1)*1024}", f"k{st}")
            A.lds(f"ds_read_b128 {v(br+4,4)}, {v(xb)} offset:{((st>>1)&1)*1024+16384}", f"k{st}")

        def s1_mfma(st):
            ar = AR + 4 * (st % 3)
            br = BR_ + 8 * (st % 3)
            c = lambda r: "0" if st == 0 else v(r, 4)
            A(f"v_mfma_f32_16x16x32_bf16 {v(ACC0,4)}, {v(ar,4)}, {v(br,4)}, {c(ACC0)}")
            A(f"v_mfma_f32_16x16x32_bf16 {v(ACC1,4)}, {v(ar,4)}, {v(br+4,4)}, {c(ACC1)}")
            A(f"v_mfma_f32_16x16x32_bf16 {v(ACCS,4)}, {v(ar,4)}, {v(ONES4,4)}, {c(ACCS)}")
        nst = o.get("s1_stages", 2)
        per = 16 // nst
        self.bg(o.get("w2_pre", 0))
        for p in range(nst):
            A.wait_vm(f"w1_{(p+1)*(4//nst)-1}")
            A.wait_lg()
            self.barrier()
            self.stamp(f"st{p}")
            if p == 0:
                for src in range(4):
                    A.lds(f"ds_read_b64 {v(56+2*src,2)}, {v(TE)} offset:{src*256}", "pt")
                    A.lds(f"ds_read_b64 {v(104+2*src,2)}, {v(TE)} offset:{src*256+128}", "pt")
            s1_reads(per * p)
            s1_reads(per * p + 1)
            if p == 0:
                A.wait_lg("pt")
                if n_in == 16:
                    self.barrier()
                for src in range(1, 4):
                    A(f"v_pk_add_f32 {v(56,2)}, {v(56,2)}, {v(56+2*src,2)}")
                    A(f"v_pk_add_f32 {v(104,2)}, {v(104,2)}, {v(104+2*src,2)}")
                self.ln_scalars(56, 57, V_R0, V_Q0, TF)
                self.ln_scalars(104, 105, V_R1, V_Q1, TF)
                A.wait_vm("epoch")
                A(f"v_readfirstlane_b32 {s(S_TAG)}, {v(V_TAG)}")
                A("s_nop 3")
                A(f"s_add_u32 {s(S_TAG)}, {s(S_TAG)}, 1")
                A(f"s_mov_b32 {s(S_TAG+1)}, {s(S_TAG)}")
                A(f"v_mov_b32 {v(V_TAG)}, {s(S_TAG)}")
                if self.force is None:
                    A(f"s_lshl_b32 {s(S_T1)}, {s(S_U)}, 3")
                    A(f"s_add_u32 {s(S_T0)}, {s(S_HSP)}, {s(S_T1)}")
                    self.wave0_addr(TF, S_T0)
                    A(f"v_mov_b32 {v(TG)}, {s(S_TAG)}")
                    A(f"v_mov_b32 {v(TH)}, {s(S_XCC)}")
                    A.vmem(f"buffer_store_dwordx2 {v(TG,2)}, {v(TF)}, {s(SRD_WS,4)}, 0 offen sc1", "hs")
            for st in range(per * p, per * p + per):
                A.wait_lg(f"k{st}")
                s1_mfma(st)
                if st + 2 < per * p + per:
                    s1_reads(st + 2)
                self.bg(1)
        self.bg_flush()
        self.stamp("s1loop")
        A(f"s_add_u32 {s(S_T0)}, {s(S_FLO)}, {FL1G if self.force is False else FL1}")
        A(f"v_mov_b32 {v(V_FS1)}, {s(S_T0)}")
        A(f"s_add_u32 {s(S_T0)}, {s(S_FLO)}, {FL2}")
        A(f"v_mov_b32 {v(V_FS2)}, {s(S_T0)}")
        A(f"s_lshl_b32 {s(S_T0)}, {s(S_PG)}, 8")
        A(f"s_lshl_b32 {s(S_T1)}, {s(S_SL)}, 4")
        A(f"s_add_u32 {s(S_T0)}, {s(S_T0)}, {s(S_T1)}")
        A(f"s_lshl_b32 {s(S_T1)}, {s(S_W)}, 2")
        A(f"s_add_u32 {s(S_T0)}, {s(S_T0)}, {s(S_T1)}")
        A(f"s_add_u32 {s(S_T0)}, {s(S_T0)}, {FL3}")
        A(f"v_mov_b32 {v(V_FS3)}, {s(S_T0)}")
        for Tt, (ac, vr) in enumerate(((ACC0, V_R0), (ACC1, V_R1))):
            for p in range(2):
                A(f"v_pk_mul_f32 {v(ac+2*p,2)}, {v(ac+2*p,2)}, {v(vr,2)} op_sel_hi:[1,0]")
        for Tt, (ac, vr) in enumerate(((ACC0, V_R0), (ACC1, V_R1))):
            for p in range(2):
                A(f"v_pk_fma_f32 {v(ac+2*p,2)}, {v(ACCS+2*p,2)}, {v(vr,2)}, {v(ac+2*p,2)} op_sel:[0,1,0] op_sel_hi:[1,1,1]")
        HP = 60
        for t in self.gelu_a(ACC, 4, BF) + self.gelu_b(ACC, 4, HP, BF, True):
            A(t)
        g1 = " sc1" if self.force is False else ""
        A.vmem(f"buffer_store_dwordx2 {v(HP,2)}, {v(V_FO)}, {s(SRD_WS,4)}, 0 offen{g1}", "hst")
        A.vmem(f"buffer_store_dwordx2 {v(HP+2,2)}, {v(V_FO)}, {s(SRD_WS,4)}, 0 offen offset:256{g1}", "hst")
        self.stamp("s1epi")
        A(f"s_lshl_b32 {s(S_T0)}, {s(S_B)}, 7")
        A(f"s_lshl_b32 {s(S_T2)}, {s(S_W)}, 5")
        A(f"s_add_u32 {s(S_T0)}, {s(S_T0)}, {s(S_T2)}")
        A(f"s_add_u32 {s(S_T0)}, {s(S_T0)}, {FL1G if self.force is False else FL1}")
        A(f"v_and_b32 {v(TE)}, 7, {v(V_L)}")
        A(f"v_lshl_add_u32 {v(TE)}, {v(TE)}, 2, {s(S_T0)}")
        A.wait_vm("hst")
        A.vmem(f"buffer_store_dword {v(V_TAG)}, {v(V_FS1)}, {s(SRD_WS,4)}, 0 offen{g1}")
        self.stamp("flag1")
        for it in w2items[n_in:]:
            it()

        A.c("park w2")
        w3all = self.w3_items()
        self.bgq = list(w3all)
        A(f"s_lshr_b32 {s(S_T0)}, {s(S_FRAG)}, 2")
        A(f"s_add_u32 {s(S_T0)}, {s(S_T0)}, {STB}")
        A(f"v_lshl_add_u32 {v(V_ST)}, {v(V_I)}, 3, {s(S_T0)}")
        A.wait_vm("w2")
        self.barrier()
        self.stamp("b2")
        w2f = lambda st, f: (lambda o_, n: v(WF + 64 + 4 * st + o_, n))
        trs = self.tr_items(w2f, [S2A], 16, 4096, 1024, 1, "w2f")

        def park_w2():
            self.bg(o["c_e"])
            for it in trs:
                it()
            A.wait_lg()
            self.barrier()

        A.c("S2")
        if self.force is None:
            self.poll1(HP, park_w2)
        else:
            self.poll(TE, TG, park_w2)
        self.stamp("poll1")
        self.lin_dma(V_HSH, 8, S_L8, R0, S_HSRC, HB, "h")
        if o["t_g"] == 2 and not o["g_sc1"]:
            A(f"v_sub_u32 {v(TF)}, {v(V_GS)}, {v(V_L16)}")
            A(f"v_mul_u32_u24 {v(TG)}, {GBATCH}, {v(V_Q)}")
            A(f"v_lshl_add_u32 {v(TG)}, {v(V_I)}, 7, {v(TG)}")
            A(f"v_add_u32 {v(TF)}, {v(TF)}, {v(TG)}")
            A(f"v_cmp_gt_u32 vcc, 32, {v(V_L)}")
            A(f"s_lshl_b32 {s(S_T0)}, {s(S_IDLE)}, 31")
            A(f"v_add_u32 {v(TF)}, {s(S_T0)}, {v(TF)}")
            A(f"v_mov_b32 {v(TG)}, {OOB:#x}")
            A(f"v_cndmask_b32 {v(TF)}, {v(TG)}, {v(TF)}, vcc")
            self.touch(TF, SRD_WS)
        self.bg(o["c_h"])
        for p in range(4):
            A(f"v_lshlrev_b32 {v(56+2*p)}, 16, {v(XRES+p)}")
            A(f"v_and_b32 {v(56+2*p+1)}, 0xffff0000, {v(XRES+p)}")
        for r in (SUM, SQ, P0, P1):
            A(f"v_mov_b32 {v(r)}, 0")
        A(f"v_add_u32 {v(TE)}, {X1B}, {v(V_FO)}")
        A.wait_vm("h")
        self.barrier()
        self.stamp("hland")

        def s2_read(i):
            st, Tt = i >> 1, i & 1
            A.lds(f"ds_read_b128 {v(BF+4*(i%8),4)}, {v(HBK+(st&3))} offset:{R0+(st>>2)*8192+Tt*256}", f"hb{i}")
        for i in range(4):
            s2_read(i)
        nb = o["c_s2"]
        done = 0
        for i in range(32):
            st, Tt = i >> 1, i & 1
            if i % 2 == 0:
                A.wait_lg(f"hb{i+1}")
            ac = ACC0 if Tt == 0 else ACC1
            c0 = "0" if st == 0 else v(ac, 4)
            A(f"v_mfma_f32_16x16x32_bf16 {v(ac,4)}, {v(WF+64+4*st,4)}, {v(BF+4*(i%8),4)}, {c0}")
            if i + 4 < 32:
                s2_read(i + 4)
            want = (i + 1) * nb // 32
            self.bg(want - done)
            done = want
        self.stamp("s2mfma")
        A.nop(8)
        for p in range(4):
            A(f"v_pk_add_f32 {v(ACC+2*p,2)}, {v(ACC+2*p,2)}, {v(56+2*p,2)}")
        for p in range(4):
            A(f"v_cvt_pk_bf16_f32 {v(X1P+p)}, {v(ACC+2*p)}, {v(ACC+2*p+1)}")
        self.publish([f"buffer_store_dwordx2 {v(X1P,2)}, {v(TE)}, {s(SRD_WS,4)}, 0 offen{{F}}",
                      f"buffer_store_dwordx2 {v(X1P+2,2)}, {v(TE)}, {s(SRD_WS,4)}, 0 offen offset:256{{F}}"], tag="x1st")
        for d in range(2):
            A(f"v_dot2_f32_bf16 {v(SUM)}, {v(X1P+d)}, {v(V_ONES)}, {v(SUM)}")
            A(f"v_dot2_f32_bf16 {v(SQ)}, {v(X1P+d)}, {v(X1P+d)}, {v(SQ)}")
            A(f"v_dot2_f32_bf16 {v(P0)}, {v(X1P+2+d)}, {v(V_ONES)}, {v(P0)}")
            A(f"v_dot2_f32_bf16 {v(P1)}, {v(X1P+2+d)}, {v(X1P+2+d)}, {v(P1)}")
        A.nop(3)
        self.lane_sum([SUM, SQ, P0, P1], [56, 57, 58, 59], True, True)
        self.publish([f"buffer_store_dwordx2 {v(SUM,2)}, {v(V_ST)}, {s(SRD_WS,4)}, 0 offen{{F}}",
                      f"buffer_store_dwordx2 {v(P0,2)}, {v(V_ST)}, {s(SRD_WS,4)}, 0 offen offset:128{{F}}"], tag="x1st")
        self.stamp("s2epi")
        A.wait_vm("x1st")
        self.publish([f"buffer_store_dword {v(V_TAG)}, {v(V_FS2)}, {s(SRD_WS,4)}, 0 offen{{F}}"])
        self.barrier()
        assert o["c_e"] + o["c_h"] + o["c_s2"] >= 8
        self.stamp("flag2")

        A.c("w3 rest")
        A(f"s_cmp_eq_u32 {s(S_IDLE)}, 1")
        A("s_cbranch_scc1 L_idle")
        self.idle_vm = list(A.vm)

        def park_chunk(c):
            A(f"v_add_u32 {v(TF)}, {R1 + c*32768}, {v(V_TR3)}")
            w3f = lambda st, f, c=c: (lambda o_, n: v(WF + 4 * (8 * c + st) + o_, n))
            its = self.tr_items(w3f, [TF], 8, 4096, 2048, 1, f"w3f{c}")
            for it in its:
                it()

        def colsum(c, nbg=0):
            k = 0
            for st in range(8 * c, 8 * c + 8):
                for d in range(4):
                    r = (SUM, SQ, P0, P1)[d]
                    A(f"v_dot2_f32_bf16 {v(r)}, {v(WF+4*st+d)}, {v(V_ONES)}, {v(r)}")
                if k < nbg:
                    self.bg(1)
                    k += 1
        NH = 7
        slot_of = "ABACBAC"

        def w4dma(hh):
            lds_s, lds_c = {"A": (S_L8, R2), "B": (S_L16, R3), "C": (S_L16, R3 + 8192)}[slot_of[hh]]

            def last():
                A(f"s_mov_b32 {s(S_OFF)}, 32768")
                A(f"s_cmp_eq_u32 {s(S_R4)}, {6-hh}")
                A(f"s_cselect_b32 {s(S_OFF)}, {(32768 - 7*65536) & 0xffffffff}, {s(S_OFF)}")
                A(f"v_add_u32 {v(V_WD)}, {s(S_OFF)}, {v(V_WD)}")
            return self.wdma_items(SRD_W4, [V_WD], 8, lds_s, lds_c, S_C, 32768, f"w4d{hh}", last=last)

        def w4park(hh):
            bases, off0 = {"A": ([V_A2, V_A3], 0), "B": ([V_A0, V_A1], 0), "C": ([V_A0, V_A1], 8192)}[slot_of[hh]]
            w4f = lambda st, f, hh=hh: (lambda o_, n: a(8 * (4 * hh + st) + 4 * f + o_, n))
            its = self.tr_items(w4f, bases, 4, 2048, 1024, 2, f"w4f{hh}", off0=off0)
            first = its[0]
            its[0] = lambda: (A.wait_vm(f"w4d{hh}"), first())
            return its

        def after_park(hh, items):
            first = items[0]
            items[0] = lambda: (A.wait_lg(f"w4f{hh}"), first())
            return items

        A(f"s_lshl_b32 {s(S_T0)}, {s(S_B0)}, 7")
        A(f"s_add_u32 {s(S_T0)}, {s(S_T0)}, {FL2}")
        A(f"v_lshl_add_u32 {v(TE)}, {v(V_L)}, 2, {s(S_T0)}")
        assert o["c_e"] + o["c_h"] + o["c_s2"] >= 16
        self.bg(o["c_p2"])
        park_chunk(0)
        park_chunk(1)
        AX = SCOL
        VB = SCOL + 4
        V_SA = SCOL + 8
        V_LW = SCOL + 9
        for c in range(4):
            A(f"s_add_u32 {s(S_T0)}, {s(S_R2)}, {c}")
            A(f"s_and_b32 {s(S_T0)}, {s(S_T0)}, 3")
            A(f"s_lshl_b32 {s(S_T0)}, {s(S_T0)}, 13")
            A(f"v_add_u32 {v(VB+c)}, {s(S_T0)}, {v(V_L16)}")
        A(f"s_add_u32 {s(S_T0)}, {s(S_L16)}, {R3 - R2}")
        A(f"s_sub_u32 {s(S_T0)}, {s(S_L8)}, {s(S_T0)}")
        A(f"v_add_u32 {v(V_A2)}, {s(S_T0)}, {v(V_A0)}")
        A(f"v_xor_b32 {v(V_A3)}, 64, {v(V_A2)}")
        BX0, BX1 = XRES, X1P
        for r in range(1, 4):
            A(f"v_mov_b32 {v(BX0+r)}, 0")
            A(f"v_mov_b32 {v(BX1+r)}, 0")
            A(f"v_mov_b32 {v(AX+r)}, 0")
        A(f"s_lshr_b32 {s(S_T2)}, {s(S_W)}, 1")
        A(f"s_add_u32 {s(S_T3)}, {s(S_T2)}, {s(S_B0)}")
        A(f"s_lshl_b32 {s(S_T3)}, {s(S_T3)}, 13")
        A(f"s_add_u32 {s(S_T3)}, {s(S_T3)}, {STB}")
        A(f"s_lshl_b32 {s(S_T2)}, {s(S_T2)}, 8")
        A(f"s_add_u32 {s(S_T2)}, {s(S_T2)}, {LNST}")
        A(f"s_bitcmp1_b32 {s(S_W)}, 0")
        A(f"s_cselect_b32 {s(S_T3)}, {OOB}, {s(S_T3)}")
        A(f"s_cselect_b32 {s(S_T2)}, {LNDUMMY}, {s(S_T2)}")
        A(f"v_add_u32 {v(V_SA)}, {s(S_T3)}, {v(V_L16)}")
        A(f"v_lshl_add_u32 {v(V_LW)}, {v(V_I)}, 4, {s(S_T2)}")
        for r in (SUM, SQ, P0, P1):
            A(f"v_mov_b32 {v(r)}, 0")
        A.wait_lg()

        def pre2():
            colsum(0, o.get("c_cs", 6))
            colsum(1, o.get("c_cs", 6))
            self.bg_flush()
            self.barrier()
            self.stamp("prepoll2")

        A.c("S3")
        self.poll(TE, TG, pre2)
        self.stamp("poll2")
        self.lin_dma(V_L16, 8, S_L8, R0, S_X1SRC, X1B, "x1t0")
        for i in range(8):
            so = "0" if i < 4 else s(S_4096)
            off = f" offset:{(i%4)*1024}" if i % 4 else ""
            A.vmem(f"buffer_load_dwordx4 {v(BF+4*i,4)}, {v(V_SA)}, {s(SRD_WS,4)}, {so} offen{off} sc1", "st")
        A.wait_vm("c3")
        self.barrier()
        self.stamp("b4")
        park_chunk(2)
        self.lin_dma(V_L16, 8, S_L8, R1, S_X1SRC, X1B + 32768, "x1t1")
        A.wait_lg()
        park_chunk(3)
        d0 = w4dma(0)
        self.bgq = list(d0)
        colsum(2, o.get("d_cs2", 4))
        A.wait_lg()
        self.barrier()
        colsum(3, o.get("d_cs3", 4))
        self.bg_flush()
        self.stamp("colsum")
        A(f"s_lshl_b32 {s(S_T0)}, {s(S_PG)}, 7")
        A(f"s_add_u32 {s(S_T0)}, {s(S_T0)}, {EPO}")
        A(f"v_add_f32 {v(SUM)}, {v(SUM)}, {v(SQ)}")
        A(f"v_add_f32 {v(P0)}, {v(P0)}, {v(P1)}")
        A(f"s_or_b32 {s(S_T2)}, {s(S_U)}, {s(S_W)}")
        A(f"s_cmp_eq_u32 {s(S_T2)}, 0")
        A(f"v_add_f32 {v(SUM)}, {v(SUM)}, {v(P0)}")
        A(f"s_cselect_b32 {s(S_T0)}, {s(S_T0)}, {OOB}")
        A(f"v_mov_b32 {v(TG)}, {s(S_T0)}")
        self.lane_sum([SUM], [SQ], True, False)
        self.round_to(SUM, SQ, P0)
        A(f"v_sub_f32 {v(P0)}, {v(SUM)}, {v(P0)}")
        A(f"v_cvt_pk_bf16_f32 {v(AX)}, {v(SUM)}, {v(P0)}")
        A(f"v_cmp_gt_u32 vcc, 32, {v(V_L)}")
        A.wait_vm("st")
        for i in range(1, 8):
            A(f"v_pk_add_f32 {v(BF,2)}, {v(BF,2)}, {v(BF+4*i,2)}")
            A(f"v_pk_add_f32 {v(BF+2,2)}, {v(BF+2,2)}, {v(BF+4*i+2,2)}")
        A(f"v_cndmask_b32 {v(AX)}, {v(AX+1)}, {v(AX)}, vcc")
        self.lane_sum([BF, BF + 1, BF + 2, BF + 3], [BF + 4, BF + 5, BF + 6, BF + 7], True, True)
        self.ln_scalars(BF, BF + 1, BF + 8, BF + 9, BF + 12, mpair=True)
        self.ln_scalars(BF + 2, BF + 3, BF + 10, BF + 11, BF + 12, mpair=True)
        A.lds(f"ds_write_b128 {v(V_LW)}, {v(BF+8,4)}")
        A.vmem(f"buffer_store_dword {v(V_TAG)}, {v(TG)}, {s(SRD_WS,4)}, 0 offen sc1")
        A(f"v_lshlrev_b32 {v(TE)}, 3, {v(V_J)}")
        A(f"v_add_u32 {v(TE)}, {LNST}, {v(TE)}")
        q = w4dma(1)
        q += w4park(0) + after_park(0, w4dma(2))
        n_t0 = len(q)
        q += w4park(1) + w4dma(3) + after_park(1, w4dma(4)) + w4park(2) + after_park(2, w4dma(5))
        q += w4park(3) + after_park(3, w4dma(6)) + w4park(4) + w4park(5) + w4park(6)
        self.bgq = q
        n_pre = o.get("bg_pre", 4)
        self.bg(n_pre)
        assert n_pre + o["bg_t0"] <= n_t0
        A.wait_vm("x1t0")
        A.wait_lg()
        self.barrier()
        self.stamp("b5")
        A.lds(f"ds_read_b32 {v(V_R0)}, {v(TE)}", "ln")
        A.lds(f"ds_read_b32 {v(BX0)}, {v(TE)} offset:4", "ln")
        A.lds(f"ds_read_b32 {v(V_R1)}, {v(TE)} offset:256", "ln")
        A.lds(f"ds_read_b32 {v(BX1)}, {v(TE)} offset:260", "ln")
        NB = 4
        BR = 224

        def tile_loop(t, base_off, bx, extra_ops, nbg):
            acc = ACC + 16 * t
            for st in range(NB):
                A.lds(f"ds_read_b128 {a(BR+4*(st%8),4)}, {v(VB+st//8)} offset:{base_off+(st%8)*1024}", f"b{st}")
            A.wait_lg("ln")
            A(f"v_mfma_f32_32x32x16_bf16 {v(acc,16)}, {v(AX,4)}, {v(bx,4)}, 0")
            done_bg = 0
            for st in range(32):
                if st % 2 == 0:
                    A.wait_lg(f"b{st+1}")
                A(f"v_mfma_f32_32x32x16_bf16 {v(acc,16)}, {v(WF+4*st,4)}, {a(BR+4*(st%8),4)}, {v(acc,16)}")
                if st + NB < 32:
                    n = st + NB
                    A.lds(f"ds_read_b128 {a(BR+4*(n%8),4)}, {v(VB+n//8)} offset:{base_off+(n%8)*1024}", f"b{n}")
                if extra_ops:
                    k = -(-len(extra_ops) // (32 - st))
                    for _ in range(k):
                        if extra_ops:
                            op = extra_ops.pop(0)
                            op() if callable(op) else A(op)
                want = (st + 1) * nbg // 32
                self.bg(want - done_bg)
                done_bg = want
        tile_loop(0, R0, BX0, [], o["bg_t0"])
        self.stamp("t0")
        A.wait_vm("x1t1")
        self.barrier()
        E0, GT = BF + 16, BF
        A.nop(10)
        for p in range(8):
            A(f"v_pk_mul_f32 {v(ACC+2*p,2)}, {v(ACC+2*p,2)}, {v(V_R0,2)} op_sel_hi:[1,0]")
        ga = self.gelu_a(ACC, 8, GT)
        for i, t in enumerate(ga):
            A(t)
            if i in (7, 15)[:o["bg_a"]]:
                self.bg(1)
        ops0 = self.gelu_b(ACC, 8, E0, GT, False)
        g0 = lambda: self.publish([
            f"buffer_store_dwordx4 {v(E0,4)}, {v(V_GS)}, {s(SRD_WS,4)}, 0 offen{{F}}",
            f"buffer_store_dwordx4 {v(E0+4,4)}, {v(V_GS)}, {s(SRD_WS,4)}, 0 offen offset:1024{{F}}"], sc1=o["g_sc1"], tag="gst")
        if not o.get("g0_late", 0):
            ops0.append(g0)
        tile_loop(1, R1, BX1, ops0, o["bg_t1"])
        self.stamp("t1")
        A(f"s_mov_b32 {s(S_T0)}, {GBATCH}")
        A.nop(11)
        E1 = BF + 24
        for p in range(8):
            A(f"v_pk_mul_f32 {v(ACC+16+2*p,2)}, {v(ACC+16+2*p,2)}, {v(V_R1,2)} op_sel_hi:[1,0]")
        e1 = self.gelu_a(ACC + 16, 8, GT) + self.gelu_b(ACC + 16, 8, E1, GT, True)
        nb = o["bg_e1"]
        for i, t in enumerate(e1):
            A(t)
            if nb and i % 8 == 7 and i < 8 * nb:
                self.bg(1)
        if o.get("g0_late", 0):
            g0()
        self.publish([
            f"buffer_store_dwordx4 {v(E1,4)}, {v(V_GS)}, {s(SRD_WS,4)}, {s(S_T0)} offen{{F}}",
            f"buffer_store_dwordx4 {v(E1+4,4)}, {v(V_GS)}, {s(SRD_WS,4)}, {s(S_T0)} offen offset:1024{{F}}"], sc1=o["g_sc1"], tag="gst")
        self.stamp("epi1")
        A(f"s_add_u32 {s(S_T0)}, {s(S_FRAG)}, {X1B}")
        A(f"v_add_u32 {v(TE)}, {s(S_T0)}, {v(V_L16)}")
        A.vmem(f"buffer_load_dwordx4 {v(X1P,4)}, {v(TE)}, {s(SRD_WS,4)}, 0 offen sc1", "res")
        A.wait_vm("gst")
        self.publish([f"buffer_store_dword {v(V_TAG)}, {v(V_FS3)}, {s(SRD_WS,4)}, 0 offen{{F}}"], sc1=o["g_sc1"])
        self.stamp("flag3")

        A.c("w4 rest")
        self.bg_flush()
        A("L_join:")
        A(f"s_mul_i32 {s(S_T0)}, {s(S_B)}, {GBATCH}")
        A(f"s_mul_i32 {s(S_T2)}, {s(S_W)}, {28*1024}")
        A(f"s_add_u32 {s(S_T0)}, {s(S_T0)}, {s(S_T2)}")
        A(f"s_add_u32 {s(S_T0)}, {s(S_T0)}, {GB}")
        A(f"v_add_u32 {v(TF)}, {s(S_T0)}, {v(V_L16)}")
        A.wait_vm("res")
        for p in range(4):
            A(f"v_lshlrev_b32 {v(SCOL+2*p)}, 16, {v(X1P+p)}")
            A(f"v_and_b32 {v(SCOL+2*p+1)}, 0xffff0000, {v(X1P+p)}")
        A.wait_lg()
        self.stamp("w4done")

        A.c("S4")
        A(f"s_lshl_b32 {s(S_T0)}, {s(S_PG)}, 8")
        A(f"s_mul_i32 {s(S_T2)}, {s(S_W)}, 56")
        A(f"s_add_u32 {s(S_T0)}, {s(S_T0)}, {s(S_T2)}")
        A(f"s_add_u32 {s(S_T0)}, {s(S_T0)}, {FL3}")
        A(f"v_min_u32 {v(TE)}, 13, {v(V_L)}")
        A(f"v_lshl_add_u32 {v(TE)}, {v(TE)}, 2, {s(S_T0)}")
        self.poll(TE, TG)
        self.stamp("poll3")
        def gload(i):
            if i == 0:
                A(f"s_lshl_b32 {s(S_OFF)}, {s(S_R4)}, 12")
            elif i % 4 == 0:
                A(f"s_add_u32 {s(S_OFF)}, {s(S_OFF)}, 4096")
                A(f"s_cmp_eq_u32 {s(S_OFF)}, 28672")
                A(f"s_cselect_b32 {s(S_OFF)}, 0, {s(S_OFF)}")
            off = f" offset:{(i%4)*1024}" if i % 4 else ""
            A.vmem(f"buffer_load_dwordx4 {v(WF+4*i,4)}, {v(TF)}, {s(SRD_WS,4)}, {s(S_OFF)} offen{off} sc1", f"g{i}")
        NG = o.get("g_ahead", 10)
        for i in range(NG):
            gload(i)
        VR = V_T
        for k in (1, 2, 3):
            A(f"v_xor_b32 {v(VR+k-1)}, {k*8192}, {v(V_RED)}")
        for st in range(28):
            A.wait_vm(f"g{st}")
            c0 = "0" if st == 0 else v(ACC, 16)
            c1 = "0" if st == 0 else v(ACC + 16, 16)
            A(f"v_mfma_f32_32x32x16_bf16 {v(ACC,16)}, {a(8*st,4)}, {v(WF+4*st,4)}, {c0}")
            if st + NG < 28:
                gload(st + NG)
            A(f"v_mfma_f32_32x32x16_bf16 {v(ACC+16,16)}, {a(8*st+4,4)}, {v(WF+4*st,4)}, {c1}")
        self.stamp("s4mfma")
        A.nop(12)
        for k in (1, 2, 3):
            A.lds(f"ds_write_b128 {v(V_RED)}, {v(ACC+8*k,4)} offset:{k*2048}")
            A.lds(f"ds_write_b128 {v(V_RED)}, {v(ACC+8*k+4,4)} offset:{k*2048+1024}")
        A.wait_lg()
        self.barrier()
        self.stamp("s4bar")
        for k in (1, 2, 3):
            A.lds(f"ds_read_b128 {v(BF+8*(k-1),4)}, {v(VR+k-1)} offset:{k*2048}", f"red{k}")
            A.lds(f"ds_read_b128 {v(BF+8*(k-1)+4,4)}, {v(VR+k-1)} offset:{k*2048+1024}", f"red{k}")
        for p in range(4):
            A(f"v_pk_add_f32 {v(ACC+2*p,2)}, {v(ACC+2*p,2)}, {v(SCOL+2*p,2)}")
        for k in (1, 2, 3):
            A.wait_lg(f"red{k}")
            for p in range(4):
                A(f"v_pk_add_f32 {v(ACC+2*p,2)}, {v(ACC+2*p,2)}, {v(BF+8*(k-1)+2*p,2)}")
        for p in range(4):
            A(f"v_cvt_pk_bf16_f32 {v(BF+24+p)}, {v(ACC+2*p)}, {v(ACC+2*p+1)}")
        A.vmem(f"buffer_store_dwordx2 {v(BF+24,2)}, {v(V_RO)}, {s(SRD_O,4)}, 0 offen")
        A.vmem(f"buffer_store_dwordx2 {v(BF+26,2)}, {v(V_RO)}, {s(SRD_O,4)}, 0 offen offset:16")
        self.stamp("end")
        if self.profile:
            A("s_memtime s[28:29]")
            A("s_waitcnt lgkmcnt(0)")
            A("s_sub_u32 s28, s28, s84")
            A(f"s_lshl_b32 {s(S_T0)}, s2, 2")
            A(f"s_add_u32 {s(S_T0)}, {s(S_T0)}, {s(S_W)}")
            A(f"s_lshl_b32 {s(S_T0)}, {s(S_T0)}, 7")
            A(f"s_add_u32 {s(S_T0)}, {s(S_T0)}, {PROF}")
            A(f"v_mov_b32 {v(V_T)}, {s(S_T0)}")
            for i in range(self.nstamp):
                A(f"v_mov_b32 {v(V_T+1)}, {s(S_STAMP+2*i)}")
                A(f"buffer_store_dword {v(V_T+1)}, {v(V_T)}, {s(SRD_WS,4)}, 0 offen offset:{4*i}")
            A(f"v_mov_b32 {v(V_T+1)}, s28")
            A(f"buffer_store_dword {v(V_T+1)}, {v(V_T)}, {s(SRD_WS,4)}, 0 offen offset:{4*31}")
        A("L_end:")
        A("s_endpgm")
        self.idle_block()
        for b in self.slow_blocks:
            A(b)
        A("L_code_end:")
        A("s_endpgm")

    def w3_items(self):
        A = self.A
        items = []
        for c in range(4):
            for i in range(8):
                def item(c=c, i=i):
                    k = i % 4
                    if k == 0:
                        A(f"s_add_u32 m0, {s(S_L8)}, {R1 + c*32768 + 1024*i}")
                        if c == 0 and i == 0:
                            A("s_nop 0")
                        elif i == 4:
                            A(f"v_add_u32 {v(V_W3D)}, {16*3584}, {v(V_W3D)}")
                        else:
                            A(f"s_mov_b32 {s(S_OFF)}, {(128-16)*3584}")
                            A(f"s_cmp_eq_u32 {s(S_R2)}, {4-c}")
                            A(f"s_cselect_b32 {s(S_OFF)}, {((128-16-512)*3584) & 0xffffffff}, {s(S_OFF)}")
                            A(f"v_add_u32 {v(V_W3D)}, {s(S_OFF)}, {v(V_W3D)}")
                    so = "0" if k == 0 else s(S_D + k - 1)
                    off = f" offset:{1024*k}" if k else ""
                    A.vmem(f"buffer_load_dwordx4 {v(V_W3D)}, {s(SRD_W3,4)}, {so} offen{off} lds", f"c{c}")
                items.append(item)
        return items

    def idle_block(self):
        A = self.A
        o = self.o
        A.vm = list(self.idle_vm)
        A.lg = []
        A("L_idle:")
        if o["t_idle"]:
            A(f"s_lshl_b32 {s(S_T0)}, {s(S_PG)}, 1")
            A(f"s_lshr_b32 {s(S_T1)}, {s(S_U)}, 3")
            A(f"s_add_u32 {s(S_T0)}, {s(S_T0)}, {s(S_T1)}")
            A(f"s_lshl_b32 {s(S_T0)}, {s(S_T0)}, 2")
            A(f"s_add_u32 {s(S_T0)}, {s(S_T0)}, {s(S_W)}")
            A(f"s_mul_i32 {s(S_T0)}, {s(S_T0)}, {112*128}")
            A(f"v_lshl_add_u32 {v(TG)}, {v(V_L)}, 7, {s(S_T0)}")
            A(f"v_cmp_gt_u32 vcc, 56, {v(V_L)}")
            A(f"v_mov_b32 {v(TH)}, {OOB:#x}")
            A(f"s_mov_b32 {s(S_T1)}, {56*128}")
            A(f"v_cndmask_b32 {v(TG)}, {v(TH)}, {v(TG)}, vcc")
            self.touch(TG, SRD_W4)
            self.touch(TG, SRD_W4, s(S_T1))
        if o["t_g"] == 1 and not o["g_sc1"]:
            A(f"s_lshr_b32 {s(S_T0)}, {s(S_U)}, 3")
            A(f"s_lshl_b32 {s(S_T0)}, {s(S_T0)}, 2")
            A(f"s_add_u32 {s(S_T0)}, {s(S_T0)}, {s(S_W)}")
            A(f"s_mul_i32 {s(S_T0)}, {s(S_T0)}, {224*128}")
            A(f"s_mul_i32 {s(S_T1)}, {s(S_B0)}, {GBATCH}")
            A(f"s_add_u32 {s(S_T0)}, {s(S_T0)}, {s(S_T1)}")
            A(f"s_add_u32 {s(S_T0)}, {s(S_T0)}, {GB}")
            A(f"v_lshl_add_u32 {v(TF)}, {v(V_L)}, 7, {s(S_T0)}")
            A(f"v_cmp_gt_u32 vcc, 56, {v(V_L)}")
            A(f"v_mov_b32 {v(TH)}, {OOB:#x}")
            A("s_nop 0")
            A(f"v_cndmask_b32 {v(TF)}, {v(TH)}, {v(TF)}, vcc")
            for i in range(4):
                A(f"s_mov_b32 {s(S_T1)}, {i*56*128}")
                self.touch(TF, SRD_WS, s(S_T1))
        A(f"s_mul_i32 {s(S_T4)}, {s(S_W)}, 40960")
        A(f"s_add_u32 {s(S_T0)}, {s(S_L16)}, {R3}")
        A(f"s_sub_u32 {s(S_T0)}, {s(S_T4)}, {s(S_T0)}")
        A(f"v_add_u32 {v(V_A2)}, {s(S_T0)}, {v(V_A0)}")
        A(f"v_xor_b32 {v(V_A3)}, 64, {v(V_A2)}")

        def dma(hh):
            def last():
                A(f"s_mov_b32 {s(S_OFF)}, 32768")
                A(f"s_cmp_eq_u32 {s(S_R4)}, {6-hh}")
                A(f"s_cselect_b32 {s(S_OFF)}, {(32768 - 7*65536) & 0xffffffff}, {s(S_OFF)}")
                A(f"v_add_u32 {v(V_WD)}, {s(S_OFF)}, {v(V_WD)}")
            for it in self.wdma_items(SRD_W4, [V_WD], 8, S_T4, (hh % 5) * 8192, S_C, 32768, f"i4d{hh}", last=last):
                it()

        def park(hh):
            w4f = lambda st, f, hh=hh: (lambda o_, n: a(8 * (4 * hh + st) + 4 * f + o_, n))
            A.wait_vm(f"i4d{hh}")
            for it in self.tr_items(w4f, [V_A2, V_A3], 4, 2048, 1024, 2, f"i4f{hh}", off0=(hh % 5) * 8192):
                it()
        for hh in range(5):
            dma(hh)
        park(0)
        park(1)
        A.wait_lg()
        dma(5)
        dma(6)
        A(f"s_add_u32 {s(S_T0)}, {s(S_FRAG)}, {X1B}")
        A(f"v_add_u32 {v(TE)}, {s(S_T0)}, {v(V_L16)}")
        A.vmem(f"buffer_load_dwordx4 {v(X1P,4)}, {v(TE)}, {s(SRD_WS,4)}, 0 offen sc1", "res")
        for hh in range(2, 7):
            park(hh)
        A("s_waitcnt vmcnt(0) lgkmcnt(0)")
        A("s_branch L_join")

    def poll1(self, HP, between=None):
        A = self.A
        L, Ld, Ln, Lg = A.label("L_p1"), A.label("L_p1d"), A.label("L_p1n"), A.label("L_p1g")
        A(f"v_lshl_add_u32 {v(TH)}, {v(V_I)}, 3, {s(S_HSP)}")
        A.vmem(f"buffer_load_dword {v(TG)}, {v(TE)}, {s(SRD_WS,4)}, 0 offen sc1", "poll")
        A.vmem(f"buffer_load_dwordx2 {v(SUM,2)}, {v(TH)}, {s(SRD_WS,4)}, 0 offen sc1", "poll")
        if between:
            between()
        A(f"s_mov_b32 {s(S_MODE)}, 1")
        A(f"s_mov_b32 {s(S_CNT)}, 0x8000")
        A.wait_vm("poll")
        A(f"v_cmp_ne_u32 vcc, {s(S_TAG)}, {v(SUM)}")
        A(f"v_cmp_ne_u32 {s(S_EX,2)}, {s(S_TAG)}, {v(TG)}")
        A(f"v_cmp_ne_u32 {s(16,2)}, {s(S_XCC)}, {v(SQ)}")
        A("s_nop 3")
        A(f"s_or_b64 vcc, vcc, {s(S_EX,2)}")
        A(f"s_or_b64 vcc, vcc, {s(16,2)}")
        A(f"s_cbranch_scc1 {L}")
        A(f"{Ld}:")
        blk = f"""{L}:
s_mov_b32 {s(S_MODE)}, 0
buffer_load_dword {v(TG)}, {v(TE)}, {s(SRD_WS,4)}, 0 offen sc1
buffer_load_dwordx2 {v(SUM,2)}, {v(TH)}, {s(SRD_WS,4)}, 0 offen sc1
s_sub_u32 {s(S_CNT)}, {s(S_CNT)}, 1
s_cmp_eq_u32 {s(S_CNT)}, 0
s_cbranch_scc1 {Ld}
s_waitcnt vmcnt(0)
v_cmp_ne_u32 vcc, {s(S_TAG)}, {v(SUM)}
v_cmp_ne_u32 {s(S_EX,2)}, {s(S_TAG)}, {v(TG)}
s_nop 4
s_cmp_eq_u64 vcc, 0
s_cbranch_scc0 {L}
v_cmp_ne_u32 vcc, {s(S_XCC)}, {v(SQ)}
s_nop 4
s_cmp_eq_u64 vcc, 0
s_cbranch_scc0 {Ln}
s_cmp_eq_u64 {s(S_EX,2)}, 0
s_cbranch_scc0 {L}
s_mov_b32 {s(S_MODE)}, 1
s_branch {Ld}
{Ln}:
buffer_store_dwordx2 {v(HP,2)}, {v(V_FO)}, {s(SRD_WS,4)}, 0 offen sc1
buffer_store_dwordx2 {v(HP+2,2)}, {v(V_FO)}, {s(SRD_WS,4)}, 0 offen offset:256 sc1
v_add_u32 {v(TG)}, {FL1G-FL1}, {v(V_FS1)}
s_waitcnt vmcnt(0)
buffer_store_dword {v(V_TAG)}, {v(TG)}, {s(SRD_WS,4)}, 0 offen sc1
v_add_u32 {v(TE)}, {FL1G-FL1}, {v(TE)}
{Lg}:
buffer_load_dword {v(TG)}, {v(TE)}, {s(SRD_WS,4)}, 0 offen sc1
s_sub_u32 {s(S_CNT)}, {s(S_CNT)}, 1
s_cmp_eq_u32 {s(S_CNT)}, 0
s_cbranch_scc1 {Ld}
s_waitcnt vmcnt(0)
v_cmp_ne_u32 vcc, {s(S_TAG)}, {v(TG)}
s_nop 4
s_cmp_eq_u64 vcc, 0
s_cbranch_scc0 {Lg}
s_branch {Ld}"""
        self.slow_blocks.append(blk)


HEADER = """; Kernarg layout: x, w1, w2, w3, w4, out, debug, ws (8 pointers)
; @launch grid=(256,1,1) block=(256,1,1) lds=163840
.amdgcn_target "amdgcn-amd-amdhsa--gfx950"
.text
.globl {name}_kernel
.p2align 8
.type {name}_kernel,@function
{name}_kernel:
"""
FOOTER = """.section .rodata,"a"
.p2align 6
.amdhsa_kernel {name}_kernel
  .amdhsa_next_free_vgpr 512
  .amdhsa_next_free_sgpr 102
  .amdhsa_accum_offset 256
  .amdhsa_group_segment_fixed_size 0
  .amdhsa_kernarg_size 64
  .amdhsa_user_sgpr_count 2
  .amdhsa_user_sgpr_kernarg_segment_ptr 1
  .amdhsa_system_sgpr_workgroup_id_x 1
  .amdhsa_float_denorm_mode_32 3
.end_amdhsa_kernel
"""


def generate(**kw):
    g = Gen(**kw)
    g.build()
    return HEADER.format(name=NAME) + g.A.text() + FOOTER.format(name=NAME), g


if __name__ == "__main__":
    import argparse
    ap = argparse.ArgumentParser()
    ap.add_argument("-o", default="cdna_kernels/" + NAME + ".s")
    ap.add_argument("--mode", default="auto", choices=["auto", "local", "global"])
    ap.add_argument("--profile", action="store_true")
    ap.add_argument("--opt", action="append", default=[])
    args = ap.parse_args()
    opts = {}
    for t in args.opt:
        k, val = t.split("=")
        opts[k] = val.split(",") if k == "stamps" else int(val)
    txt, g = generate(local={"auto": None, "local": True, "global": False}[args.mode], profile=args.profile, opts=opts)
    open(args.o, "w").write(txt)
    print("instructions:", g.A.ninstr, "stamps:", g.nstamp, ",".join(g.stamp_names))
    if args.profile:
        open(args.o, "a").write("; STAMPS " + ",".join(g.stamp_names) + "\n")
```

```python
import sys
import os
import struct
sys.path.insert(0, os.path.dirname(os.path.abspath(__file__)))
from asmlib import Asm, v, a, s

NAME = "standalone__mixer_s_mlp__sampling"

HB = 0
X1B = 1 << 20
GB = 2 << 20
GBATCH = 112 * 1024
STB = 6 << 20
FL = 7 << 20
FL1 = FL
FL1G = FL + 0x1000
FL2 = FL + 0x2000
FL3 = FL + 0x3000
EPO = FL + 0x4000
HS = FL + 0x5000
PROF = FL + 0x10000
WS_SIZE = 8 << 20
OOB = 0x80000000

R0, R1, R2, R3, R4 = 0, 32768, 65536, 98304, 131072
PART = R4 + 32768 - 1024
LNST = R3 + 3 * 16384 + 8192
LNDUMMY = LNST + 1024

S_T0, S_T1 = 3, 4
S_J, S_M, S_B, S_U, S_B0, S_PG, S_W = 5, 6, 7, 8, 9, 10, 11
S_TAG = 12
S_T2, S_T3 = 14, 15
SRD_X, SRD_W1, SRD_W2, SRD_W3, SRD_W4, SRD_WS, SRD_O = 16, 20, 24, 32, 36, 40, 44
S_KA = 48
S_L8, S_L16, S_L4 = 48, 49, 50
S_C = 51
S_D = 54
S_R4 = 57
S_EX = 58
S_A, S_R2, S_MODE, S_XCC = 60, 61, 62, 63
S_OFF, S_CNT, S_4096, S_T4 = 64, 65, 66, 67
S_K2 = 68
S_PC = 70
S_FRAG, S_HSRC, S_X1SRC, S_FLO, S_SL, S_IDLE, S_HSP, S_GW, S_HSV = 72, 73, 74, 75, 76, 77, 78, 79, 80
S_R2W = 81
S_HP = 82
S_STAMP = 86

V_L, V_H, V_J, V_L16 = 0, 1, 2, 3
V_WD = 4
V_W2D = 5
V_W1D = 6
V_XD = 8
V_Q, V_I = 9, 10
V_W3D, V_TR3 = 11, 12
V_RED = 13
V_K1 = 14
V_T = 16
SUM, SQ, P0, P1 = 20, 21, 22, 23
TE, TF, TG, TH = 24, 25, 26, 27
V_GS, V_HSH, V_FO, V_RO = 28, 29, 30, 31
ACC = 32
SCOL = 64
BF = 80
X1P = 112
XRES = 116
V_A0, V_A1 = 120, 121
V_R0, V_Q0, V_R1, V_Q1 = 122, 123, 124, 125
V_ONES = 126
V_TAG = 127
WF = 128
JUNK = 15
V_FS1, V_FS2, V_FS3 = 8, 6, 7
V_A2, V_A3 = 18, 19
V_ST = 5


def f2u(x):
    return struct.unpack("<I", struct.pack("<f", x))[0]


class Gen:
    def __init__(self, local=None, profile=False, opts=None):
        self.A = Asm()
        self.force = local
        self.profile = profile
        self.nstamp = 0
        self.stamp_names = []
        self.slow_blocks = []
        self.bgq = []
        self.m0 = None
        self.o = dict(codepf=1, t_ex=1, g_sc1=0, t_g=4, w2rot_a=1, qord=1, t_w2=1, mimic_ln=0, rot=1, xrot=1, t_idle=1,
                      w2_s1=16, w2_pre=5, s1_stages=1,
                      c_f1=6,
                      c_e=4,
                      c_h=0,
                      c_s2=10,
                      c_p2=6,
                      bg_t0=16, bg_a=2, bg_t1=22, bg_e1=4)
        if opts:
            self.o.update(opts)

    def stamp(self, name="?"):
        if not self.profile:
            return
        want = self.o.get("stamps")
        if want is not None and name not in want:
            return
        A = self.A
        r = S_STAMP + 2 * self.nstamp
        assert r + 1 <= 101, "too many stamps"
        self.nstamp += 1
        self.stamp_names.append(name)
        A(f"s_memrealtime {s(r,2)}")
        A.force_lg0 = True

    def bg(self, n=1):
        for _ in range(n):
            if self.bgq:
                self.bgq.pop(0)()

    def bg_flush(self):
        self.bg(len(self.bgq))

    def wdma_items(self, srd, vaddrs, n, lds_sgpr, lds_const, consts, group_step, tag, xor=False, last=None):
        A = self.A
        items = []
        for i in range(n):
            def item(i=i):
                k = i % 4
                want = (lds_sgpr, lds_const + 1024 * (i - k))
                if k and self.m0 != want:
                    A(f"s_add_u32 m0, {s(lds_sgpr)}, {want[1]}")
                    A("s_nop 0")
                    self.m0 = want
                if k == 0:
                    A(f"s_add_u32 m0, {s(lds_sgpr)}, {lds_const + 1024*i}")
                    self.m0 = want
                    if i == 0:
                        A("s_nop 0")
                    else:
                        g = i // 4
                        for va in sorted(set(vaddrs)):
                            if xor:
                                A(f"v_xor_b32 {v(va)}, {(g ^ (g-1))*group_step}, {v(va)}")
                            else:
                                A(f"v_add_u32 {v(va)}, {group_step}, {v(va)}")
                so = "0" if k == 0 else s(consts + k - 1)
                off = f" offset:{1024*k}" if k else ""
                A.vmem(f"buffer_load_dwordx4 {v(vaddrs[i % len(vaddrs)])}, {s(srd,4)}, {so} offen{off} lds", tag)
                if i == n - 1:
                    if last:
                        last()
                    elif not xor:
                        for va in sorted(set(vaddrs)):
                            A(f"v_add_u32 {v(va)}, {group_step}, {v(va)}")
            items.append(item)
        return items

    def lin_dma(self, vaddr, n, lds_sgpr, lds_const, g_sgpr, g_const, tag):
        A = self.A
        for i in range(n):
            if i % 4 == 0:
                A(f"s_add_u32 m0, {s(lds_sgpr)}, {lds_const + 1024*i}")
                self.m0 = (lds_sgpr, lds_const + 1024 * i)
                A(f"s_add_u32 {s(S_OFF)}, {s(g_sgpr)}, {g_const + 1024*i}")
            off = f" offset:{1024*(i%4)}" if i % 4 else ""
            A.vmem(f"buffer_load_dwordx4 {v(vaddr)}, {s(SRD_WS,4)}, {s(S_OFF)} offen{off} sc1 lds", tag)

    def tr_items(self, dst_fn, base_v, nsteps, step_bytes, second, tiles, tag, off0=0):
        A = self.A
        items = []
        for st in range(nsteps):
            for f in range(tiles):
                def item(st=st, f=f):
                    reg = dst_fn(st, f)
                    bv = base_v[f]
                    A.lds(f"ds_read_b64_tr_b16 {reg(0,2)}, {v(bv)} offset:{off0+st*step_bytes}", tag)
                    A.lds(f"ds_read_b64_tr_b16 {reg(2,2)}, {v(bv)} offset:{off0+st*step_bytes+second}", tag)
                items.append(item)
        return items

    def publish(self, stores, sc1=False, tag=None):
        A = self.A
        if sc1 or self.force is False:
            for t in stores:
                A.vmem(t.replace("{F}", " sc1"), tag)
            return
        if self.force is True:
            for t in stores:
                A.vmem(t.replace("{F}", ""), tag)
            return
        Ls, Lb = A.label("L_slow"), A.label("L_back")
        A(f"s_cmp_eq_u32 {s(S_MODE)}, 1")
        A(f"s_cbranch_scc0 {Ls}")
        for t in stores:
            A.vmem(t.replace("{F}", ""), tag)
        A(f"{Lb}:")
        blk = [f"{Ls}:"] + [t.replace("{F}", " sc1") for t in stores] + [f"s_branch {Lb}"]
        self.slow_blocks.append("\n".join(blk))

    def poll(self, vaddr, vtmp, between=None):
        A = self.A
        L = A.label("L_poll")
        Ld = A.label("L_polld")
        A.vmem(f"buffer_load_dword {v(vtmp)}, {v(vaddr)}, {s(SRD_WS,4)}, 0 offen sc1", "poll")
        if between:
            between()
        A.wait_vm("poll")
        A(f"v_cmp_ne_u32 vcc, {s(S_TAG)}, {v(vtmp)}")
        A(f"s_mov_b32 {s(S_CNT)}, 0x8000")
        A("s_nop 3")
        A("s_cmp_eq_u64 vcc, 0")
        A(f"s_cbranch_scc0 {L}")
        A(f"{Ld}:")
        blk = f"""{L}:
buffer_load_dword {v(vtmp)}, {v(vaddr)}, {s(SRD_WS,4)}, 0 offen sc1
s_sub_u32 {s(S_CNT)}, {s(S_CNT)}, 1
s_cmp_eq_u32 {s(S_CNT)}, 0
s_cbranch_scc1 {Ld}
s_waitcnt vmcnt(0)
v_cmp_ne_u32 vcc, {s(S_TAG)}, {v(vtmp)}
s_nop 4
s_cmp_eq_u64 vcc, 0
s_cbranch_scc0 {L}
s_branch {Ld}"""
        self.slow_blocks.append(blk)

    def barrier(self):
        self.A("s_barrier")

    def gelu_a(self, src, n, t0):
        ops = []
        for p in range(n):
            ops.append(f"v_pk_mul_f32 {v(t0+2*p,2)}, {v(src+2*p,2)}, {v(src+2*p,2)}")
        for p in range(n):
            ops.append(f"v_pk_fma_f32 {v(t0+2*p,2)}, {v(t0+2*p,2)}, {s(S_K2,2)}, {v(V_K1,2)} op_sel_hi:[1,1,0]")
        for p in range(n):
            ops.append(f"v_pk_mul_f32 {v(t0+2*p,2)}, {v(t0+2*p,2)}, {v(src+2*p,2)}")
        return ops

    def gelu_b(self, src, n, dst, t0, packed):
        ops = []
        for e in range(2 * n):
            ops.append(f"v_exp_f32 {v(t0+e)}, {v(t0+e)}")
        if packed:
            for p in range(n):
                ops.append(f"v_pk_add_f32 {v(t0+2*p,2)}, {v(t0+2*p,2)}, 1.0 op_sel_hi:[1,0]")
        else:
            for e in range(2 * n):
                ops.append(f"v_add_f32 {v(t0+e)}, 1.0, {v(t0+e)}")
        for e in range(2 * n):
            ops.append(f"v_rcp_f32 {v(t0+e)}, {v(t0+e)}")
        if packed:
            for p in range(n):
                ops.append(f"v_pk_mul_f32 {v(t0+2*p,2)}, {v(t0+2*p,2)}, {v(src+2*p,2)}")
        else:
            for e in range(2 * n):
                ops.append(f"v_mul_f32 {v(t0+e)}, {v(t0+e)}, {v(src+e)}")
        for p in range(n):
            ops.append(f"v_cvt_pk_bf16_f32 {v(dst+p)}, {v(t0+2*p)}, {v(t0+2*p+1)}")
        return ops

    def round_bf16(self, reg, tmp):
        A = self.A
        A(f"v_cvt_pk_bf16_f32 {v(tmp)}, {v(reg)}, {v(reg)}")
        A(f"v_lshlrev_b32 {v(reg)}, 16, {v(tmp)}")

    def round_to(self, src, tmp, dst):
        A = self.A
        A(f"v_cvt_pk_bf16_f32 {v(tmp)}, {v(src)}, {v(src)}")
        A(f"v_lshlrev_b32 {v(dst)}, 16, {v(tmp)}")

    def ln_scalars(self, vsum, vsq, vr, vq, t, mpair=False):
        A = self.A
        if not self.o["mimic_ln"]:
            A(f"v_mul_f32 {v(vsum)}, 0xbb000000, {v(vsum)}")
            A(f"v_mul_f32 {v(vsq)}, 0x3b000000, {v(vsq)}")
            A(f"v_fma_f32 {v(vsq)}, -{v(vsum)}, {v(vsum)}, {v(vsq)}")
            A(f"v_max_f32 {v(vsq)}, 0, {v(vsq)}")
            A(f"v_add_f32 {v(vsq)}, 0x3727c5ac, {v(vsq)}")
            A(f"v_rsq_f32 {v(vr)}, {v(vsq)}")
            if mpair:
                A(f"v_cvt_pk_bf16_f32 {v(vq)}, {v(vsum)}, {v(vsum)}")
            else:
                A("s_nop 0")
                A(f"v_mul_f32 {v(vq)}, {v(vsum)}, {v(vr)}")
            return
        A(f"v_mul_f32 {v(vsum)}, 0x3b000000, {v(vsum)}")
        A(f"v_mul_f32 {v(vsq)}, 0x3b000000, {v(vsq)}")
        A(f"v_fma_f32 {v(vsq)}, -{v(vsum)}, {v(vsum)}, {v(vsq)}")
        A(f"v_max_f32 {v(vsq)}, 0, {v(vsq)}")
        if mpair:
            A(f"v_sub_f32 {v(vsum)}, 0, {v(vsum)}")
            A(f"v_cvt_pk_bf16_f32 {v(vq)}, {v(vsum)}, {v(vsum)}")
        else:
            self.round_bf16(vsum, t)
        self.round_bf16(vsq, t)
        A(f"v_add_f32 {v(vsq)}, 0x3727c5ac, {v(vsq)}")
        self.round_bf16(vsq, t)
        A(f"v_sqrt_f32 {v(vsq)}, {v(vsq)}")
        A("s_nop 0")
        self.round_bf16(vsq, t)
        A(f"v_rcp_f32 {v(vr)}, {v(vsq)}")
        if not mpair:
            A("s_nop 0")
            A(f"v_mul_f32_e64 {v(vq)}, -{v(vsum)}, {v(vr)}")

    def lane_sum(self, regs, tmps, x32=True, x16=False):
        A = self.A
        for op, on in (("v_permlane32_swap_b32", x32), ("v_permlane16_swap_b32", x16)):
            if not on:
                continue
            for r, t in zip(regs, tmps):
                A(f"v_mov_b32 {v(t)}, {v(r)}")
            A.nop(max(0, 3 - len(regs)) if len(regs) < 3 else 0)
            if len(regs) >= 3:
                A("s_nop 0")
            for r, t in zip(regs, tmps):
                A(f"{op} {v(r)}, {v(t)}")
            A("s_nop 1")
            for r, t in zip(regs, tmps):
                A(f"v_add_f32 {v(r)}, {v(r)}, {v(t)}")

    def touch(self, vaddr, srd, so="0"):
        self.A.vmem(f"buffer_load_dword {v(JUNK)}, {v(vaddr)}, {s(srd,4)}, {so} offen", "touch")

    def wave0_addr(self, vdst, sreg):
        A = self.A
        A(f"s_cmp_eq_u32 {s(S_W)}, 0")
        A(f"s_cselect_b32 {s(sreg)}, {s(sreg)}, {OOB}")
        A(f"v_mov_b32 {v(vdst)}, {s(sreg)}")

    def build(self):
        A = self.A
        o = self.o
        T = V_T
        A("s_cmp_ge_u32 s2, 256")
        A("s_cbranch_scc1 L_end")
        A(f"s_load_dwordx16 {s(S_KA,16)}, s[0:1], 0")
        if self.profile:
            A("s_memtime s[84:85]")
        self.stamp("start")
        A(f"v_lshrrev_b32 {v(T)}, 6, v0")
        A(f"v_and_b32 {v(V_L)}, 63, v0")
        A(f"s_lshr_b32 {s(S_J)}, s2, 3")
        A(f"v_readfirstlane_b32 {s(S_W)}, {v(T)}")
        A(f"s_and_b32 {s(S_M)}, {s(S_J)}, 7")
        A(f"s_and_b32 {s(S_T0)}, s2, 7")
        A(f"s_lshl_b32 {s(S_B)}, {s(S_T0)}, 2")
        A(f"s_lshr_b32 {s(S_T1)}, {s(S_J)}, 3")
        A(f"s_add_u32 {s(S_B)}, {s(S_B)}, {s(S_T1)}")
        A(f"v_lshrrev_b32 {v(V_Q)}, 4, {v(V_L)}")
        A(f"v_and_b32 {v(V_I)}, 15, {v(V_L)}")
        A(f"v_lshrrev_b32 {v(T)}, 3, {v(V_L)}")
        A(f"v_lshlrev_b32 {v(T)}, 10, {v(T)}")
        A(f"v_and_b32 {v(T+1)}, 7, {v(V_L)}")
        A(f"s_and_b32 {s(S_T0)}, {s(S_W)}, 1")
        A(f"s_lshl_b32 {s(S_T0)}, {s(S_T0)}, 2")
        A(f"v_xor_b32 {v(T+2)}, {v(T+1)}, {v(V_Q)}")
        A(f"v_xor_b32 {v(T+2)}, {s(S_T0)}, {v(T+2)}")
        A(f"v_lshl_add_u32 {v(T+2)}, {v(T+2)}, 4, {v(T)}")
        A(f"s_lshl_b32 {s(S_T0)}, {s(S_B)}, 15")
        A(f"s_lshl_b32 {s(S_T1)}, {s(S_W)}, 13")
        A(f"s_add_u32 {s(S_HSRC)}, {s(S_T0)}, {s(S_T1)}")
        A(f"v_add_u32 {v(V_XD)}, {s(S_HSRC)}, {v(T+2)}")
        A(f"v_and_b32 {v(T+2)}, 1, {v(V_Q)}")
        A(f"v_lshlrev_b32 {v(T+2)}, 1, {v(T+2)}")
        A(f"v_xor_b32 {v(T+2)}, {v(T+1)}, {v(T+2)}")
        A(f"v_lshl_add_u32 {v(T+2)}, {v(T+2)}, 4, {v(T)}")
        A(f"s_lshl_b32 {s(S_T0)}, {s(S_M)}, 7")
        A(f"s_lshl_b32 {s(S_T1)}, {s(S_W)}, 15")
        A(f"s_add_u32 {s(S_T1)}, {s(S_T1)}, {s(S_T0)}")
        if o["rot"]:
            A(f"s_lshr_b32 {s(S_T0)}, {s(S_J)}, 3")
            A(f"s_lshl_b32 {s(S_T0)}, {s(S_T0)}, 17")
            A(f"s_add_u32 {s(S_T1)}, {s(S_T1)}, {s(S_T0)}")
        A(f"v_add_u32 {v(V_W1D)}, {s(S_T1)}, {v(T+2)}")
        A(f"v_xor_b32 {v(V_W1D+1)}, 64, {v(V_W1D)}")
        for srd, size in ((SRD_X, 1 << 20), (SRD_W1, 1 << 19), (SRD_WS, WS_SIZE), (SRD_W2, 1 << 19), (SRD_W3, 512 * 3584),
                          (SRD_W4, 1792 * 1024), (SRD_O, 1 << 20)):
            A(f"s_mov_b32 {s(srd+2)}, {size}")
            A(f"s_mov_b32 {s(srd+3)}, 0x20000")
        A(f"s_lshr_b32 {s(S_PG)}, {s(S_B)}, 1")
        A(f"s_and_b32 {s(S_U)}, {s(S_J)}, 15")
        A(f"s_and_b32 {s(S_B0)}, {s(S_B)}, 0xfe")
        A(f"s_cmp_gt_u32 {s(S_U)}, 3")
        A(f"s_cselect_b32 {s(S_T0)}, 1, 0")
        A(f"s_sub_u32 {s(S_SL)}, {s(S_U)}, {s(S_T0)}")
        A(f"s_cmp_gt_u32 {s(S_U)}, 11")
        A(f"s_cselect_b32 {s(S_T0)}, 1, 0")
        A(f"s_sub_u32 {s(S_SL)}, {s(S_SL)}, {s(S_T0)}")
        A(f"s_cmp_eq_u32 {s(S_M)}, 3")
        A(f"s_cselect_b32 {s(S_IDLE)}, 1, 0")
        if o["codepf"]:
            A(f"s_getpc_b64 {s(S_PC,2)}")
            A("L_pc0:")
            A(f"s_lshl_b32 {s(S_T3)}, {s(S_J)}, 2")
            A(f"s_add_u32 {s(S_T3)}, {s(S_T3)}, {s(S_W)}")
            A(f"s_lshl_b32 {s(S_T3)}, {s(S_T3)}, 8")
            A(f"v_lshl_add_u32 {v(TE)}, {v(V_L)}, 7, {s(S_T3)}")
            A(f"s_mov_b32 {s(S_T4)}, L_code_end-L_pc0")
            A(f"v_cmp_gt_u32 vcc, 2, {v(V_L)}")
        def code_pf(ex):
            A(f"v_cmp_gt_u32 {s(ex,2)}, {s(S_T4)}, {v(TE)}")
            A("s_nop 1")
            A(f"s_and_b64 vcc, vcc, {s(ex,2)}")
            A(f"s_and_saveexec_b64 {s(ex,2)}, vcc")
            A("s_cbranch_execz L_nopf")
            A(f"global_load_dword {v(JUNK)}, {v(TE)}, {s(S_PC,2)}")
            A("L_nopf:")
            A(f"s_mov_b64 exec, {s(ex,2)}")
        if o["codepf"] == 2:
            code_pf(28)

        A("s_waitcnt lgkmcnt(0)")
        order = (SRD_X, SRD_W1, SRD_W2, SRD_W3, SRD_W4, SRD_O, None, SRD_WS)
        for i in (0, 1):
            A(f"s_mov_b32 {s(order[i])}, {s(S_KA+2*i)}")
            A(f"s_mov_b32 {s(order[i]+1)}, {s(S_KA+2*i+1)}")
        def tlb_warm():
            for srd, off in ((SRD_WS, 0), (SRD_W2, 0), (SRD_W3, 0), (SRD_WS, 2 << 20), (SRD_W4, 0), (SRD_WS, 4 << 20), (SRD_O, 0)):
                if off:
                    A(f"s_mov_b32 {s(S_T1)}, {off}")
                A.vmem(f"buffer_load_dword {v(JUNK)}, off, {s(srd,4)}, {s(S_T1) if off else 0}", "touch")
        if o.get("tlbw", 0) == 1:
            for i in (7, 2, 3, 4, 5):
                A(f"s_mov_b32 {s(order[i])}, {s(S_KA+2*i)}")
                A(f"s_mov_b32 {s(order[i]+1)}, {s(S_KA+2*i+1)}")
            tlb_warm()
        A(f"s_lshl_b32 {s(S_T0)}, {s(S_W)}, 13")
        for i in range(8):
            A(f"s_add_u32 m0, {s(S_T0)}, {R0 + 896*i}")
            A("s_nop 0")
            off = f" offset:{128*i}" if i else ""
            A.vmem(f"buffer_load_dwordx4 {v(V_XD)}, {s(SRD_X,4)}, 0 offen{off} lds", "x" if i == 7 else f"x{i}")
        for i in (7, 2, 3, 4, 5):
            A(f"s_mov_b32 {s(order[i])}, {s(S_KA+2*i)}")
            A(f"s_mov_b32 {s(order[i]+1)}, {s(S_KA+2*i+1)}")
        A(f"s_lshl_b32 {s(S_L8)}, {s(S_W)}, 13")
        A(f"s_lshl_b32 {s(S_L16)}, {s(S_W)}, 14")
        A(f"s_lshl_b32 {s(S_L4)}, {s(S_W)}, 12")
        for k in (1, 2, 3):
            A(f"s_mov_b32 {s(S_C+k-1)}, {7168*k}")

        def w1stage(p):
            self.m0 = ("w1", p)
            A(f"s_add_u32 m0, {s(S_L4)}, {R1 + p*16384}")
            if p:
                A(f"v_xor_b32 {v(V_W1D)}, {(p ^ (p-1))*131072}, {v(V_W1D)}")
                A(f"v_xor_b32 {v(V_W1D+1)}, {(p ^ (p-1))*131072}, {v(V_W1D+1)}")
            else:
                A("s_nop 0")
            for k in range(4):
                so = "0" if k == 0 else s(S_C + k - 1)
                off = f" offset:{1024*k}" if k else ""
                A.vmem(f"buffer_load_dwordx4 {v(V_W1D + (k & 1))}, {s(SRD_W1,4)}, {so} offen{off} lds", f"w1_{p}")
        w1stage(0)
        if o.get("tlbw", 0) == 2:
            tlb_warm()
        if o["codepf"] == 1:
            code_pf(S_EX)
        A(f"s_lshl_b32 {s(S_T0)}, {s(S_PG)}, 7")
        A(f"s_add_u32 {s(S_T0)}, {s(S_T0)}, {EPO}")
        A(f"v_mov_b32 {v(V_TAG)}, {s(S_T0)}")
        A.vmem(f"buffer_load_dword {v(V_TAG)}, {v(V_TAG)}, {s(SRD_WS,4)}, 0 offen sc1", "epoch")
        if o.get("t_c3", 0) == 1:
            A(f"s_lshl_b32 {s(S_T0)}, {s(S_J)}, 2")
            A(f"s_add_u32 {s(S_T0)}, {s(S_T0)}, {s(S_W)}")
            A(f"s_lshl_b32 {s(S_T0)}, {s(S_T0)}, 12")
            A(f"s_add_u32 {s(S_T0)}, {s(S_T0)}, 384")
            A(f"v_cmp_gt_u32 vcc, 4, {v(V_L)}")
            A(f"v_lshl_add_u32 {v(TF)}, {v(V_L)}, 10, {s(S_T0)}")
            A(f"v_mov_b32 {v(TH)}, {OOB:#x}")
            A(f"v_cndmask_b32 {v(TF)}, {v(TH)}, {v(TF)}, vcc")
            self.touch(TF, SRD_W1)
            self.touch(TF, SRD_W2)
        if o["t_w2"]:
            A(f"s_lshl_b32 {s(S_T0)}, s2, 2")
            A(f"s_add_u32 {s(S_T0)}, {s(S_T0)}, {s(S_W)}")
            A(f"s_lshl_b32 {s(S_T0)}, {s(S_T0)}, 9")
            A(f"v_cmp_gt_u32 vcc, 4, {v(V_L)}")
            A(f"v_lshl_add_u32 {v(TF)}, {v(V_L)}, 7, {s(S_T0)}")
            A(f"v_mov_b32 {v(TH)}, {OOB:#x}")
            A(f"v_cndmask_b32 {v(TF)}, {v(TH)}, {v(TF)}, vcc")
            self.touch(TF, SRD_W2)
        self.stamp("issued")

        A(f"v_lshlrev_b32 {v(V_L16)}, 4, {v(V_L)}")
        A(f"v_lshrrev_b32 {v(V_H)}, 5, {v(V_L)}")
        A(f"v_and_b32 {v(V_J)}, 31, {v(V_L)}")
        A(f"s_lshl_b32 {s(S_T0)}, {s(S_B)}, 15")
        A(f"s_lshl_b32 {s(S_T1)}, {s(S_M)}, 12")
        A(f"s_add_u32 {s(S_T0)}, {s(S_T0)}, {s(S_T1)}")
        A(f"s_lshl_b32 {s(S_T1)}, {s(S_W)}, 10")
        A(f"s_add_u32 {s(S_FRAG)}, {s(S_T0)}, {s(S_T1)}")
        A(f"v_and_b32 {v(T)}, 1, {v(V_Q)}")
        A(f"v_lshlrev_b32 {v(T)}, 9, {v(T)}")
        A(f"v_lshl_add_u32 {v(T)}, {v(V_I)}, 4, {v(T)}")
        A(f"v_lshrrev_b32 {v(T+1)}, 1, {v(V_Q)}")
        A(f"v_lshl_add_u32 {v(T)}, {v(T+1)}, 3, {v(T)}")
        A(f"v_add_u32 {v(V_FO)}, {s(S_FRAG)}, {v(T)}")
        VT = SCOL + 6
        if o["t_ex"]:
            A(f"v_and_b32 {v(VT)}, 7, {v(V_L)}")
            A(f"v_lshl_add_u32 {v(VT)}, {v(VT)}, 7, {s(S_FRAG)}")
            A(f"v_lshrrev_b32 {v(TF)}, 3, {v(V_L)}")
            A(f"v_lshl_add_u32 {v(VT)}, {v(TF)}, 20, {v(VT)}")
            A(f"s_lshr_b32 {s(S_T0)}, {s(S_FRAG)}, 2")
            A(f"s_add_u32 {s(S_T0)}, {s(S_T0)}, {STB - 16*128}")
            A(f"v_lshl_add_u32 {v(TF)}, {v(V_L)}, 7, {s(S_T0)}")
            A(f"v_cmp_gt_u32 vcc, 16, {v(V_L)}")
            A(f"s_lshl_b32 {s(S_T0)}, {s(S_B)}, 7")
            A(f"s_add_u32 {s(S_T0)}, {s(S_T0)}, {FL1 - 18*0x2000}")
            A(f"v_cndmask_b32 {v(VT)}, {v(TF)}, {v(VT)}, vcc")
            A(f"v_lshl_add_u32 {v(TF)}, {v(V_L)}, 13, {s(S_T0)}")
            A(f"v_cmp_gt_u32 vcc, 18, {v(V_L)}")
            A(f"s_lshl_b32 {s(S_T0)}, {s(S_PG)}, 8")
            A(f"s_add_u32 {s(S_T0)}, {s(S_T0)}, {FL3 - 20*128}")
            A(f"v_cndmask_b32 {v(VT)}, {v(TF)}, {v(VT)}, vcc")
            A(f"v_lshl_add_u32 {v(TF)}, {v(V_L)}, 7, {s(S_T0)}")
            A(f"v_cmp_gt_u32 vcc, 20, {v(V_L)}")
            A(f"v_mov_b32 {v(TG)}, {OOB:#x}")
            A("s_nop 0")
            A(f"v_cndmask_b32 {v(VT)}, {v(TF)}, {v(VT)}, vcc")
            A(f"v_cmp_gt_u32 vcc, 22, {v(V_L)}")
            A("s_nop 1")
            A(f"v_cndmask_b32 {v(VT)}, {v(TG)}, {v(VT)}, vcc")
        if o["t_ex"] and o.get("early_touch", 0):
            self.touch(VT, SRD_WS)
        A(f"s_lshl_b32 {s(S_T0)}, {s(S_B)}, 15")
        A(f"s_lshl_b32 {s(S_T1)}, {s(S_M)}, 7")
        A(f"s_add_u32 {s(S_T0)}, {s(S_T0)}, {s(S_T1)}")
        A(f"s_lshl_b32 {s(S_T1)}, {s(S_W)}, 5")
        A(f"s_add_u32 {s(S_T3)}, {s(S_T0)}, {s(S_T1)}")
        A(f"v_lshlrev_b32 {v(T)}, 10, {v(V_I)}")
        A(f"v_lshl_add_u32 {v(T)}, {v(V_Q)}, 3, {v(T)}")
        A(f"v_add_u32 {v(T)}, {s(S_T3)}, {v(T)}")
        A(f"s_mov_b32 {s(S_T0)}, 16384")
        A.vmem(f"buffer_load_dwordx2 {v(XRES,2)}, {v(T)}, {s(SRD_X,4)}, 0 offen", "xres")
        A.vmem(f"buffer_load_dwordx2 {v(XRES+2,2)}, {v(T)}, {s(SRD_X,4)}, {s(S_T0)} offen", "xres")
        A(f"v_lshlrev_b32 {v(T)}, 10, {v(V_J)}")
        A(f"v_lshl_add_u32 {v(T)}, {v(V_H)}, 3, {v(T)}")
        A(f"v_add_u32 {v(V_RO)}, {s(S_T3)}, {v(T)}")
        A(f"s_mov_b32 {s(S_4096)}, 4096")
        for k in (1, 2, 3):
            A(f"s_mov_b32 {s(S_D+k-1)}, {13312*k}")
        A(f"s_lshr_b32 {s(S_A)}, {s(S_J)}, 3")
        A(f"s_and_b32 {s(S_T0)}, s2, 7")
        A(f"s_and_b32 {s(S_R2)}, {s(S_T0)}, {3 if o['xrot'] else 0}")
        if o["w2rot_a"]:
            A(f"s_add_u32 {s(S_R2W)}, {s(S_T0)}, {s(S_A)}")
            A(f"s_and_b32 {s(S_R2W)}, {s(S_R2W)}, 3")
        else:
            A(f"s_mov_b32 {s(S_R2W)}, {s(S_R2)}")
        if o["xrot"]:
            if o.get("r4m", 1):
                A(f"s_add_u32 {s(S_R4)}, {s(S_T0)}, {s(S_M)}")
            else:
                A(f"s_mov_b32 {s(S_R4)}, {s(S_T0)}")
            A(f"s_cmp_ge_u32 {s(S_R4)}, 7")
            A(f"s_cselect_b32 {s(S_T1)}, 7, 0")
            A(f"s_sub_u32 {s(S_R4)}, {s(S_R4)}, {s(S_T1)}")
            A(f"s_cmp_ge_u32 {s(S_R4)}, 7")
            A(f"s_cselect_b32 {s(S_T1)}, 7, 0")
            A(f"s_sub_u32 {s(S_R4)}, {s(S_R4)}, {s(S_T1)}")
        else:
            A(f"s_mov_b32 {s(S_R4)}, 0")
        A(f"s_lshl_b32 {s(S_GW)}, s2, 2")
        A(f"s_add_u32 {s(S_GW)}, {s(S_GW)}, {s(S_W)}")
        A(f"s_lshl_b32 {s(S_T0)}, {s(S_B)}, 7")
        A(f"s_lshl_b32 {s(S_T1)}, {s(S_M)}, 4")
        A(f"s_add_u32 {s(S_T0)}, {s(S_T0)}, {s(S_T1)}")
        A(f"s_lshl_b32 {s(S_T1)}, {s(S_W)}, 2")
        A(f"s_add_u32 {s(S_FLO)}, {s(S_T0)}, {s(S_T1)}")
        A(f"s_lshl_b32 {s(S_T0)}, {s(S_PG)}, 7")
        A(f"s_add_u32 {s(S_HSP)}, {s(S_T0)}, {HS}")
        A(f"s_lshl_b32 {s(S_T0)}, {s(S_B0)}, 15")
        A(f"s_add_u32 {s(S_X1SRC)}, {s(S_T0)}, {s(S_L8)}")
        A(f"v_lshrrev_b32 {v(T)}, 3, {v(V_L)}")
        A(f"v_lshlrev_b32 {v(T)}, 10, {v(T)}")
        A(f"v_and_b32 {v(T+1)}, 7, {v(V_L)}")
        A(f"v_lshlrev_b32 {v(T+2)}, 1, {v(V_Q)}")
        A(f"v_xor_b32 {v(T+2)}, {v(T+1)}, {v(T+2)}")
        A(f"v_lshl_add_u32 {v(T+2)}, {v(T+2)}, 4, {v(T)}")
        A(f"s_lshl_b32 {s(S_T0)}, {s(S_M)}, 7")
        A(f"s_lshl_b32 {s(S_T1)}, {s(S_W)}, 17")
        A(f"s_add_u32 {s(S_T1)}, {s(S_T1)}, {s(S_T0)}")
        A(f"s_lshl_b32 {s(S_T2)}, {s(S_R2W)}, 15")
        A(f"s_add_u32 {s(S_T1)}, {s(S_T1)}, {s(S_T2)}")
        A(f"v_add_u32 {v(V_W2D)}, {s(S_T1)}, {v(T+2)}")
        A(f"v_and_b32 {v(T+2)}, 1, {v(V_Q)}")
        A(f"v_lshlrev_b32 {v(T+2)}, 2, {v(T+2)}")
        A(f"v_xor_b32 {v(T+2)}, {v(T+1)}, {v(T+2)}")
        A(f"v_lshl_add_u32 {v(T+2)}, {v(T+2)}, 4, {v(T)}")
        A(f"s_mul_i32 {s(S_T1)}, {s(S_W)}, {448*1024}")
        A(f"s_add_u32 {s(S_T1)}, {s(S_T1)}, {s(S_T0)}")
        A(f"s_lshl_b32 {s(S_T0)}, {s(S_R4)}, 16")
        A(f"s_add_u32 {s(S_T1)}, {s(S_T1)}, {s(S_T0)}")
        A(f"v_add_u32 {v(V_WD)}, {s(S_T1)}, {v(T+2)}")
        A(f"v_lshlrev_b32 {v(T+1)}, 2, {v(V_Q)}")
        A(f"v_xor_b32 {v(T+1)}, {v(T+1)}, {v(V_I)}")
        A(f"v_lshlrev_b32 {v(T+1)}, 4, {v(T+1)}")
        A(f"v_mul_u32_u24 {v(T)}, 3584, {v(V_Q)}")
        A(f"v_add_u32 {v(T)}, {v(T)}, {v(T+1)}")
        A(f"s_lshl_b32 {s(S_T0)}, {s(S_SL)}, 8")
        A(f"s_mul_i32 {s(S_T1)}, {s(S_W)}, {32*3584}")
        A(f"s_add_u32 {s(S_T0)}, {s(S_T0)}, {s(S_T1)}")
        A(f"s_mul_i32 {s(S_T1)}, {s(S_R2)}, {128*3584}")
        A(f"s_add_u32 {s(S_T0)}, {s(S_T0)}, {s(S_T1)}")
        A(f"s_cmp_eq_u32 {s(S_IDLE)}, 1")
        A(f"s_cselect_b32 {s(S_T0)}, {OOB}, {s(S_T0)}")
        A(f"v_add_u32 {v(V_W3D)}, {s(S_T0)}, {v(T)}")
        A(f"s_mul_i32 {s(S_T0)}, {s(S_B0)}, {GBATCH}")
        A(f"s_lshl_b32 {s(S_T2)}, {s(S_SL)}, 13")
        A(f"s_add_u32 {s(S_T0)}, {s(S_T0)}, {s(S_T2)}")
        A(f"s_lshl_b32 {s(S_T2)}, {s(S_W)}, 11")
        A(f"s_add_u32 {s(S_T0)}, {s(S_T0)}, {s(S_T2)}")
        A(f"s_add_u32 {s(S_T0)}, {s(S_T0)}, {GB}")
        A(f"v_add_u32 {v(V_GS)}, {s(S_T0)}, {v(V_L16)}")
        A(f"s_lshr_b32 {s(S_T0)}, {s(S_W)}, 1")
        A(f"s_add_u32 {s(S_T0)}, {s(S_T0)}, 1")
        A(f"s_sub_u32 {s(S_T2)}, 0, {s(S_T0)}")
        A(f"s_bitcmp1_b32 {s(S_W)}, 0")
        A(f"s_cselect_b32 {s(S_T0)}, {s(S_T2)}, {s(S_T0)}")
        A(f"v_subrev_u32 {v(TF)}, {s(S_T0)}, {v(V_J)}")
        A(f"v_cmp_gt_u32 vcc, 32, {v(TF)}")
        A(f"v_lshlrev_b32 {v(TF)}, 4, {v(TF)}")
        A(f"v_lshl_add_u32 {v(TF)}, {v(V_H)}, 9, {v(TF)}")
        A(f"v_mov_b32 {v(TG)}, {OOB:#x}")
        A(f"v_cndmask_b32 {v(V_HSH)}, {v(TG)}, {v(TF)}, vcc")
        RHO, PR, LO = T, T + 1, T + 2
        A(f"v_lshrrev_b32 {v(RHO)}, 2, {v(V_I)}")
        A(f"v_bfe_u32 {v(PR)}, {v(V_L)}, 1, 1")
        A(f"v_and_b32 {v(LO)}, 1, {v(V_L)}")
        A(f"v_and_b32 {v(T+3)}, 1, {v(V_Q)}")
        A(f"v_lshl_add_u32 {v(T+3)}, {v(T+3)}, 1, {v(PR)}")
        A(f"s_lshl_b32 {s(S_T0)}, {s(S_W)}, 2")
        A(f"v_add_u32 {v(TE)}, {s(S_T0)}, {v(T+3)}")
        A(f"v_lshlrev_b32 {v(TF)}, 2, {v(RHO)}")
        A(f"v_xor_b32 {v(TE)}, {v(TE)}, {v(TF)}")
        A(f"v_lshlrev_b32 {v(TE)}, 4, {v(TE)}")
        A(f"v_lshl_add_u32 {v(TE)}, {v(LO)}, 3, {v(TE)}")
        A(f"v_lshl_add_u32 {v(TF)}, {v(V_H)}, 2, {v(RHO)}")
        A(f"v_lshl_add_u32 {v(V_TR3)}, {v(TF)}, 8, {v(TE)}")
        A(f"v_lshrrev_b32 {v(TE)}, 1, {v(RHO)}")
        A(f"v_lshl_add_u32 {v(TE)}, {v(TE)}, 2, {v(T+3)}")
        A(f"v_lshlrev_b32 {v(TE)}, 4, {v(TE)}")
        A(f"v_lshl_add_u32 {v(TE)}, {v(LO)}, 3, {v(TE)}")
        A(f"s_lshl_b32 {s(S_T0)}, {s(S_W)}, 5")
        A(f"v_xor_b32 {v(TE)}, {s(S_T0)}, {v(TE)}")
        A(f"v_lshl_add_u32 {v(TE)}, {v(TF)}, 7, {v(TE)}")
        A(f"s_add_u32 {s(S_T0)}, {s(S_L16)}, {R3}")
        A(f"v_add_u32 {v(V_A0)}, {s(S_T0)}, {v(TE)}")
        A(f"v_xor_b32 {v(V_A1)}, 64, {v(V_A0)}")
        S1A, S2A = SCOL, SCOL + 1
        A(f"v_and_b32 {v(TE)}, 1, {v(V_Q)}")
        A(f"v_lshlrev_b32 {v(TE)}, 1, {v(TE)}")
        A(f"v_lshrrev_b32 {v(TF)}, 1, {v(RHO)}")
        A(f"v_add_u32 {v(TE)}, {v(TE)}, {v(TF)}")
        A(f"v_lshlrev_b32 {v(TE)}, 1, {v(TE)}")
        A(f"s_lshl_b32 {s(S_T0)}, {s(S_W)}, 1")
        A(f"v_add_u32 {v(TG)}, {s(S_T0)}, {v(PR)}")
        A(f"v_xor_b32 {v(TE)}, {v(TE)}, {v(TG)}")
        A(f"v_lshlrev_b32 {v(TE)}, 4, {v(TE)}")
        A(f"v_lshl_add_u32 {v(TE)}, {v(LO)}, 3, {v(TE)}")
        A(f"v_lshl_add_u32 {v(TH)}, {v(V_Q)}, 3, {v(RHO)}")
        A(f"v_lshl_add_u32 {v(S1A)}, {v(TH)}, 7, {v(TE)}")
        A(f"v_add_u32 {v(S1A)}, {R1}, {v(S1A)}")
        A(f"v_lshrrev_b32 {v(TH)}, 1, {v(V_Q)}")
        A(f"v_lshlrev_b32 {v(TH)}, 4, {v(TH)}")
        A(f"v_and_b32 {v(TF)}, 1, {v(V_Q)}")
        A(f"v_lshl_add_u32 {v(TH)}, {v(TF)}, 2, {v(TH)}")
        A(f"v_add_u32 {v(TH)}, {v(TH)}, {v(RHO)}")
        A(f"v_lshl_add_u32 {v(S2A)}, {v(TH)}, 7, {v(TE)}")
        A(f"v_add_u32 {v(S2A)}, {R3}, {v(S2A)}")
        XB0, XB1, XS0, XS1 = SCOL + 2, SCOL + 3, SCOL + 4, SCOL + 5
        A(f"v_bfe_u32 {v(TE)}, {v(V_L)}, 1, 3")
        A(f"v_xor_b32 {v(TE)}, {v(TE)}, {v(V_Q)}")
        A(f"v_lshlrev_b32 {v(TE)}, 4, {v(TE)}")
        A(f"v_and_b32 {v(TF)}, 7, {v(V_L)}")
        A(f"v_lshl_add_u32 {v(TE)}, {v(TF)}, 7, {v(TE)}")
        A(f"v_bfe_u32 {v(TF)}, {v(V_L)}, 3, 1")
        A(f"v_lshl_add_u32 {v(XB0)}, {v(TF)}, 13, {v(TE)}")
        A(f"v_xor_b32 {v(XB1)}, 64, {v(XB0)}")
        A(f"s_lshl_b32 {s(S_T0)}, {s(S_W)}, 11")
        A(f"v_add_u32 {v(XS0)}, {s(S_T0)}, {v(XB0)}")
        A(f"v_add_u32 {v(XS1)}, {s(S_T0)}, {v(XB1)}")
        if o["rot"]:
            A(f"s_lshl_b32 {s(S_T0)}, {s(S_A)}, 11")
            A(f"v_xor_b32 {v(XB0)}, {s(S_T0)}, {v(XB0)}")
            A(f"v_xor_b32 {v(XB1)}, {s(S_T0)}, {v(XB1)}")
        HBK = SCOL + 12
        A(f"v_lshrrev_b32 {v(TE)}, 1, {v(V_Q)}")
        A(f"v_lshlrev_b32 {v(TE)}, 10, {v(TE)}")
        A(f"v_and_b32 {v(TF)}, 1, {v(V_Q)}")
        A(f"v_lshl_add_u32 {v(TE)}, {v(TF)}, 9, {v(TE)}")
        A(f"v_lshl_add_u32 {v(TE)}, {v(V_I)}, 4, {v(TE)}")
        for k in range(4):
            A(f"s_xor_b32 {s(S_T0)}, {s(S_R2W)}, {k}")
            A(f"s_lshl_b32 {s(S_T0)}, {s(S_T0)}, 11")
            A(f"v_add_u32 {v(HBK+k)}, {s(S_T0)}, {v(TE)}")
        c = (2.0 / 3.141592653589793) ** 0.5
        k1 = -2.0 * c * 1.4426950408889634
        k2 = k1 * 0.044715
        A(f"s_mov_b32 {s(S_K2)}, {f2u(k2):#x}")
        A(f"s_mov_b32 {s(S_K2+1)}, {f2u(k2):#x}")
        A(f"v_mov_b32 {v(V_K1)}, {f2u(k1):#x}")
        A(f"v_mov_b32 {v(V_ONES)}, 0x3f803f80")
        A(f"v_add_u32 {v(V_RED)}, {s(S_L8)}, {v(V_L16)}")
        ONES4 = SCOL + 8
        for r in range(4):
            A(f"v_mov_b32 {v(ONES4+r)}, 0x3f803f80")
        A(f"s_getreg_b32 {s(S_XCC)}, hwreg(HW_REG_XCC_ID)")
        A(f"s_and_b32 {s(S_XCC)}, {s(S_XCC)}, 15")
        self.stamp("proend")

        A.c("S1: row statistics")
        if o.get("early_w1", 1):
            A.wait_vm("x3")
            w1stage(1)
            A.wait_vm("x")
            w1stage(2)
            self.barrier()
            self.stamp("xland")
        else:
            A.wait_vm("x")
            self.barrier()
            self.stamp("xland")
            w1stage(1)
            w1stage(2)
        if o.get("t_c3", 0) == 2:
            A(f"s_lshl_b32 {s(S_T0)}, {s(S_J)}, 2")
            A(f"s_add_u32 {s(S_T0)}, {s(S_T0)}, {s(S_W)}")
            A(f"s_lshl_b32 {s(S_T0)}, {s(S_T0)}, 12")
            A(f"s_add_u32 {s(S_T0)}, {s(S_T0)}, 384")
            A(f"v_cmp_gt_u32 vcc, 4, {v(V_L)}")
            A(f"v_lshl_add_u32 {v(TF)}, {v(V_L)}, 10, {s(S_T0)}")
            A(f"v_mov_b32 {v(TH)}, {OOB:#x}")
            A(f"v_cndmask_b32 {v(TF)}, {v(TH)}, {v(TF)}, vcc")
            self.touch(TF, SRD_W2)
        w2items = self.wdma_items(SRD_W2, [V_W2D], 16, S_L16, R3, S_C, 32768, "w2", xor=True)
        n_in = o["w2_s1"]
        assert n_in <= 16
        self.bgq = w2items[:n_in]
        fr = []
        for Tt in range(2):
            for ln in range(2):
                for e in range(2):
                    r = BF + 4 * len(fr)
                    A.lds(f"ds_read_b128 {v(r,4)}, {v(XS0+e)} offset:{Tt*16384+ln*1024}", f"xs{len(fr)}")
                    fr.append((Tt, r))
        for r in (SUM, SQ, P0, P1):
            A(f"v_mov_b32 {v(r)}, 0")
        XP = o.get("xpre", 1)

        def xpre(st):
            if st % 4 == 0 and st:
                p = st // 4
                A(f"v_xor_b32 {v(XB0)}, {(p ^ (p-1))*2048}, {v(XB0)}")
                A(f"v_xor_b32 {v(XB1)}, {(p ^ (p-1))*2048}, {v(XB1)}")
            xb = XB0 + (st & 1)
            A.lds(f"ds_read_b128 {v(WF+8*st,4)}, {v(xb)} offset:{((st>>1)&1)*1024}", "xp")
            A.lds(f"ds_read_b128 {v(WF+8*st+4,4)}, {v(xb)} offset:{((st>>1)&1)*1024+16384}", "xp")
        for i, (Tt, r) in enumerate(fr):
            A.wait_lg(f"xs{i}")
            sm, sq = (SUM, SQ) if Tt == 0 else (P0, P1)
            for d in range(4):
                A(f"v_dot2_f32_bf16 {v(sm)}, {v(r+d)}, {v(V_ONES)}, {v(sm)}")
                A(f"v_dot2_f32_bf16 {v(sq)}, {v(r+d)}, {v(r+d)}, {v(sq)}")
            if i == o.get("s3_at", 3):
                w1stage(3)
            if XP:
                xpre(2 * i)
                xpre(2 * i + 1)
        A(f"s_lshl_b32 {s(S_T0)}, {s(S_W)}, 8")
        A(f"s_add_u32 {s(S_T0)}, {s(S_T0)}, {PART}")
        A(f"v_lshl_add_u32 {v(BF)}, {v(V_I)}, 3, {s(S_T0)}")
        self.lane_sum([SUM, SQ, P0, P1], [TE, TF, TG, TH], True, True)
        A.lds(f"ds_write_b64 {v(BF)}, {v(SUM,2)}")
        A.lds(f"ds_write_b64 {v(BF)}, {v(P0,2)} offset:128")
        A(f"v_lshlrev_b32 {v(TE)}, 3, {v(V_I)}")
        A(f"v_add_u32 {v(TE)}, {PART}, {v(TE)}")
        self.stamp("xstat")
        if o["t_ex"] and not o.get("early_touch", 0):
            self.touch(VT, SRD_WS)
        if o["t_g"] == 5:
            A(f"v_sub_u32 {v(TF)}, {v(V_GS)}, {v(V_L16)}")
            A(f"v_mul_u32_u24 {v(TG)}, {GBATCH}, {v(V_Q)}")
            A(f"v_lshl_add_u32 {v(TG)}, {v(V_I)}, 7, {v(TG)}")
            A(f"v_add_u32 {v(TF)}, {v(TF)}, {v(TG)}")
            A(f"v_cmp_gt_u32 vcc, 32, {v(V_L)}")
            A(f"s_lshl_b32 {s(S_T0)}, {s(S_IDLE)}, 31")
            A(f"v_add_u32 {v(TF)}, {s(S_T0)}, {v(TF)}")
            A(f"v_mov_b32 {v(TG)}, {OOB:#x}")
            A(f"v_cndmask_b32 {v(TF)}, {v(TG)}, {v(TF)}, vcc")
            self.touch(TF, SRD_WS)
        if o.get("t_w3", 0):
            A(f"s_mul_i32 {s(S_T0)}, {s(S_GW)}, {14*128}")
            A(f"v_cmp_gt_u32 vcc, 14, {v(V_L)}")
            A(f"v_lshl_add_u32 {v(TF)}, {v(V_L)}, 7, {s(S_T0)}")
            A(f"v_mov_b32 {v(TG)}, {OOB:#x}")
            A(f"v_cndmask_b32 {v(TF)}, {v(TG)}, {v(TF)}, vcc")
            self.touch(TF, SRD_W3)

        A.c("S1: GEMM")
        AR, BR_ = 44, BF
        ACC0, ACC1, ACCS = ACC, ACC + 4, ACC + 8

        def s1_reads(st):
            if st % 4 == 0 and st and not XP:
                p = st // 4
                A(f"v_xor_b32 {v(XB0)}, {(p ^ (p-1))*2048}, {v(XB0)}")
                A(f"v_xor_b32 {v(XB1)}, {(p ^ (p-1))*2048}, {v(XB1)}")
            ar = AR + 4 * (st % 3)
            br = BR_ + 8 * (st % 3)
            A.lds(f"ds_read_b64_tr_b16 {v(ar,2)}, {v(S1A)} offset:{st*4096}", f"k{st}")
            A.lds(f"ds_read_b64_tr_b16 {v(ar+2,2)}, {v(S1A)} offset:{st*4096+512}", f"k{st}")
            if XP:
                return
            xb = XB0 + (st & 1)
            A.lds(f"ds_read_b128 {v(br,4)}, {v(xb)} offset:{((st>>1)&1)*1024}", f"k{st}")
            A.lds(f"ds_read_b128 {v(br+4,4)}, {v(xb)} offset:{((st>>1)&1)*1024+16384}", f"k{st}")

        def s1_mfma(st):
            ar = AR + 4 * (st % 3)
            br = (WF + 8 * st) if XP else (BR_ + 8 * (st % 3))
            c = lambda r: "0" if st == 0 else v(r, 4)
            A(f"v_mfma_f32_16x16x32_bf16 {v(ACC0,4)}, {v(ar,4)}, {v(br,4)}, {c(ACC0)}")
            A(f"v_mfma_f32_16x16x32_bf16 {v(ACC1,4)}, {v(ar,4)}, {v(br+4,4)}, {c(ACC1)}")
            A(f"v_mfma_f32_16x16x32_bf16 {v(ACCS,4)}, {v(ar,4)}, {v(ONES4,4)}, {c(ACCS)}")
        nst = o.get("s1_stages", 2)
        per = 16 // nst
        A.wait_vm("epoch")
        A(f"v_readfirstlane_b32 {s(S_TAG)}, {v(V_TAG)}")
        A("s_nop 3")
        A(f"s_add_u32 {s(S_TAG)}, {s(S_TAG)}, 1")
        A(f"s_mov_b32 {s(S_TAG+1)}, {s(S_TAG)}")
        A(f"v_mov_b32 {v(V_TAG)}, {s(S_TAG)}")
        if self.force is None:
            A(f"s_lshl_b32 {s(S_T1)}, {s(S_U)}, 3")
            A(f"s_add_u32 {s(S_T0)}, {s(S_HSP)}, {s(S_T1)}")
            self.wave0_addr(TF, S_T0)
            A(f"v_mov_b32 {v(TG)}, {s(S_TAG)}")
            A(f"v_mov_b32 {v(TH)}, {s(S_XCC)}")
            A.vmem(f"buffer_store_dwordx2 {v(TG,2)}, {v(TF)}, {s(SRD_WS,4)}, 0 offen sc1", "hs")
        self.bg(o["w2_pre"])
        for p in range(nst):
            A.wait_vm(f"w1_{(p+1)*(4//nst)-1}")
            A.wait_lg()
            self.barrier()
            self.stamp(f"st{p}")
            if p == 0:
                for src in range(4):
                    A.lds(f"ds_read_b64 {v(56+2*src,2)}, {v(TE)} offset:{src*256}", "pt")
                    A.lds(f"ds_read_b64 {v(104+2*src,2)}, {v(TE)} offset:{src*256+128}", "pt")
            s1_reads(per * p)
            s1_reads(per * p + 1)
            if p == 0:
                A.wait_lg("pt")
                if n_in == 16:
                    self.barrier()
                for src in range(1, 4):
                    A(f"v_pk_add_f32 {v(56,2)}, {v(56,2)}, {v(56+2*src,2)}")
                    A(f"v_pk_add_f32 {v(104,2)}, {v(104,2)}, {v(104+2*src,2)}")
                self.ln_scalars(56, 57, V_R0, V_Q0, TF)
                self.ln_scalars(104, 105, V_R1, V_Q1, TF)
            for st in range(per * p, per * p + per):
                A.wait_lg(f"k{st}")
                s1_mfma(st)
                if st + 2 < per * p + per:
                    s1_reads(st + 2)
                self.bg(1)
        self.bg_flush()
        if o["c_f1"]:
            self.barrier()
        self.stamp("s1loop")
        A(f"s_add_u32 {s(S_T0)}, {s(S_FLO)}, {FL1G if self.force is False else FL1}")
        A(f"v_mov_b32 {v(V_FS1)}, {s(S_T0)}")
        A(f"s_add_u32 {s(S_T0)}, {s(S_FLO)}, {FL2}")
        A(f"v_mov_b32 {v(V_FS2)}, {s(S_T0)}")
        A(f"s_lshl_b32 {s(S_T0)}, {s(S_PG)}, 8")
        A(f"s_lshl_b32 {s(S_T1)}, {s(S_SL)}, 4")
        A(f"s_add_u32 {s(S_T0)}, {s(S_T0)}, {s(S_T1)}")
        A(f"s_lshl_b32 {s(S_T1)}, {s(S_W)}, 2")
        A(f"s_add_u32 {s(S_T0)}, {s(S_T0)}, {s(S_T1)}")
        A(f"s_add_u32 {s(S_T0)}, {s(S_T0)}, {FL3}")
        A(f"v_mov_b32 {v(V_FS3)}, {s(S_T0)}")
        for Tt, (ac, vr) in enumerate(((ACC0, V_R0), (ACC1, V_R1))):
            for p in range(2):
                A(f"v_pk_mul_f32 {v(ac+2*p,2)}, {v(ac+2*p,2)}, {v(vr,2)} op_sel_hi:[1,0]")
        for Tt, (ac, vr) in enumerate(((ACC0, V_R0), (ACC1, V_R1))):
            for p in range(2):
                A(f"v_pk_fma_f32 {v(ac+2*p,2)}, {v(ACCS+2*p,2)}, {v(vr,2)}, {v(ac+2*p,2)} op_sel:[0,1,0] op_sel_hi:[1,1,1]")
        HP = 60
        for t in self.gelu_a(ACC, 4, BF) + self.gelu_b(ACC, 4, HP, BF, True):
            A(t)
        g1 = " sc1" if self.force is False else ""
        A.vmem(f"buffer_store_dwordx2 {v(HP,2)}, {v(V_FO)}, {s(SRD_WS,4)}, 0 offen{g1}", "hst")
        A.vmem(f"buffer_store_dwordx2 {v(HP+2,2)}, {v(V_FO)}, {s(SRD_WS,4)}, 0 offen offset:256{g1}", "hst")
        self.stamp("s1epi")
        A(f"s_lshl_b32 {s(S_T0)}, {s(S_B)}, 7")
        A(f"s_lshl_b32 {s(S_T2)}, {s(S_W)}, 5")
        A(f"s_add_u32 {s(S_T0)}, {s(S_T0)}, {s(S_T2)}")
        A(f"s_add_u32 {s(S_T0)}, {s(S_T0)}, {FL1G if self.force is False else FL1}")
        A(f"v_and_b32 {v(TE)}, 7, {v(V_L)}")
        A(f"v_lshl_add_u32 {v(TE)}, {v(TE)}, 2, {s(S_T0)}")
        A.wait_vm("hst")
        A.vmem(f"buffer_store_dword {v(V_TAG)}, {v(V_FS1)}, {s(SRD_WS,4)}, 0 offen{g1}")
        self.stamp("flag1")
        for it in w2items[n_in:]:
            it()

        A.c("park w2")
        w3all = self.w3_items()
        self.bgq = list(w3all)
        self.bg(o["c_f1"])
        A(f"s_lshr_b32 {s(S_T0)}, {s(S_FRAG)}, 2")
        A(f"s_add_u32 {s(S_T0)}, {s(S_T0)}, {STB}")
        A(f"v_lshl_add_u32 {v(V_ST)}, {v(V_I)}, 3, {s(S_T0)}")
        A.wait_vm("w2")
        self.barrier()
        self.stamp("b2")
        w2f = lambda st, f: (lambda o_, n: v(WF + 64 + 4 * st + o_, n))
        trs = self.tr_items(w2f, [S2A], 16, 4096, 1024, 1, "w2f")

        def park_w2():
            self.bg(o["c_e"])
            for it in trs:
                it()
            A.wait_lg()
            if o["c_f1"] + o["c_e"] + o["c_h"] > 16:
                self.barrier()

        A.c("S2")
        if self.force is None:
            self.poll1(HP, park_w2)
        else:
            self.poll(TE, TG, park_w2)
        self.stamp("poll1")
        self.lin_dma(V_HSH, 8, S_L8, R0, S_HSRC, HB, "h")
        if o["t_g"] == 2 and not o["g_sc1"]:
            A(f"v_sub_u32 {v(TF)}, {v(V_GS)}, {v(V_L16)}")
            A(f"v_mul_u32_u24 {v(TG)}, {GBATCH}, {v(V_Q)}")
            A(f"v_lshl_add_u32 {v(TG)}, {v(V_I)}, 7, {v(TG)}")
            A(f"v_add_u32 {v(TF)}, {v(TF)}, {v(TG)}")
            A(f"v_cmp_gt_u32 vcc, 32, {v(V_L)}")
            A(f"s_lshl_b32 {s(S_T0)}, {s(S_IDLE)}, 31")
            A(f"v_add_u32 {v(TF)}, {s(S_T0)}, {v(TF)}")
            A(f"v_mov_b32 {v(TG)}, {OOB:#x}")
            A(f"v_cndmask_b32 {v(TF)}, {v(TG)}, {v(TF)}, vcc")
            self.touch(TF, SRD_WS)
        self.bg(o["c_h"])
        for p in range(4):
            A(f"v_lshlrev_b32 {v(56+2*p)}, 16, {v(XRES+p)}")
            A(f"v_and_b32 {v(56+2*p+1)}, 0xffff0000, {v(XRES+p)}")
        for r in (SUM, SQ, P0, P1):
            A(f"v_mov_b32 {v(r)}, 0")
        A(f"v_add_u32 {v(TE)}, {X1B}, {v(V_FO)}")
        A.wait_vm("h")
        self.barrier()
        self.stamp("hland")

        def s2_read(i):
            st, Tt = i >> 1, i & 1
            A.lds(f"ds_read_b128 {v(BF+4*(i%8),4)}, {v(HBK+(st&3))} offset:{R0+(st>>2)*8192+Tt*256}", f"hb{i}")
        for i in range(4):
            s2_read(i)
        nb = o["c_s2"]
        done = 0
        for i in range(32):
            st, Tt = i >> 1, i & 1
            if i % 2 == 0:
                A.wait_lg(f"hb{i+1}")
            ac = ACC0 if Tt == 0 else ACC1
            c0 = "0" if st == 0 else v(ac, 4)
            A(f"v_mfma_f32_16x16x32_bf16 {v(ac,4)}, {v(WF+64+4*st,4)}, {v(BF+4*(i%8),4)}, {c0}")
            if i + 4 < 32:
                s2_read(i + 4)
            want = (i + 1) * nb // 32
            self.bg(want - done)
            done = want
        self.stamp("s2mfma")
        A.nop(8)
        for p in range(4):
            A(f"v_pk_add_f32 {v(ACC+2*p,2)}, {v(ACC+2*p,2)}, {v(56+2*p,2)}")
        for p in range(4):
            A(f"v_cvt_pk_bf16_f32 {v(X1P+p)}, {v(ACC+2*p)}, {v(ACC+2*p+1)}")
        self.publish([f"buffer_store_dwordx2 {v(X1P,2)}, {v(TE)}, {s(SRD_WS,4)}, 0 offen{{F}}",
                      f"buffer_store_dwordx2 {v(X1P+2,2)}, {v(TE)}, {s(SRD_WS,4)}, 0 offen offset:256{{F}}"], tag="x1st")
        for d in range(2):
            A(f"v_dot2_f32_bf16 {v(SUM)}, {v(X1P+d)}, {v(V_ONES)}, {v(SUM)}")
            A(f"v_dot2_f32_bf16 {v(SQ)}, {v(X1P+d)}, {v(X1P+d)}, {v(SQ)}")
            A(f"v_dot2_f32_bf16 {v(P0)}, {v(X1P+2+d)}, {v(V_ONES)}, {v(P0)}")
            A(f"v_dot2_f32_bf16 {v(P1)}, {v(X1P+2+d)}, {v(X1P+2+d)}, {v(P1)}")
        A.nop(3)
        self.lane_sum([SUM, SQ, P0, P1], [56, 57, 58, 59], True, True)
        self.publish([f"buffer_store_dwordx2 {v(SUM,2)}, {v(V_ST)}, {s(SRD_WS,4)}, 0 offen{{F}}",
                      f"buffer_store_dwordx2 {v(P0,2)}, {v(V_ST)}, {s(SRD_WS,4)}, 0 offen offset:128{{F}}"], tag="x1st")
        self.stamp("s2epi")
        A.wait_vm("x1st")
        self.publish([f"buffer_store_dword {v(V_TAG)}, {v(V_FS2)}, {s(SRD_WS,4)}, 0 offen{{F}}"])
        self.barrier()
        assert o["c_f1"] + o["c_e"] + o["c_h"] + o["c_s2"] >= 8
        self.stamp("flag2")

        A.c("w3 rest")
        A(f"s_cmp_eq_u32 {s(S_IDLE)}, 1")
        A("s_cbranch_scc1 L_idle")
        self.idle_vm = list(A.vm)

        def park_chunk(c):
            A(f"v_add_u32 {v(TF)}, {R1 + c*32768}, {v(V_TR3)}")
            w3f = lambda st, f, c=c: (lambda o_, n: v(WF + 4 * (8 * c + st) + o_, n))
            its = self.tr_items(w3f, [TF], 8, 4096, 2048, 1, f"w3f{c}")
            for it in its:
                it()

        def colsum(c, nbg=0):
            k = 0
            for st in range(8 * c, 8 * c + 8):
                for d in range(4):
                    r = (SUM, SQ, P0, P1)[d]
                    A(f"v_dot2_f32_bf16 {v(r)}, {v(WF+4*st+d)}, {v(V_ONES)}, {v(r)}")
                if k < nbg:
                    self.bg(1)
                    k += 1
        NH = 7
        slot_of = "ABACBAC"

        def w4dma(hh):
            lds_s, lds_c = {"A": (S_L8, R2), "B": (S_L16, R3), "C": (S_L16, R3 + 8192)}[slot_of[hh]]

            def last():
                A(f"s_mov_b32 {s(S_OFF)}, 32768")
                A(f"s_cmp_eq_u32 {s(S_R4)}, {6-hh}")
                A(f"s_cselect_b32 {s(S_OFF)}, {(32768 - 7*65536) & 0xffffffff}, {s(S_OFF)}")
                A(f"v_add_u32 {v(V_WD)}, {s(S_OFF)}, {v(V_WD)}")
            return self.wdma_items(SRD_W4, [V_WD], 8, lds_s, lds_c, S_C, 32768, f"w4d{hh}", last=last)

        def w4park(hh):
            bases, off0 = {"A": ([V_A2, V_A3], 0), "B": ([V_A0, V_A1], 0), "C": ([V_A0, V_A1], 8192)}[slot_of[hh]]
            w4f = lambda st, f, hh=hh: (lambda o_, n: a(8 * (4 * hh + st) + 4 * f + o_, n))
            its = self.tr_items(w4f, bases, 4, 2048, 1024, 2, f"w4f{hh}", off0=off0)
            first = its[0]
            its[0] = lambda: (A.wait_vm(f"w4d{hh}"), first())
            return its

        def after_park(hh, items):
            first = items[0]
            items[0] = lambda: (A.wait_lg(f"w4f{hh}"), first())
            return items

        A(f"s_lshl_b32 {s(S_T0)}, {s(S_B0)}, 7")
        A(f"s_add_u32 {s(S_T0)}, {s(S_T0)}, {FL2}")
        A(f"v_lshl_add_u32 {v(TE)}, {v(V_L)}, 2, {s(S_T0)}")
        assert o["c_f1"] + o["c_e"] + o["c_h"] + o["c_s2"] >= 16
        self.bg(o["c_p2"])
        park_chunk(0)
        park_chunk(1)
        AX = SCOL
        VB = SCOL + 4
        V_SA = SCOL + 8
        V_LW = SCOL + 9
        for c in range(4):
            A(f"s_add_u32 {s(S_T0)}, {s(S_R2)}, {c}")
            A(f"s_and_b32 {s(S_T0)}, {s(S_T0)}, 3")
            A(f"s_lshl_b32 {s(S_T0)}, {s(S_T0)}, 13")
            A(f"v_add_u32 {v(VB+c)}, {s(S_T0)}, {v(V_L16)}")
        A(f"s_add_u32 {s(S_T0)}, {s(S_L16)}, {R3 - R2}")
        A(f"s_sub_u32 {s(S_T0)}, {s(S_L8)}, {s(S_T0)}")
        A(f"v_add_u32 {v(V_A2)}, {s(S_T0)}, {v(V_A0)}")
        A(f"v_xor_b32 {v(V_A3)}, 64, {v(V_A2)}")
        BX0, BX1 = XRES, X1P
        for r in range(1, 4):
            A(f"v_mov_b32 {v(BX0+r)}, 0")
            A(f"v_mov_b32 {v(BX1+r)}, 0")
            A(f"v_mov_b32 {v(AX+r)}, 0")
        A(f"s_lshr_b32 {s(S_T2)}, {s(S_W)}, 1")
        A(f"s_add_u32 {s(S_T3)}, {s(S_T2)}, {s(S_B0)}")
        A(f"s_lshl_b32 {s(S_T3)}, {s(S_T3)}, 13")
        A(f"s_add_u32 {s(S_T3)}, {s(S_T3)}, {STB}")
        A(f"s_lshl_b32 {s(S_T2)}, {s(S_T2)}, 8")
        A(f"s_add_u32 {s(S_T2)}, {s(S_T2)}, {LNST}")
        A(f"s_bitcmp1_b32 {s(S_W)}, 0")
        A(f"s_cselect_b32 {s(S_T3)}, {OOB}, {s(S_T3)}")
        A(f"s_cselect_b32 {s(S_T2)}, {LNDUMMY}, {s(S_T2)}")
        A(f"v_add_u32 {v(V_SA)}, {s(S_T3)}, {v(V_L16)}")
        A(f"v_lshl_add_u32 {v(V_LW)}, {v(V_I)}, 4, {s(S_T2)}")
        for r in (SUM, SQ, P0, P1):
            A(f"v_mov_b32 {v(r)}, 0")
        A.wait_lg()

        def pre2():
            colsum(0, o.get("c_cs", 6))
            colsum(1, o.get("c_cs", 6))
            self.bg_flush()
            self.barrier()
            self.stamp("prepoll2")

        A.c("S3")
        self.poll(TE, TG, pre2)
        self.stamp("poll2")
        self.lin_dma(V_L16, 8, S_L8, R0, S_X1SRC, X1B, "x1t0")
        for i in range(8):
            so = "0" if i < 4 else s(S_4096)
            off = f" offset:{(i%4)*1024}" if i % 4 else ""
            A.vmem(f"buffer_load_dwordx4 {v(BF+4*i,4)}, {v(V_SA)}, {s(SRD_WS,4)}, {so} offen{off} sc1", "st")
        A.wait_vm("c3")
        self.barrier()
        self.stamp("b4")
        park_chunk(2)
        self.lin_dma(V_L16, 8, S_L8, R1, S_X1SRC, X1B + 32768, "x1t1")
        A.wait_lg()
        park_chunk(3)
        d0 = w4dma(0)
        self.bgq = list(d0)
        colsum(2, o.get("d_cs2", 4))
        A.wait_lg()
        self.barrier()
        colsum(3, o.get("d_cs3", 4))
        self.bg_flush()
        self.stamp("colsum")
        A(f"s_lshl_b32 {s(S_T0)}, {s(S_PG)}, 7")
        A(f"s_add_u32 {s(S_T0)}, {s(S_T0)}, {EPO}")
        A(f"v_add_f32 {v(SUM)}, {v(SUM)}, {v(SQ)}")
        A(f"v_add_f32 {v(P0)}, {v(P0)}, {v(P1)}")
        A(f"s_or_b32 {s(S_T2)}, {s(S_U)}, {s(S_W)}")
        A(f"s_cmp_eq_u32 {s(S_T2)}, 0")
        A(f"v_add_f32 {v(SUM)}, {v(SUM)}, {v(P0)}")
        A(f"s_cselect_b32 {s(S_T0)}, {s(S_T0)}, {OOB}")
        A(f"v_mov_b32 {v(TG)}, {s(S_T0)}")
        self.lane_sum([SUM], [SQ], True, False)
        self.round_to(SUM, SQ, P0)
        A(f"v_sub_f32 {v(P0)}, {v(SUM)}, {v(P0)}")
        A(f"v_cvt_pk_bf16_f32 {v(AX)}, {v(SUM)}, {v(P0)}")
        A(f"v_cmp_gt_u32 vcc, 32, {v(V_L)}")
        A.wait_vm("st")
        for i in range(1, 8):
            A(f"v_pk_add_f32 {v(BF,2)}, {v(BF,2)}, {v(BF+4*i,2)}")
            A(f"v_pk_add_f32 {v(BF+2,2)}, {v(BF+2,2)}, {v(BF+4*i+2,2)}")
        A(f"v_cndmask_b32 {v(AX)}, {v(AX+1)}, {v(AX)}, vcc")
        self.lane_sum([BF, BF + 1, BF + 2, BF + 3], [BF + 4, BF + 5, BF + 6, BF + 7], True, True)
        self.ln_scalars(BF, BF + 1, BF + 8, BF + 9, BF + 12, mpair=True)
        self.ln_scalars(BF + 2, BF + 3, BF + 10, BF + 11, BF + 12, mpair=True)
        A.lds(f"ds_write_b128 {v(V_LW)}, {v(BF+8,4)}")
        A.vmem(f"buffer_store_dword {v(V_TAG)}, {v(TG)}, {s(SRD_WS,4)}, 0 offen sc1")
        A(f"v_lshlrev_b32 {v(TE)}, 3, {v(V_J)}")
        A(f"v_add_u32 {v(TE)}, {LNST}, {v(TE)}")
        q = w4dma(1)
        q += w4park(0) + after_park(0, w4dma(2))
        n_t0 = len(q)
        if o["qord"] == 0:
            q += w4park(1) + w4dma(3) + after_park(1, w4dma(4)) + w4park(2) + after_park(2, w4dma(5))
            q += w4park(3) + after_park(3, w4dma(6)) + w4park(4) + w4park(5) + w4park(6)
        else:
            q += w4dma(3) + w4park(1) + after_park(1, w4dma(4)) + w4park(2) + after_park(2, w4dma(5))
            q += w4park(3) + after_park(3, w4dma(6)) + w4park(4) + w4park(5) + w4park(6)
        self.bgq = q
        n_pre = o.get("bg_pre", 4)
        self.bg(n_pre)
        assert n_pre + o["bg_t0"] <= n_t0
        def g_touch():
            A(f"v_sub_u32 {v(TF)}, {v(V_GS)}, {v(V_L16)}")
            A(f"v_mul_u32_u24 {v(TG)}, {GBATCH}, {v(V_Q)}")
            A(f"v_lshl_add_u32 {v(TG)}, {v(V_I)}, 7, {v(TG)}")
            A(f"v_add_u32 {v(TF)}, {v(TF)}, {v(TG)}")
            A(f"v_cmp_gt_u32 vcc, 32, {v(V_L)}")
            A(f"v_mov_b32 {v(TG)}, {OOB:#x}")
            A("s_nop 0")
            A(f"v_cndmask_b32 {v(TF)}, {v(TG)}, {v(TF)}, vcc")
            self.touch(TF, SRD_WS)
        if o["t_g"] == 3:
            g_touch()
        A.wait_vm("x1t0")
        A.wait_lg()
        self.barrier()
        self.stamp("b5")
        A.lds(f"ds_read_b32 {v(V_R0)}, {v(TE)}", "ln")
        A.lds(f"ds_read_b32 {v(BX0)}, {v(TE)} offset:4", "ln")
        A.lds(f"ds_read_b32 {v(V_R1)}, {v(TE)} offset:256", "ln")
        A.lds(f"ds_read_b32 {v(BX1)}, {v(TE)} offset:260", "ln")
        NB = 4
        BR = 224

        def tile_loop(t, base_off, bx, extra_ops, nbg):
            acc = ACC + 16 * t
            for st in range(NB):
                A.lds(f"ds_read_b128 {a(BR+4*(st%8),4)}, {v(VB+st//8)} offset:{base_off+(st%8)*1024}", f"b{st}")
            A.wait_lg("ln")
            A(f"v_mfma_f32_32x32x16_bf16 {v(acc,16)}, {v(AX,4)}, {v(bx,4)}, 0")
            done_bg = 0
            for st in range(32):
                if st % 2 == 0:
                    A.wait_lg(f"b{st+1}")
                A(f"v_mfma_f32_32x32x16_bf16 {v(acc,16)}, {v(WF+4*st,4)}, {a(BR+4*(st%8),4)}, {v(acc,16)}")
                if st + NB < 32:
                    n = st + NB
                    A.lds(f"ds_read_b128 {a(BR+4*(n%8),4)}, {v(VB+n//8)} offset:{base_off+(n%8)*1024}", f"b{n}")
                if extra_ops:
                    k = -(-len(extra_ops) // (32 - st))
                    for _ in range(k):
                        if extra_ops:
                            op = extra_ops.pop(0)
                            op() if callable(op) else A(op)
                want = (st + 1) * nbg // 32
                self.bg(want - done_bg)
                done_bg = want
        tile_loop(0, R0, BX0, [], o["bg_t0"])
        self.stamp("t0")
        if o["t_g"] == 4:
            g_touch()
        A.wait_vm("x1t1")
        self.barrier()
        E0, GT = BF + 16, BF
        A.nop(10)
        for p in range(8):
            A(f"v_pk_mul_f32 {v(ACC+2*p,2)}, {v(ACC+2*p,2)}, {v(V_R0,2)} op_sel_hi:[1,0]")
        ga = self.gelu_a(ACC, 8, GT)
        for i, t in enumerate(ga):
            A(t)
            if i in (7, 15)[:o["bg_a"]]:
                self.bg(1)
        ops0 = self.gelu_b(ACC, 8, E0, GT, False)
        g0 = lambda: self.publish([
            f"buffer_store_dwordx4 {v(E0,4)}, {v(V_GS)}, {s(SRD_WS,4)}, 0 offen{{F}}",
            f"buffer_store_dwordx4 {v(E0+4,4)}, {v(V_GS)}, {s(SRD_WS,4)}, 0 offen offset:1024{{F}}"], sc1=o["g_sc1"], tag="gst")
        if not o.get("g0_late", 0):
            ops0.append(g0)
        tile_loop(1, R1, BX1, ops0, o["bg_t1"])
        self.stamp("t1")
        A(f"s_mov_b32 {s(S_T0)}, {GBATCH}")
        A.nop(11)
        E1 = BF + 24
        for p in range(8):
            A(f"v_pk_mul_f32 {v(ACC+16+2*p,2)}, {v(ACC+16+2*p,2)}, {v(V_R1,2)} op_sel_hi:[1,0]")
        e1 = self.gelu_a(ACC + 16, 8, GT) + self.gelu_b(ACC + 16, 8, E1, GT, True)
        nb = o["bg_e1"]
        for i, t in enumerate(e1):
            A(t)
            if nb and i % o.get("e1_step", 8) == o.get("e1_step", 8) - 1 and i < o.get("e1_step", 8) * nb:
                self.bg(1)
        if o.get("g0_late", 0):
            g0()
        self.publish([
            f"buffer_store_dwordx4 {v(E1,4)}, {v(V_GS)}, {s(SRD_WS,4)}, {s(S_T0)} offen{{F}}",
            f"buffer_store_dwordx4 {v(E1+4,4)}, {v(V_GS)}, {s(SRD_WS,4)}, {s(S_T0)} offen offset:1024{{F}}"], sc1=o["g_sc1"], tag="gst")
        self.stamp("epi1")
        A(f"s_add_u32 {s(S_T0)}, {s(S_FRAG)}, {X1B}")
        A(f"v_add_u32 {v(TE)}, {s(S_T0)}, {v(V_L16)}")
        A.vmem(f"buffer_load_dwordx4 {v(X1P,4)}, {v(TE)}, {s(SRD_WS,4)}, 0 offen sc1", "res")
        A.wait_vm("gst")
        self.publish([f"buffer_store_dword {v(V_TAG)}, {v(V_FS3)}, {s(SRD_WS,4)}, 0 offen{{F}}"], sc1=o["g_sc1"])
        self.stamp("flag3")

        A.c("w4 rest")
        self.bg_flush()
        A("L_join:")
        A(f"s_mul_i32 {s(S_T0)}, {s(S_B)}, {GBATCH}")
        A(f"s_mul_i32 {s(S_T2)}, {s(S_W)}, {28*1024}")
        A(f"s_add_u32 {s(S_T0)}, {s(S_T0)}, {s(S_T2)}")
        A(f"s_add_u32 {s(S_T0)}, {s(S_T0)}, {GB}")
        A(f"v_add_u32 {v(TF)}, {s(S_T0)}, {v(V_L16)}")
        A.wait_vm("res")
        for p in range(4):
            A(f"v_lshlrev_b32 {v(SCOL+2*p)}, 16, {v(X1P+p)}")
            A(f"v_and_b32 {v(SCOL+2*p+1)}, 0xffff0000, {v(X1P+p)}")
        A.wait_lg()
        self.stamp("w4done")

        if o.get("wb", 0) == 1:
            Lw = A.label("L_nowb")
            A(f"s_lshl_b32 {s(S_T0)}, {s(S_J)}, 2")
            A(f"s_add_u32 {s(S_T0)}, {s(S_T0)}, {s(S_W)}")
            A(f"s_cmp_lg_u32 {s(S_T0)}, 12")
            A(f"s_cbranch_scc1 {Lw}")
            A("buffer_wbl2 sc1")
            A(f"{Lw}:")
        A.c("S4")
        A(f"s_lshl_b32 {s(S_T0)}, {s(S_PG)}, 8")
        A(f"s_mul_i32 {s(S_T2)}, {s(S_W)}, 56")
        A(f"s_add_u32 {s(S_T0)}, {s(S_T0)}, {s(S_T2)}")
        A(f"s_add_u32 {s(S_T0)}, {s(S_T0)}, {FL3}")
        A(f"v_min_u32 {v(TE)}, 13, {v(V_L)}")
        A(f"v_lshl_add_u32 {v(TE)}, {v(TE)}, 2, {s(S_T0)}")
        self.poll(TE, TG)
        self.stamp("poll3")
        def gload(i):
            if i == 0:
                A(f"s_lshl_b32 {s(S_OFF)}, {s(S_R4)}, 12")
            elif i % 4 == 0:
                A(f"s_add_u32 {s(S_OFF)}, {s(S_OFF)}, 4096")
                A(f"s_cmp_eq_u32 {s(S_OFF)}, 28672")
                A(f"s_cselect_b32 {s(S_OFF)}, 0, {s(S_OFF)}")
            off = f" offset:{(i%4)*1024}" if i % 4 else ""
            A.vmem(f"buffer_load_dwordx4 {v(WF+4*i,4)}, {v(TF)}, {s(SRD_WS,4)}, {s(S_OFF)} offen{off} sc1", f"g{i}")
        NG = o.get("g_ahead", 10)
        for i in range(NG):
            gload(i)
        VR = V_T
        for k in (1, 2, 3):
            A(f"v_xor_b32 {v(VR+k-1)}, {k*8192}, {v(V_RED)}")
        for st in range(28):
            A.wait_vm(f"g{st}")
            c0 = "0" if st == 0 else v(ACC, 16)
            c1 = "0" if st == 0 else v(ACC + 16, 16)
            A(f"v_mfma_f32_32x32x16_bf16 {v(ACC,16)}, {a(8*st,4)}, {v(WF+4*st,4)}, {c0}")
            if st + NG < 28:
                gload(st + NG)
            A(f"v_mfma_f32_32x32x16_bf16 {v(ACC+16,16)}, {a(8*st+4,4)}, {v(WF+4*st,4)}, {c1}")
        self.stamp("s4mfma")
        A.nop(12)
        for k in (1, 2, 3):
            A.lds(f"ds_write_b128 {v(V_RED)}, {v(ACC+8*k,4)} offset:{k*2048}")
            A.lds(f"ds_write_b128 {v(V_RED)}, {v(ACC+8*k+4,4)} offset:{k*2048+1024}")
        A.wait_lg()
        self.barrier()
        self.stamp("s4bar")
        for k in (1, 2, 3):
            A.lds(f"ds_read_b128 {v(BF+8*(k-1),4)}, {v(VR+k-1)} offset:{k*2048}", f"red{k}")
            A.lds(f"ds_read_b128 {v(BF+8*(k-1)+4,4)}, {v(VR+k-1)} offset:{k*2048+1024}", f"red{k}")
        for p in range(4):
            A(f"v_pk_add_f32 {v(ACC+2*p,2)}, {v(ACC+2*p,2)}, {v(SCOL+2*p,2)}")
        for k in (1, 2, 3):
            A.wait_lg(f"red{k}")
            for p in range(4):
                A(f"v_pk_add_f32 {v(ACC+2*p,2)}, {v(ACC+2*p,2)}, {v(BF+8*(k-1)+2*p,2)}")
        for p in range(4):
            A(f"v_cvt_pk_bf16_f32 {v(BF+24+p)}, {v(ACC+2*p)}, {v(ACC+2*p+1)}")
        of = {0: "", 1: " sc1", 2: " nt", 3: " sc0 sc1"}[o.get("out_fl", 0)]
        A.vmem(f"buffer_store_dwordx2 {v(BF+24,2)}, {v(V_RO)}, {s(SRD_O,4)}, 0 offen{of}")
        A.vmem(f"buffer_store_dwordx2 {v(BF+26,2)}, {v(V_RO)}, {s(SRD_O,4)}, 0 offen offset:16{of}")
        self.stamp("end")
        if self.profile:
            A("s_memtime s[28:29]")
            A("s_waitcnt lgkmcnt(0)")
            A("s_sub_u32 s28, s28, s84")
            A(f"s_lshl_b32 {s(S_T0)}, s2, 2")
            A(f"s_add_u32 {s(S_T0)}, {s(S_T0)}, {s(S_W)}")
            A(f"s_lshl_b32 {s(S_T0)}, {s(S_T0)}, 7")
            A(f"s_add_u32 {s(S_T0)}, {s(S_T0)}, {PROF}")
            A(f"v_mov_b32 {v(V_T)}, {s(S_T0)}")
            for i in range(self.nstamp):
                A(f"v_mov_b32 {v(V_T+1)}, {s(S_STAMP+2*i)}")
                A(f"buffer_store_dword {v(V_T+1)}, {v(V_T)}, {s(SRD_WS,4)}, 0 offen offset:{4*i}")
            A(f"v_mov_b32 {v(V_T+1)}, s28")
            A(f"buffer_store_dword {v(V_T+1)}, {v(V_T)}, {s(SRD_WS,4)}, 0 offen offset:{4*31}")
        A("L_end:")
        A("s_endpgm")
        self.idle_block()
        for b in self.slow_blocks:
            A(b)
        A("L_code_end:")
        A("s_endpgm")

    def w3_items(self):
        A = self.A
        items = []
        for c in range(4):
            for i in range(8):
                def item(c=c, i=i):
                    k = i % 4
                    want = (S_L8, R1 + c * 32768 + 1024 * (i - k))
                    if k and self.m0 != want:
                        A(f"s_add_u32 m0, {s(S_L8)}, {want[1]}")
                        A("s_nop 0")
                        self.m0 = want
                    if k == 0:
                        self.m0 = want
                        A(f"s_add_u32 m0, {s(S_L8)}, {R1 + c*32768 + 1024*i}")
                        if c == 0 and i == 0:
                            A("s_nop 0")
                        elif i == 4:
                            A(f"v_add_u32 {v(V_W3D)}, {16*3584}, {v(V_W3D)}")
                        else:
                            A(f"s_mov_b32 {s(S_OFF)}, {(128-16)*3584}")
                            A(f"s_cmp_eq_u32 {s(S_R2)}, {4-c}")
                            A(f"s_cselect_b32 {s(S_OFF)}, {((128-16-512)*3584) & 0xffffffff}, {s(S_OFF)}")
                            A(f"v_add_u32 {v(V_W3D)}, {s(S_OFF)}, {v(V_W3D)}")
                    so = "0" if k == 0 else s(S_D + k - 1)
                    off = f" offset:{1024*k}" if k else ""
                    A.vmem(f"buffer_load_dwordx4 {v(V_W3D)}, {s(SRD_W3,4)}, {so} offen{off} lds", f"c{c}")
                items.append(item)
        return items

    def idle_block(self):
        A = self.A
        o = self.o
        A.vm = list(self.idle_vm)
        A.lg = []
        A("L_idle:")
        if o["t_idle"]:
            A(f"s_lshl_b32 {s(S_T0)}, {s(S_PG)}, 1")
            A(f"s_lshr_b32 {s(S_T1)}, {s(S_U)}, 3")
            A(f"s_add_u32 {s(S_T0)}, {s(S_T0)}, {s(S_T1)}")
            A(f"s_lshl_b32 {s(S_T0)}, {s(S_T0)}, 2")
            A(f"s_add_u32 {s(S_T0)}, {s(S_T0)}, {s(S_W)}")
            A(f"s_mul_i32 {s(S_T0)}, {s(S_T0)}, {112*128}")
            A(f"v_lshl_add_u32 {v(TG)}, {v(V_L)}, 7, {s(S_T0)}")
            A(f"v_cmp_gt_u32 vcc, 56, {v(V_L)}")
            A(f"v_mov_b32 {v(TH)}, {OOB:#x}")
            A(f"s_mov_b32 {s(S_T1)}, {56*128}")
            A(f"v_cndmask_b32 {v(TG)}, {v(TH)}, {v(TG)}, vcc")
            self.touch(TG, SRD_W4)
            self.touch(TG, SRD_W4, s(S_T1))
        if o["t_g"] == 1 and not o["g_sc1"]:
            A(f"s_lshr_b32 {s(S_T0)}, {s(S_U)}, 3")
            A(f"s_lshl_b32 {s(S_T0)}, {s(S_T0)}, 2")
            A(f"s_add_u32 {s(S_T0)}, {s(S_T0)}, {s(S_W)}")
            A(f"s_mul_i32 {s(S_T0)}, {s(S_T0)}, {224*128}")
            A(f"s_mul_i32 {s(S_T1)}, {s(S_B0)}, {GBATCH}")
            A(f"s_add_u32 {s(S_T0)}, {s(S_T0)}, {s(S_T1)}")
            A(f"s_add_u32 {s(S_T0)}, {s(S_T0)}, {GB}")
            A(f"v_lshl_add_u32 {v(TF)}, {v(V_L)}, 7, {s(S_T0)}")
            A(f"v_cmp_gt_u32 vcc, 56, {v(V_L)}")
            A(f"v_mov_b32 {v(TH)}, {OOB:#x}")
            A("s_nop 0")
            A(f"v_cndmask_b32 {v(TF)}, {v(TH)}, {v(TF)}, vcc")
            for i in range(4):
                A(f"s_mov_b32 {s(S_T1)}, {i*56*128}")
                self.touch(TF, SRD_WS, s(S_T1))
        A(f"s_mul_i32 {s(S_T4)}, {s(S_W)}, 40960")
        A(f"s_add_u32 {s(S_T0)}, {s(S_L16)}, {R3}")
        A(f"s_sub_u32 {s(S_T0)}, {s(S_T4)}, {s(S_T0)}")
        A(f"v_add_u32 {v(V_A2)}, {s(S_T0)}, {v(V_A0)}")
        A(f"v_xor_b32 {v(V_A3)}, 64, {v(V_A2)}")

        def dma(hh):
            def last():
                A(f"s_mov_b32 {s(S_OFF)}, 32768")
                A(f"s_cmp_eq_u32 {s(S_R4)}, {6-hh}")
                A(f"s_cselect_b32 {s(S_OFF)}, {(32768 - 7*65536) & 0xffffffff}, {s(S_OFF)}")
                A(f"v_add_u32 {v(V_WD)}, {s(S_OFF)}, {v(V_WD)}")
            for it in self.wdma_items(SRD_W4, [V_WD], 8, S_T4, (hh % 5) * 8192, S_C, 32768, f"i4d{hh}", last=last):
                it()

        def park(hh):
            w4f = lambda st, f, hh=hh: (lambda o_, n: a(8 * (4 * hh + st) + 4 * f + o_, n))
            A.wait_vm(f"i4d{hh}")
            for it in self.tr_items(w4f, [V_A2, V_A3], 4, 2048, 1024, 2, f"i4f{hh}", off0=(hh % 5) * 8192):
                it()
        for hh in range(5):
            dma(hh)
        park(0)
        park(1)
        A.wait_lg()
        dma(5)
        dma(6)
        A(f"s_add_u32 {s(S_T0)}, {s(S_FRAG)}, {X1B}")
        A(f"v_add_u32 {v(TE)}, {s(S_T0)}, {v(V_L16)}")
        A.vmem(f"buffer_load_dwordx4 {v(X1P,4)}, {v(TE)}, {s(SRD_WS,4)}, 0 offen sc1", "res")
        for hh in range(2, 7):
            park(hh)
        A("s_waitcnt vmcnt(0) lgkmcnt(0)")
        A("s_branch L_join")

    def poll1(self, HP, between=None):
        A = self.A
        L, Ld, Ln, Lg = A.label("L_p1"), A.label("L_p1d"), A.label("L_p1n"), A.label("L_p1g")
        A(f"v_lshl_add_u32 {v(TH)}, {v(V_I)}, 3, {s(S_HSP)}")
        A.vmem(f"buffer_load_dword {v(TG)}, {v(TE)}, {s(SRD_WS,4)}, 0 offen sc1", "poll")
        A.vmem(f"buffer_load_dwordx2 {v(SUM,2)}, {v(TH)}, {s(SRD_WS,4)}, 0 offen sc1", "poll")
        if between:
            between()
        A(f"s_mov_b32 {s(S_MODE)}, 1")
        A(f"s_mov_b32 {s(S_CNT)}, 0x8000")
        A.wait_vm("poll")
        A(f"v_cmp_ne_u32 vcc, {s(S_TAG)}, {v(SUM)}")
        A(f"v_cmp_ne_u32 {s(S_EX,2)}, {s(S_TAG)}, {v(TG)}")
        A(f"v_cmp_ne_u32 {s(16,2)}, {s(S_XCC)}, {v(SQ)}")
        A("s_nop 3")
        A(f"s_or_b64 vcc, vcc, {s(S_EX,2)}")
        A(f"s_or_b64 vcc, vcc, {s(16,2)}")
        A(f"s_cbranch_scc1 {L}")
        A(f"{Ld}:")
        blk = f"""{L}:
s_mov_b32 {s(S_MODE)}, 0
buffer_load_dword {v(TG)}, {v(TE)}, {s(SRD_WS,4)}, 0 offen sc1
buffer_load_dwordx2 {v(SUM,2)}, {v(TH)}, {s(SRD_WS,4)}, 0 offen sc1
s_sub_u32 {s(S_CNT)}, {s(S_CNT)}, 1
s_cmp_eq_u32 {s(S_CNT)}, 0
s_cbranch_scc1 {Ld}
s_waitcnt vmcnt(0)
v_cmp_ne_u32 vcc, {s(S_TAG)}, {v(SUM)}
v_cmp_ne_u32 {s(S_EX,2)}, {s(S_TAG)}, {v(TG)}
s_nop 4
s_cmp_eq_u64 vcc, 0
s_cbranch_scc0 {L}
v_cmp_ne_u32 vcc, {s(S_XCC)}, {v(SQ)}
s_nop 4
s_cmp_eq_u64 vcc, 0
s_cbranch_scc0 {Ln}
s_cmp_eq_u64 {s(S_EX,2)}, 0
s_cbranch_scc0 {L}
s_mov_b32 {s(S_MODE)}, 1
s_branch {Ld}
{Ln}:
buffer_store_dwordx2 {v(HP,2)}, {v(V_FO)}, {s(SRD_WS,4)}, 0 offen sc1
buffer_store_dwordx2 {v(HP+2,2)}, {v(V_FO)}, {s(SRD_WS,4)}, 0 offen offset:256 sc1
v_add_u32 {v(TG)}, {FL1G-FL1}, {v(V_FS1)}
s_waitcnt vmcnt(0)
buffer_store_dword {v(V_TAG)}, {v(TG)}, {s(SRD_WS,4)}, 0 offen sc1
v_add_u32 {v(TE)}, {FL1G-FL1}, {v(TE)}
{Lg}:
buffer_load_dword {v(TG)}, {v(TE)}, {s(SRD_WS,4)}, 0 offen sc1
s_sub_u32 {s(S_CNT)}, {s(S_CNT)}, 1
s_cmp_eq_u32 {s(S_CNT)}, 0
s_cbranch_scc1 {Ld}
s_waitcnt vmcnt(0)
v_cmp_ne_u32 vcc, {s(S_TAG)}, {v(TG)}
s_nop 4
s_cmp_eq_u64 vcc, 0
s_cbranch_scc0 {Lg}
s_branch {Ld}"""
        self.slow_blocks.append(blk)


HEADER = """; Kernarg layout: x, w1, w2, w3, w4, out, debug, ws (8 pointers)
; @launch grid=(256,1,1) block=(256,1,1) lds=163840
.amdgcn_target "amdgcn-amd-amdhsa--gfx950"
.text
.globl {name}_kernel
.p2align 8
.type {name}_kernel,@function
{name}_kernel:
"""
FOOTER = """.section .rodata,"a"
.p2align 6
.amdhsa_kernel {name}_kernel
  .amdhsa_next_free_vgpr 512
  .amdhsa_next_free_sgpr 102
  .amdhsa_accum_offset 256
  .amdhsa_group_segment_fixed_size 0
  .amdhsa_kernarg_size 64
  .amdhsa_user_sgpr_count 2
  .amdhsa_user_sgpr_kernarg_segment_ptr 1
  .amdhsa_system_sgpr_workgroup_id_x 1
  .amdhsa_float_denorm_mode_32 3
.end_amdhsa_kernel
"""


def generate(**kw):
    g = Gen(**kw)
    g.build()
    return HEADER.format(name=NAME) + g.A.text() + FOOTER.format(name=NAME), g


if __name__ == "__main__":
    import argparse
    ap = argparse.ArgumentParser()
    ap.add_argument("-o", default="cdna_kernels/" + NAME + ".s")
    ap.add_argument("--mode", default="auto", choices=["auto", "local", "global"])
    ap.add_argument("--profile", action="store_true")
    ap.add_argument("--opt", action="append", default=[])
    args = ap.parse_args()
    opts = {}
    for t in args.opt:
        k, val = t.split("=")
        opts[k] = val.split(",") if k == "stamps" else int(val)
    txt, g = generate(local={"auto": None, "local": True, "global": False}[args.mode], profile=args.profile, opts=opts)
    open(args.o, "w").write(txt)
    print("instructions:", g.A.ninstr, "stamps:", g.nstamp, ",".join(g.stamp_names))
    if args.profile:
        open(args.o, "a").write("; STAMPS " + ",".join(g.stamp_names) + "\n")
```

```python
import sys
import os
import struct
sys.path.insert(0, os.path.dirname(os.path.abspath(__file__)))
from asmlib import Asm, v, a, s

NAME = "standalone__mixer_s_mlp__sampling"

HB = 0
X1B = 1 << 20
GB = 2 << 20
GBATCH = 112 * 1024
STB = 6 << 20
FL = 7 << 20
FL1 = FL
FL1G = FL + 0x1000
FL2 = FL + 0x2000
FL3 = FL + 0x3000
EPO = FL + 0x4000
HS = FL + 0x5000
PROF = FL + 0x10000
WS_SIZE = 8 << 20
OOB = 0x80000000

R0, R1, R2, R3, R4 = 0, 32768, 65536, 98304, 131072
PART = R4 + 32768 - 1024
LNST = R3 + 3 * 16384 + 8192
LNDUMMY = LNST + 1024

S_T0, S_T1 = 3, 4
S_J, S_M, S_B, S_U, S_B0, S_PG, S_W = 5, 6, 7, 8, 9, 10, 11
S_TAG = 12
S_T2, S_T3 = 14, 15
SRD_X, SRD_W1, SRD_W2, SRD_W3, SRD_W4, SRD_WS, SRD_O = 16, 20, 24, 32, 36, 40, 44
S_KA = 48
S_L8, S_L16, S_L4 = 48, 49, 50
S_C = 51
S_D = 54
S_R4 = 57
S_EX = 58
S_A, S_R2, S_MODE, S_XCC = 60, 61, 62, 63
S_OFF, S_CNT, S_4096, S_T4 = 64, 65, 66, 67
S_K2 = 68
S_PC = 70
S_FRAG, S_HSRC, S_X1SRC, S_FLO, S_SL, S_IDLE, S_HSP, S_GW, S_HSV = 72, 73, 74, 75, 76, 77, 78, 79, 80
S_R2W = 81
S_HP = 82
S_STAMP = 86

V_L, V_H, V_J, V_L16 = 0, 1, 2, 3
V_WD = 4
V_W2D = 5
V_W1D = 6
V_XD = 8
V_Q, V_I = 9, 10
V_W3D, V_TR3 = 11, 12
V_RED = 13
V_K1 = 14
V_T = 16
SUM, SQ, P0, P1 = 20, 21, 22, 23
TE, TF, TG, TH = 24, 25, 26, 27
V_GS, V_HSH, V_FO, V_RO = 28, 29, 30, 31
ACC = 32
SCOL = 64
BF = 80
X1P = 112
XRES = 116
V_A0, V_A1 = 120, 121
V_R0, V_Q0, V_R1, V_Q1 = 122, 123, 124, 125
V_ONES = 126
V_TAG = 127
WF = 128
JUNK = 15
V_FS1, V_FS2, V_FS3 = 8, 6, 7
V_A2, V_A3 = 18, 19
V_ST = 5


def f2u(x):
    return struct.unpack("<I", struct.pack("<f", x))[0]


class Gen:
    def __init__(self, local=None, profile=False, opts=None):
        self.A = Asm()
        self.force = local
        self.profile = profile
        self.nstamp = 0
        self.stamp_names = []
        self.slow_blocks = []
        self.bgq = []
        self.m0 = None
        self.o = dict(codepf=1, t_ex=1, g_sc1=0, t_g=4, w2rot_a=1, qord=1, t_w2=1, mimic_ln=0, rot=1, xrot=1, t_idle=1,
                      w2_s1=16, w2_pre=5, s1_stages=1,
                      c_f1=6,
                      c_e=4,
                      c_h=0,
                      c_s2=10,
                      c_p2=6,
                      bg_t0=16, bg_a=2, bg_t1=22, bg_e1=4)
        if opts:
            self.o.update(opts)

    def stamp(self, name="?"):
        if not self.profile:
            return
        want = self.o.get("stamps")
        if want is not None and name not in want:
            return
        A = self.A
        r = S_STAMP + 2 * self.nstamp
        assert r + 1 <= 101, "too many stamps"
        self.nstamp += 1
        self.stamp_names.append(name)
        A(f"s_memrealtime {s(r,2)}")
        A.force_lg0 = True

    def bg(self, n=1):
        for _ in range(n):
            if self.bgq:
                self.bgq.pop(0)()

    def bg_flush(self):
        self.bg(len(self.bgq))

    def wdma_items(self, srd, vaddrs, n, lds_sgpr, lds_const, consts, group_step, tag, xor=False, last=None):
        A = self.A
        items = []
        for i in range(n):
            def item(i=i):
                k = i % 4
                want = (lds_sgpr, lds_const + 1024 * (i - k))
                if k and self.m0 != want:
                    A(f"s_add_u32 m0, {s(lds_sgpr)}, {want[1]}")
                    A("s_nop 0")
                    self.m0 = want
                if k == 0:
                    A(f"s_add_u32 m0, {s(lds_sgpr)}, {lds_const + 1024*i}")
                    self.m0 = want
                    if i == 0:
                        A("s_nop 0")
                    else:
                        g = i // 4
                        for va in sorted(set(vaddrs)):
                            if xor:
                                A(f"v_xor_b32 {v(va)}, {(g ^ (g-1))*group_step}, {v(va)}")
                            else:
                                A(f"v_add_u32 {v(va)}, {group_step}, {v(va)}")
                so = "0" if k == 0 else s(consts + k - 1)
                off = f" offset:{1024*k}" if k else ""
                A.vmem(f"buffer_load_dwordx4 {v(vaddrs[i % len(vaddrs)])}, {s(srd,4)}, {so} offen{off} lds", tag)
                if i == n - 1:
                    if last:
                        last()
                    elif not xor:
                        for va in sorted(set(vaddrs)):
                            A(f"v_add_u32 {v(va)}, {group_step}, {v(va)}")
            items.append(item)
        return items

    def lin_dma(self, vaddr, n, lds_sgpr, lds_const, g_sgpr, g_const, tag):
        A = self.A
        for i in range(n):
            if i % 4 == 0:
                A(f"s_add_u32 m0, {s(lds_sgpr)}, {lds_const + 1024*i}")
                self.m0 = (lds_sgpr, lds_const + 1024 * i)
                A(f"s_add_u32 {s(S_OFF)}, {s(g_sgpr)}, {g_const + 1024*i}")
            off = f" offset:{1024*(i%4)}" if i % 4 else ""
            A.vmem(f"buffer_load_dwordx4 {v(vaddr)}, {s(SRD_WS,4)}, {s(S_OFF)} offen{off} sc1 lds", tag)

    def tr_items(self, dst_fn, base_v, nsteps, step_bytes, second, tiles, tag, off0=0):
        A = self.A
        items = []
        for st in range(nsteps):
            for f in range(tiles):
                def item(st=st, f=f):
                    reg = dst_fn(st, f)
                    bv = base_v[f]
                    A.lds(f"ds_read_b64_tr_b16 {reg(0,2)}, {v(bv)} offset:{off0+st*step_bytes}", tag)
                    A.lds(f"ds_read_b64_tr_b16 {reg(2,2)}, {v(bv)} offset:{off0+st*step_bytes+second}", tag)
                items.append(item)
        return items

    def publish(self, stores, sc1=False, tag=None):
        A = self.A
        if sc1 or self.force is False:
            for t in stores:
                A.vmem(t.replace("{F}", " sc1"), tag)
            return
        if self.force is True:
            for t in stores:
                A.vmem(t.replace("{F}", ""), tag)
            return
        Ls, Lb = A.label("L_slow"), A.label("L_back")
        A(f"s_cmp_eq_u32 {s(S_MODE)}, 1")
        A(f"s_cbranch_scc0 {Ls}")
        for t in stores:
            A.vmem(t.replace("{F}", ""), tag)
        A(f"{Lb}:")
        blk = [f"{Ls}:"] + [t.replace("{F}", " sc1") for t in stores] + [f"s_branch {Lb}"]
        self.slow_blocks.append("\n".join(blk))

    def poll(self, vaddr, vtmp, between=None):
        A = self.A
        L = A.label("L_poll")
        Ld = A.label("L_polld")
        A.vmem(f"buffer_load_dword {v(vtmp)}, {v(vaddr)}, {s(SRD_WS,4)}, 0 offen sc1", "poll")
        if between:
            between()
        A.wait_vm("poll")
        A(f"v_cmp_ne_u32 vcc, {s(S_TAG)}, {v(vtmp)}")
        A(f"s_mov_b32 {s(S_CNT)}, 0x8000")
        A("s_nop 3")
        A("s_cmp_eq_u64 vcc, 0")
        A(f"s_cbranch_scc0 {L}")
        A(f"{Ld}:")
        blk = f"""{L}:
buffer_load_dword {v(vtmp)}, {v(vaddr)}, {s(SRD_WS,4)}, 0 offen sc1
s_sub_u32 {s(S_CNT)}, {s(S_CNT)}, 1
s_cmp_eq_u32 {s(S_CNT)}, 0
s_cbranch_scc1 {Ld}
s_waitcnt vmcnt(0)
v_cmp_ne_u32 vcc, {s(S_TAG)}, {v(vtmp)}
s_nop 4
s_cmp_eq_u64 vcc, 0
s_cbranch_scc0 {L}
s_branch {Ld}"""
        self.slow_blocks.append(blk)

    def barrier(self):
        self.A("s_barrier")

    def gelu_a(self, src, n, t0):
        ops = []
        for p in range(n):
            ops.append(f"v_pk_mul_f32 {v(t0+2*p,2)}, {v(src+2*p,2)}, {v(src+2*p,2)}")
        for p in range(n):
            ops.append(f"v_pk_fma_f32 {v(t0+2*p,2)}, {v(t0+2*p,2)}, {s(S_K2,2)}, {v(V_K1,2)} op_sel_hi:[1,1,0]")
        for p in range(n):
            ops.append(f"v_pk_mul_f32 {v(t0+2*p,2)}, {v(t0+2*p,2)}, {v(src+2*p,2)}")
        return ops

    def gelu_b(self, src, n, dst, t0, packed):
        ops = []
        for e in range(2 * n):
            ops.append(f"v_exp_f32 {v(t0+e)}, {v(t0+e)}")
        if packed:
            for p in range(n):
                ops.append(f"v_pk_add_f32 {v(t0+2*p,2)}, {v(t0+2*p,2)}, 1.0 op_sel_hi:[1,0]")
        else:
            for e in range(2 * n):
                ops.append(f"v_add_f32 {v(t0+e)}, 1.0, {v(t0+e)}")
        for e in range(2 * n):
            ops.append(f"v_rcp_f32 {v(t0+e)}, {v(t0+e)}")
        if packed:
            for p in range(n):
                ops.append(f"v_pk_mul_f32 {v(t0+2*p,2)}, {v(t0+2*p,2)}, {v(src+2*p,2)}")
        else:
            for e in range(2 * n):
                ops.append(f"v_mul_f32 {v(t0+e)}, {v(t0+e)}, {v(src+e)}")
        for p in range(n):
            ops.append(f"v_cvt_pk_bf16_f32 {v(dst+p)}, {v(t0+2*p)}, {v(t0+2*p+1)}")
        return ops

    def round_bf16(self, reg, tmp):
        A = self.A
        A(f"v_cvt_pk_bf16_f32 {v(tmp)}, {v(reg)}, {v(reg)}")
        A(f"v_lshlrev_b32 {v(reg)}, 16, {v(tmp)}")

    def round_to(self, src, tmp, dst):
        A = self.A
        A(f"v_cvt_pk_bf16_f32 {v(tmp)}, {v(src)}, {v(src)}")
        A(f"v_lshlrev_b32 {v(dst)}, 16, {v(tmp)}")

    def ln_scalars(self, vsum, vsq, vr, vq, t, mpair=False):
        A = self.A
        if not self.o["mimic_ln"]:
            A(f"v_mul_f32 {v(vsum)}, 0xbb000000, {v(vsum)}")
            A(f"v_mul_f32 {v(vsq)}, 0x3b000000, {v(vsq)}")
            A(f"v_fma_f32 {v(vsq)}, -{v(vsum)}, {v(vsum)}, {v(vsq)}")
            A(f"v_max_f32 {v(vsq)}, 0, {v(vsq)}")
            A(f"v_add_f32 {v(vsq)}, 0x3727c5ac, {v(vsq)}")
            A(f"v_rsq_f32 {v(vr)}, {v(vsq)}")
            if mpair:
                A(f"v_cvt_pk_bf16_f32 {v(vq)}, {v(vsum)}, {v(vsum)}")
            else:
                A("s_nop 0")
                A(f"v_mul_f32 {v(vq)}, {v(vsum)}, {v(vr)}")
            return
        A(f"v_mul_f32 {v(vsum)}, 0x3b000000, {v(vsum)}")
        A(f"v_mul_f32 {v(vsq)}, 0x3b000000, {v(vsq)}")
        A(f"v_fma_f32 {v(vsq)}, -{v(vsum)}, {v(vsum)}, {v(vsq)}")
        A(f"v_max_f32 {v(vsq)}, 0, {v(vsq)}")
        if mpair:
            A(f"v_sub_f32 {v(vsum)}, 0, {v(vsum)}")
            A(f"v_cvt_pk_bf16_f32 {v(vq)}, {v(vsum)}, {v(vsum)}")
        else:
            self.round_bf16(vsum, t)
        self.round_bf16(vsq, t)
        A(f"v_add_f32 {v(vsq)}, 0x3727c5ac, {v(vsq)}")
        self.round_bf16(vsq, t)
        A(f"v_sqrt_f32 {v(vsq)}, {v(vsq)}")
        A("s_nop 0")
        self.round_bf16(vsq, t)
        A(f"v_rcp_f32 {v(vr)}, {v(vsq)}")
        if not mpair:
            A("s_nop 0")
            A(f"v_mul_f32_e64 {v(vq)}, -{v(vsum)}, {v(vr)}")

    def lane_sum(self, regs, tmps, x32=True, x16=False):
        A = self.A
        for op, on in (("v_permlane32_swap_b32", x32), ("v_permlane16_swap_b32", x16)):
            if not on:
                continue
            for r, t in zip(regs, tmps):
                A(f"v_mov_b32 {v(t)}, {v(r)}")
            A.nop(max(0, 3 - len(regs)) if len(regs) < 3 else 0)
            if len(regs) >= 3:
                A("s_nop 0")
            for r, t in zip(regs, tmps):
                A(f"{op} {v(r)}, {v(t)}")
            A("s_nop 1")
            for r, t in zip(regs, tmps):
                A(f"v_add_f32 {v(r)}, {v(r)}, {v(t)}")

    def touch(self, vaddr, srd, so="0"):
        self.A.vmem(f"buffer_load_dword {v(JUNK)}, {v(vaddr)}, {s(srd,4)}, {so} offen", "touch")

    def wave0_addr(self, vdst, sreg):
        A = self.A
        A(f"s_cmp_eq_u32 {s(S_W)}, 0")
        A(f"s_cselect_b32 {s(sreg)}, {s(sreg)}, {OOB}")
        A(f"v_mov_b32 {v(vdst)}, {s(sreg)}")

    def build(self):
        A = self.A
        o = self.o
        T = V_T
        A("s_cmp_ge_u32 s2, 256")
        A("s_cbranch_scc1 L_end")
        A(f"s_load_dwordx16 {s(S_KA,16)}, s[0:1], 0")
        if self.profile:
            A("s_memtime s[84:85]")
        self.stamp("start")
        A(f"v_lshrrev_b32 {v(T)}, 6, v0")
        A(f"v_and_b32 {v(V_L)}, 63, v0")
        A(f"s_lshr_b32 {s(S_J)}, s2, 3")
        A(f"v_readfirstlane_b32 {s(S_W)}, {v(T)}")
        A(f"s_and_b32 {s(S_M)}, {s(S_J)}, 7")
        A(f"s_and_b32 {s(S_T0)}, s2, 7")
        A(f"s_lshl_b32 {s(S_B)}, {s(S_T0)}, 2")
        A(f"s_lshr_b32 {s(S_T1)}, {s(S_J)}, 3")
        A(f"s_add_u32 {s(S_B)}, {s(S_B)}, {s(S_T1)}")
        A(f"v_lshrrev_b32 {v(V_Q)}, 4, {v(V_L)}")
        A(f"v_and_b32 {v(V_I)}, 15, {v(V_L)}")
        A(f"v_lshrrev_b32 {v(T)}, 3, {v(V_L)}")
        A(f"v_lshlrev_b32 {v(T)}, 10, {v(T)}")
        A(f"v_and_b32 {v(T+1)}, 7, {v(V_L)}")
        A(f"s_and_b32 {s(S_T0)}, {s(S_W)}, 1")
        A(f"s_lshl_b32 {s(S_T0)}, {s(S_T0)}, 2")
        A(f"v_xor_b32 {v(T+2)}, {v(T+1)}, {v(V_Q)}")
        A(f"v_xor_b32 {v(T+2)}, {s(S_T0)}, {v(T+2)}")
        A(f"v_lshl_add_u32 {v(T+2)}, {v(T+2)}, 4, {v(T)}")
        A(f"s_lshl_b32 {s(S_T0)}, {s(S_B)}, 15")
        A(f"s_lshl_b32 {s(S_T1)}, {s(S_W)}, 13")
        A(f"s_add_u32 {s(S_HSRC)}, {s(S_T0)}, {s(S_T1)}")
        A(f"v_add_u32 {v(V_XD)}, {s(S_HSRC)}, {v(T+2)}")
        A(f"v_and_b32 {v(T+2)}, 1, {v(V_Q)}")
        A(f"v_lshlrev_b32 {v(T+2)}, 1, {v(T+2)}")
        A(f"v_xor_b32 {v(T+2)}, {v(T+1)}, {v(T+2)}")
        A(f"v_lshl_add_u32 {v(T+2)}, {v(T+2)}, 4, {v(T)}")
        A(f"s_lshl_b32 {s(S_T0)}, {s(S_M)}, 7")
        A(f"s_lshl_b32 {s(S_T1)}, {s(S_W)}, 15")
        A(f"s_add_u32 {s(S_T1)}, {s(S_T1)}, {s(S_T0)}")
        if o["rot"]:
            A(f"s_lshr_b32 {s(S_T0)}, {s(S_J)}, 3")
            A(f"s_lshl_b32 {s(S_T0)}, {s(S_T0)}, 17")
            A(f"s_add_u32 {s(S_T1)}, {s(S_T1)}, {s(S_T0)}")
        A(f"v_add_u32 {v(V_W1D)}, {s(S_T1)}, {v(T+2)}")
        A(f"v_xor_b32 {v(V_W1D+1)}, 64, {v(V_W1D)}")
        for srd, size in ((SRD_X, 1 << 20), (SRD_W1, 1 << 19), (SRD_WS, WS_SIZE), (SRD_W2, 1 << 19), (SRD_W3, 512 * 3584),
                          (SRD_W4, 1792 * 1024), (SRD_O, 1 << 20)):
            A(f"s_mov_b32 {s(srd+2)}, {size}")
            A(f"s_mov_b32 {s(srd+3)}, 0x20000")
        A(f"s_lshr_b32 {s(S_PG)}, {s(S_B)}, 1")
        A(f"s_and_b32 {s(S_U)}, {s(S_J)}, 15")
        A(f"s_and_b32 {s(S_B0)}, {s(S_B)}, 0xfe")
        A(f"s_cmp_gt_u32 {s(S_U)}, 3")
        A(f"s_cselect_b32 {s(S_T0)}, 1, 0")
        A(f"s_sub_u32 {s(S_SL)}, {s(S_U)}, {s(S_T0)}")
        A(f"s_cmp_gt_u32 {s(S_U)}, 11")
        A(f"s_cselect_b32 {s(S_T0)}, 1, 0")
        A(f"s_sub_u32 {s(S_SL)}, {s(S_SL)}, {s(S_T0)}")
        A(f"s_cmp_eq_u32 {s(S_M)}, 3")
        A(f"s_cselect_b32 {s(S_IDLE)}, 1, 0")
        if o["codepf"]:
            A(f"s_getpc_b64 {s(S_PC,2)}")
            A("L_pc0:")
            A(f"s_lshl_b32 {s(S_T3)}, {s(S_J)}, 2")
            A(f"s_add_u32 {s(S_T3)}, {s(S_T3)}, {s(S_W)}")
            A(f"s_lshl_b32 {s(S_T3)}, {s(S_T3)}, 8")
            A(f"v_lshl_add_u32 {v(TE)}, {v(V_L)}, 7, {s(S_T3)}")
            A(f"s_mov_b32 {s(S_T4)}, L_code_end-L_pc0")
            A(f"v_cmp_gt_u32 vcc, 2, {v(V_L)}")
        def code_pf(ex):
            A(f"v_cmp_gt_u32 {s(ex,2)}, {s(S_T4)}, {v(TE)}")
            A("s_nop 1")
            A(f"s_and_b64 vcc, vcc, {s(ex,2)}")
            A(f"s_and_saveexec_b64 {s(ex,2)}, vcc")
            A("s_cbranch_execz L_nopf")
            A(f"global_load_dword {v(JUNK)}, {v(TE)}, {s(S_PC,2)}")
            A("L_nopf:")
            A(f"s_mov_b64 exec, {s(ex,2)}")
        if o["codepf"] == 2:
            code_pf(28)

        A("s_waitcnt lgkmcnt(0)")
        order = (SRD_X, SRD_W1, SRD_W2, SRD_W3, SRD_W4, SRD_O, None, SRD_WS)
        for i in (0, 1):
            A(f"s_mov_b32 {s(order[i])}, {s(S_KA+2*i)}")
            A(f"s_mov_b32 {s(order[i]+1)}, {s(S_KA+2*i+1)}")
        def tlb_warm():
            for srd, off in ((SRD_WS, 0), (SRD_W2, 0), (SRD_W3, 0), (SRD_WS, 2 << 20), (SRD_W4, 0), (SRD_WS, 4 << 20), (SRD_O, 0)):
                if off:
                    A(f"s_mov_b32 {s(S_T1)}, {off}")
                A.vmem(f"buffer_load_dword {v(JUNK)}, off, {s(srd,4)}, {s(S_T1) if off else 0}", "touch")
        if o.get("tlbw", 0) == 1:
            for i in (7, 2, 3, 4, 5):
                A(f"s_mov_b32 {s(order[i])}, {s(S_KA+2*i)}")
                A(f"s_mov_b32 {s(order[i]+1)}, {s(S_KA+2*i+1)}")
            tlb_warm()
        A(f"s_lshl_b32 {s(S_T0)}, {s(S_W)}, 13")
        for i in range(8):
            A(f"s_add_u32 m0, {s(S_T0)}, {R0 + 896*i}")
            A("s_nop 0")
            off = f" offset:{128*i}" if i else ""
            A.vmem(f"buffer_load_dwordx4 {v(V_XD)}, {s(SRD_X,4)}, 0 offen{off} lds", "x" if i == 7 else f"x{i}")
        for i in (7, 2, 3, 4, 5):
            A(f"s_mov_b32 {s(order[i])}, {s(S_KA+2*i)}")
            A(f"s_mov_b32 {s(order[i]+1)}, {s(S_KA+2*i+1)}")
        A(f"s_lshl_b32 {s(S_L8)}, {s(S_W)}, 13")
        A(f"s_lshl_b32 {s(S_L16)}, {s(S_W)}, 14")
        A(f"s_lshl_b32 {s(S_L4)}, {s(S_W)}, 12")
        for k in (1, 2, 3):
            A(f"s_mov_b32 {s(S_C+k-1)}, {7168*k}")

        def w1stage(p):
            self.m0 = ("w1", p)
            A(f"s_add_u32 m0, {s(S_L4)}, {R1 + p*16384}")
            if p:
                A(f"v_xor_b32 {v(V_W1D)}, {(p ^ (p-1))*131072}, {v(V_W1D)}")
                A(f"v_xor_b32 {v(V_W1D+1)}, {(p ^ (p-1))*131072}, {v(V_W1D+1)}")
            else:
                A("s_nop 0")
            for k in range(4):
                so = "0" if k == 0 else s(S_C + k - 1)
                off = f" offset:{1024*k}" if k else ""
                A.vmem(f"buffer_load_dwordx4 {v(V_W1D + (k & 1))}, {s(SRD_W1,4)}, {so} offen{off} lds", f"w1_{p}")
        w1stage(0)
        if o.get("tlbw", 0) == 2:
            tlb_warm()
        if o["codepf"] == 1:
            code_pf(S_EX)
        A(f"s_lshl_b32 {s(S_T0)}, {s(S_PG)}, 7")
        A(f"s_add_u32 {s(S_T0)}, {s(S_T0)}, {EPO}")
        A(f"v_mov_b32 {v(V_TAG)}, {s(S_T0)}")
        A.vmem(f"buffer_load_dword {v(V_TAG)}, {v(V_TAG)}, {s(SRD_WS,4)}, 0 offen sc1", "epoch")
        if o.get("t_c3", 0) == 1:
            A(f"s_lshl_b32 {s(S_T0)}, {s(S_J)}, 2")
            A(f"s_add_u32 {s(S_T0)}, {s(S_T0)}, {s(S_W)}")
            A(f"s_lshl_b32 {s(S_T0)}, {s(S_T0)}, 12")
            A(f"s_add_u32 {s(S_T0)}, {s(S_T0)}, 384")
            A(f"v_cmp_gt_u32 vcc, 4, {v(V_L)}")
            A(f"v_lshl_add_u32 {v(TF)}, {v(V_L)}, 10, {s(S_T0)}")
            A(f"v_mov_b32 {v(TH)}, {OOB:#x}")
            A(f"v_cndmask_b32 {v(TF)}, {v(TH)}, {v(TF)}, vcc")
            self.touch(TF, SRD_W1)
            self.touch(TF, SRD_W2)
        if o["t_w2"]:
            A(f"s_lshl_b32 {s(S_T0)}, s2, 2")
            A(f"s_add_u32 {s(S_T0)}, {s(S_T0)}, {s(S_W)}")
            A(f"s_lshl_b32 {s(S_T0)}, {s(S_T0)}, 9")
            A(f"v_cmp_gt_u32 vcc, 4, {v(V_L)}")
            A(f"v_lshl_add_u32 {v(TF)}, {v(V_L)}, 7, {s(S_T0)}")
            A(f"v_mov_b32 {v(TH)}, {OOB:#x}")
            A(f"v_cndmask_b32 {v(TF)}, {v(TH)}, {v(TF)}, vcc")
            self.touch(TF, SRD_W2)
        self.stamp("issued")

        A(f"v_lshlrev_b32 {v(V_L16)}, 4, {v(V_L)}")
        A(f"v_lshrrev_b32 {v(V_H)}, 5, {v(V_L)}")
        A(f"v_and_b32 {v(V_J)}, 31, {v(V_L)}")
        A(f"s_lshl_b32 {s(S_T0)}, {s(S_B)}, 15")
        A(f"s_lshl_b32 {s(S_T1)}, {s(S_M)}, 12")
        A(f"s_add_u32 {s(S_T0)}, {s(S_T0)}, {s(S_T1)}")
        A(f"s_lshl_b32 {s(S_T1)}, {s(S_W)}, 10")
        A(f"s_add_u32 {s(S_FRAG)}, {s(S_T0)}, {s(S_T1)}")
        A(f"v_and_b32 {v(T)}, 1, {v(V_Q)}")
        A(f"v_lshlrev_b32 {v(T)}, 9, {v(T)}")
        A(f"v_lshl_add_u32 {v(T)}, {v(V_I)}, 4, {v(T)}")
        A(f"v_lshrrev_b32 {v(T+1)}, 1, {v(V_Q)}")
        A(f"v_lshl_add_u32 {v(T)}, {v(T+1)}, 3, {v(T)}")
        A(f"v_add_u32 {v(V_FO)}, {s(S_FRAG)}, {v(T)}")
        VT = SCOL + 6
        if o["t_ex"]:
            A(f"v_and_b32 {v(VT)}, 7, {v(V_L)}")
            A(f"v_lshl_add_u32 {v(VT)}, {v(VT)}, 7, {s(S_FRAG)}")
            A(f"v_lshrrev_b32 {v(TF)}, 3, {v(V_L)}")
            A(f"v_lshl_add_u32 {v(VT)}, {v(TF)}, 20, {v(VT)}")
            A(f"s_lshr_b32 {s(S_T0)}, {s(S_FRAG)}, 2")
            A(f"s_add_u32 {s(S_T0)}, {s(S_T0)}, {STB - 16*128}")
            A(f"v_lshl_add_u32 {v(TF)}, {v(V_L)}, 7, {s(S_T0)}")
            A(f"v_cmp_gt_u32 vcc, 16, {v(V_L)}")
            A(f"s_lshl_b32 {s(S_T0)}, {s(S_B)}, 7")
            A(f"s_add_u32 {s(S_T0)}, {s(S_T0)}, {FL1 - 18*0x2000}")
            A(f"v_cndmask_b32 {v(VT)}, {v(TF)}, {v(VT)}, vcc")
            A(f"v_lshl_add_u32 {v(TF)}, {v(V_L)}, 13, {s(S_T0)}")
            A(f"v_cmp_gt_u32 vcc, 18, {v(V_L)}")
            A(f"s_lshl_b32 {s(S_T0)}, {s(S_PG)}, 8")
            A(f"s_add_u32 {s(S_T0)}, {s(S_T0)}, {FL3 - 20*128}")
            A(f"v_cndmask_b32 {v(VT)}, {v(TF)}, {v(VT)}, vcc")
            A(f"v_lshl_add_u32 {v(TF)}, {v(V_L)}, 7, {s(S_T0)}")
            A(f"v_cmp_gt_u32 vcc, 20, {v(V_L)}")
            A(f"v_mov_b32 {v(TG)}, {OOB:#x}")
            A("s_nop 0")
            A(f"v_cndmask_b32 {v(VT)}, {v(TF)}, {v(VT)}, vcc")
            A(f"v_cmp_gt_u32 vcc, 22, {v(V_L)}")
            A("s_nop 1")
            A(f"v_cndmask_b32 {v(VT)}, {v(TG)}, {v(VT)}, vcc")
        if o["t_ex"] and o.get("early_touch", 0):
            self.touch(VT, SRD_WS)
        A(f"s_lshl_b32 {s(S_T0)}, {s(S_B)}, 15")
        A(f"s_lshl_b32 {s(S_T1)}, {s(S_M)}, 7")
        A(f"s_add_u32 {s(S_T0)}, {s(S_T0)}, {s(S_T1)}")
        A(f"s_lshl_b32 {s(S_T1)}, {s(S_W)}, 5")
        A(f"s_add_u32 {s(S_T3)}, {s(S_T0)}, {s(S_T1)}")
        A(f"v_lshlrev_b32 {v(T)}, 10, {v(V_I)}")
        A(f"v_lshl_add_u32 {v(T)}, {v(V_Q)}, 3, {v(T)}")
        A(f"v_add_u32 {v(T)}, {s(S_T3)}, {v(T)}")
        A(f"s_mov_b32 {s(S_T0)}, 16384")
        A.vmem(f"buffer_load_dwordx2 {v(XRES,2)}, {v(T)}, {s(SRD_X,4)}, 0 offen", "xres")
        A.vmem(f"buffer_load_dwordx2 {v(XRES+2,2)}, {v(T)}, {s(SRD_X,4)}, {s(S_T0)} offen", "xres")
        A(f"v_lshlrev_b32 {v(T)}, 10, {v(V_J)}")
        A(f"v_lshl_add_u32 {v(T)}, {v(V_H)}, 3, {v(T)}")
        A(f"v_add_u32 {v(V_RO)}, {s(S_T3)}, {v(T)}")
        A(f"s_mov_b32 {s(S_4096)}, 4096")
        for k in (1, 2, 3):
            A(f"s_mov_b32 {s(S_D+k-1)}, {13312*k}")
        A(f"s_lshr_b32 {s(S_A)}, {s(S_J)}, 3")
        A(f"s_and_b32 {s(S_T0)}, s2, 7")
        A(f"s_and_b32 {s(S_R2)}, {s(S_T0)}, {3 if o['xrot'] else 0}")
        if o["w2rot_a"]:
            A(f"s_add_u32 {s(S_R2W)}, {s(S_T0)}, {s(S_A)}")
            A(f"s_and_b32 {s(S_R2W)}, {s(S_R2W)}, 3")
        else:
            A(f"s_mov_b32 {s(S_R2W)}, {s(S_R2)}")
        if o["xrot"]:
            if o.get("r4m", 1):
                A(f"s_add_u32 {s(S_R4)}, {s(S_T0)}, {s(S_M)}")
            else:
                A(f"s_mov_b32 {s(S_R4)}, {s(S_T0)}")
            A(f"s_cmp_ge_u32 {s(S_R4)}, 7")
            A(f"s_cselect_b32 {s(S_T1)}, 7, 0")
            A(f"s_sub_u32 {s(S_R4)}, {s(S_R4)}, {s(S_T1)}")
            A(f"s_cmp_ge_u32 {s(S_R4)}, 7")
            A(f"s_cselect_b32 {s(S_T1)}, 7, 0")
            A(f"s_sub_u32 {s(S_R4)}, {s(S_R4)}, {s(S_T1)}")
        else:
            A(f"s_mov_b32 {s(S_R4)}, 0")
        A(f"s_lshl_b32 {s(S_GW)}, s2, 2")
        A(f"s_add_u32 {s(S_GW)}, {s(S_GW)}, {s(S_W)}")
        A(f"s_lshl_b32 {s(S_T0)}, {s(S_B)}, 7")
        A(f"s_lshl_b32 {s(S_T1)}, {s(S_M)}, 4")
        A(f"s_add_u32 {s(S_T0)}, {s(S_T0)}, {s(S_T1)}")
        A(f"s_lshl_b32 {s(S_T1)}, {s(S_W)}, 2")
        A(f"s_add_u32 {s(S_FLO)}, {s(S_T0)}, {s(S_T1)}")
        A(f"s_lshl_b32 {s(S_T0)}, {s(S_PG)}, 7")
        A(f"s_add_u32 {s(S_HSP)}, {s(S_T0)}, {HS}")
        A(f"s_lshl_b32 {s(S_T0)}, {s(S_B0)}, 15")
        A(f"s_add_u32 {s(S_X1SRC)}, {s(S_T0)}, {s(S_L8)}")
        A(f"v_lshrrev_b32 {v(T)}, 3, {v(V_L)}")
        A(f"v_lshlrev_b32 {v(T)}, 10, {v(T)}")
        A(f"v_and_b32 {v(T+1)}, 7, {v(V_L)}")
        A(f"v_lshlrev_b32 {v(T+2)}, 1, {v(V_Q)}")
        A(f"v_xor_b32 {v(T+2)}, {v(T+1)}, {v(T+2)}")
        A(f"v_lshl_add_u32 {v(T+2)}, {v(T+2)}, 4, {v(T)}")
        A(f"s_lshl_b32 {s(S_T0)}, {s(S_M)}, 7")
        A(f"s_lshl_b32 {s(S_T1)}, {s(S_W)}, 17")
        A(f"s_add_u32 {s(S_T1)}, {s(S_T1)}, {s(S_T0)}")
        A(f"s_lshl_b32 {s(S_T2)}, {s(S_R2W)}, 15")
        A(f"s_add_u32 {s(S_T1)}, {s(S_T1)}, {s(S_T2)}")
        A(f"v_add_u32 {v(V_W2D)}, {s(S_T1)}, {v(T+2)}")
        A(f"v_and_b32 {v(T+2)}, 1, {v(V_Q)}")
        A(f"v_lshlrev_b32 {v(T+2)}, 2, {v(T+2)}")
        A(f"v_xor_b32 {v(T+2)}, {v(T+1)}, {v(T+2)}")
        A(f"v_lshl_add_u32 {v(T+2)}, {v(T+2)}, 4, {v(T)}")
        A(f"s_mul_i32 {s(S_T1)}, {s(S_W)}, {448*1024}")
        A(f"s_add_u32 {s(S_T1)}, {s(S_T1)}, {s(S_T0)}")
        A(f"s_lshl_b32 {s(S_T0)}, {s(S_R4)}, 16")
        A(f"s_add_u32 {s(S_T1)}, {s(S_T1)}, {s(S_T0)}")
        A(f"v_add_u32 {v(V_WD)}, {s(S_T1)}, {v(T+2)}")
        A(f"v_lshlrev_b32 {v(T+1)}, 2, {v(V_Q)}")
        A(f"v_xor_b32 {v(T+1)}, {v(T+1)}, {v(V_I)}")
        A(f"v_lshlrev_b32 {v(T+1)}, 4, {v(T+1)}")
        A(f"v_mul_u32_u24 {v(T)}, 3584, {v(V_Q)}")
        A(f"v_add_u32 {v(T)}, {v(T)}, {v(T+1)}")
        A(f"s_lshl_b32 {s(S_T0)}, {s(S_SL)}, 8")
        A(f"s_mul_i32 {s(S_T1)}, {s(S_W)}, {32*3584}")
        A(f"s_add_u32 {s(S_T0)}, {s(S_T0)}, {s(S_T1)}")
        A(f"s_mul_i32 {s(S_T1)}, {s(S_R2)}, {128*3584}")
        A(f"s_add_u32 {s(S_T0)}, {s(S_T0)}, {s(S_T1)}")
        A(f"s_cmp_eq_u32 {s(S_IDLE)}, 1")
        A(f"s_cselect_b32 {s(S_T0)}, {OOB}, {s(S_T0)}")
        A(f"v_add_u32 {v(V_W3D)}, {s(S_T0)}, {v(T)}")
        A(f"s_mul_i32 {s(S_T0)}, {s(S_B0)}, {GBATCH}")
        A(f"s_lshl_b32 {s(S_T2)}, {s(S_SL)}, 13")
        A(f"s_add_u32 {s(S_T0)}, {s(S_T0)}, {s(S_T2)}")
        A(f"s_lshl_b32 {s(S_T2)}, {s(S_W)}, 11")
        A(f"s_add_u32 {s(S_T0)}, {s(S_T0)}, {s(S_T2)}")
        A(f"s_add_u32 {s(S_T0)}, {s(S_T0)}, {GB}")
        A(f"v_add_u32 {v(V_GS)}, {s(S_T0)}, {v(V_L16)}")
        A(f"s_lshr_b32 {s(S_T0)}, {s(S_W)}, 1")
        A(f"s_add_u32 {s(S_T0)}, {s(S_T0)}, 1")
        A(f"s_sub_u32 {s(S_T2)}, 0, {s(S_T0)}")
        A(f"s_bitcmp1_b32 {s(S_W)}, 0")
        A(f"s_cselect_b32 {s(S_T0)}, {s(S_T2)}, {s(S_T0)}")
        A(f"v_subrev_u32 {v(TF)}, {s(S_T0)}, {v(V_J)}")
        A(f"v_cmp_gt_u32 vcc, 32, {v(TF)}")
        A(f"v_lshlrev_b32 {v(TF)}, 4, {v(TF)}")
        A(f"v_lshl_add_u32 {v(TF)}, {v(V_H)}, 9, {v(TF)}")
        A(f"v_mov_b32 {v(TG)}, {OOB:#x}")
        A(f"v_cndmask_b32 {v(V_HSH)}, {v(TG)}, {v(TF)}, vcc")
        RHO, PR, LO = T, T + 1, T + 2
        A(f"v_lshrrev_b32 {v(RHO)}, 2, {v(V_I)}")
        A(f"v_bfe_u32 {v(PR)}, {v(V_L)}, 1, 1")
        A(f"v_and_b32 {v(LO)}, 1, {v(V_L)}")
        A(f"v_and_b32 {v(T+3)}, 1, {v(V_Q)}")
        A(f"v_lshl_add_u32 {v(T+3)}, {v(T+3)}, 1, {v(PR)}")
        A(f"s_lshl_b32 {s(S_T0)}, {s(S_W)}, 2")
        A(f"v_add_u32 {v(TE)}, {s(S_T0)}, {v(T+3)}")
        A(f"v_lshlrev_b32 {v(TF)}, 2, {v(RHO)}")
        A(f"v_xor_b32 {v(TE)}, {v(TE)}, {v(TF)}")
        A(f"v_lshlrev_b32 {v(TE)}, 4, {v(TE)}")
        A(f"v_lshl_add_u32 {v(TE)}, {v(LO)}, 3, {v(TE)}")
        A(f"v_lshl_add_u32 {v(TF)}, {v(V_H)}, 2, {v(RHO)}")
        A(f"v_lshl_add_u32 {v(V_TR3)}, {v(TF)}, 8, {v(TE)}")
        A(f"v_lshrrev_b32 {v(TE)}, 1, {v(RHO)}")
        A(f"v_lshl_add_u32 {v(TE)}, {v(TE)}, 2, {v(T+3)}")
        A(f"v_lshlrev_b32 {v(TE)}, 4, {v(TE)}")
        A(f"v_lshl_add_u32 {v(TE)}, {v(LO)}, 3, {v(TE)}")
        A(f"s_lshl_b32 {s(S_T0)}, {s(S_W)}, 5")
        A(f"v_xor_b32 {v(TE)}, {s(S_T0)}, {v(TE)}")
        A(f"v_lshl_add_u32 {v(TE)}, {v(TF)}, 7, {v(TE)}")
        A(f"s_add_u32 {s(S_T0)}, {s(S_L16)}, {R3}")
        A(f"v_add_u32 {v(V_A0)}, {s(S_T0)}, {v(TE)}")
        A(f"v_xor_b32 {v(V_A1)}, 64, {v(V_A0)}")
        S1A, S2A = SCOL, SCOL + 1
        A(f"v_and_b32 {v(TE)}, 1, {v(V_Q)}")
        A(f"v_lshlrev_b32 {v(TE)}, 1, {v(TE)}")
        A(f"v_lshrrev_b32 {v(TF)}, 1, {v(RHO)}")
        A(f"v_add_u32 {v(TE)}, {v(TE)}, {v(TF)}")
        A(f"v_lshlrev_b32 {v(TE)}, 1, {v(TE)}")
        A(f"s_lshl_b32 {s(S_T0)}, {s(S_W)}, 1")
        A(f"v_add_u32 {v(TG)}, {s(S_T0)}, {v(PR)}")
        A(f"v_xor_b32 {v(TE)}, {v(TE)}, {v(TG)}")
        A(f"v_lshlrev_b32 {v(TE)}, 4, {v(TE)}")
        A(f"v_lshl_add_u32 {v(TE)}, {v(LO)}, 3, {v(TE)}")
        A(f"v_lshl_add_u32 {v(TH)}, {v(V_Q)}, 3, {v(RHO)}")
        A(f"v_lshl_add_u32 {v(S1A)}, {v(TH)}, 7, {v(TE)}")
        A(f"v_add_u32 {v(S1A)}, {R1}, {v(S1A)}")
        A(f"v_lshrrev_b32 {v(TH)}, 1, {v(V_Q)}")
        A(f"v_lshlrev_b32 {v(TH)}, 4, {v(TH)}")
        A(f"v_and_b32 {v(TF)}, 1, {v(V_Q)}")
        A(f"v_lshl_add_u32 {v(TH)}, {v(TF)}, 2, {v(TH)}")
        A(f"v_add_u32 {v(TH)}, {v(TH)}, {v(RHO)}")
        A(f"v_lshl_add_u32 {v(S2A)}, {v(TH)}, 7, {v(TE)}")
        A(f"v_add_u32 {v(S2A)}, {R3}, {v(S2A)}")
        XB0, XB1, XS0, XS1 = SCOL + 2, SCOL + 3, SCOL + 4, SCOL + 5
        A(f"v_bfe_u32 {v(TE)}, {v(V_L)}, 1, 3")
        A(f"v_xor_b32 {v(TE)}, {v(TE)}, {v(V_Q)}")
        A(f"v_lshlrev_b32 {v(TE)}, 4, {v(TE)}")
        A(f"v_and_b32 {v(TF)}, 7, {v(V_L)}")
        A(f"v_lshl_add_u32 {v(TE)}, {v(TF)}, 7, {v(TE)}")
        A(f"v_bfe_u32 {v(TF)}, {v(V_L)}, 3, 1")
        A(f"v_lshl_add_u32 {v(XB0)}, {v(TF)}, 13, {v(TE)}")
        A(f"v_xor_b32 {v(XB1)}, 64, {v(XB0)}")
        A(f"s_lshl_b32 {s(S_T0)}, {s(S_W)}, 11")
        A(f"v_add_u32 {v(XS0)}, {s(S_T0)}, {v(XB0)}")
        A(f"v_add_u32 {v(XS1)}, {s(S_T0)}, {v(XB1)}")
        if o["rot"]:
            A(f"s_lshl_b32 {s(S_T0)}, {s(S_A)}, 11")
            A(f"v_xor_b32 {v(XB0)}, {s(S_T0)}, {v(XB0)}")
            A(f"v_xor_b32 {v(XB1)}, {s(S_T0)}, {v(XB1)}")
        HBK = SCOL + 12
        A(f"v_lshrrev_b32 {v(TE)}, 1, {v(V_Q)}")
        A(f"v_lshlrev_b32 {v(TE)}, 10, {v(TE)}")
        A(f"v_and_b32 {v(TF)}, 1, {v(V_Q)}")
        A(f"v_lshl_add_u32 {v(TE)}, {v(TF)}, 9, {v(TE)}")
        A(f"v_lshl_add_u32 {v(TE)}, {v(V_I)}, 4, {v(TE)}")
        for k in range(4):
            A(f"s_xor_b32 {s(S_T0)}, {s(S_R2W)}, {k}")
            A(f"s_lshl_b32 {s(S_T0)}, {s(S_T0)}, 11")
            A(f"v_add_u32 {v(HBK+k)}, {s(S_T0)}, {v(TE)}")
        c = (2.0 / 3.141592653589793) ** 0.5
        k1 = -2.0 * c * 1.4426950408889634
        k2 = k1 * 0.044715
        A(f"s_mov_b32 {s(S_K2)}, {f2u(k2):#x}")
        A(f"s_mov_b32 {s(S_K2+1)}, {f2u(k2):#x}")
        A(f"v_mov_b32 {v(V_K1)}, {f2u(k1):#x}")
        A(f"v_mov_b32 {v(V_ONES)}, 0x3f803f80")
        A(f"v_add_u32 {v(V_RED)}, {s(S_L8)}, {v(V_L16)}")
        ONES4 = SCOL + 8
        for r in range(4):
            A(f"v_mov_b32 {v(ONES4+r)}, 0x3f803f80")
        A(f"s_getreg_b32 {s(S_XCC)}, hwreg(HW_REG_XCC_ID)")
        A(f"s_and_b32 {s(S_XCC)}, {s(S_XCC)}, 15")
        self.stamp("proend")

        A.c("S1: row statistics")
        if o.get("early_w1", 1):
            A.wait_vm("x3")
            w1stage(1)
            A.wait_vm("x")
            w1stage(2)
            self.barrier()
            self.stamp("xland")
        else:
            A.wait_vm("x")
            self.barrier()
            self.stamp("xland")
            w1stage(1)
            w1stage(2)
        if o.get("t_c3", 0) == 2:
            A(f"s_lshl_b32 {s(S_T0)}, {s(S_J)}, 2")
            A(f"s_add_u32 {s(S_T0)}, {s(S_T0)}, {s(S_W)}")
            A(f"s_lshl_b32 {s(S_T0)}, {s(S_T0)}, 12")
            A(f"s_add_u32 {s(S_T0)}, {s(S_T0)}, 384")
            A(f"v_cmp_gt_u32 vcc, 4, {v(V_L)}")
            A(f"v_lshl_add_u32 {v(TF)}, {v(V_L)}, 10, {s(S_T0)}")
            A(f"v_mov_b32 {v(TH)}, {OOB:#x}")
            A(f"v_cndmask_b32 {v(TF)}, {v(TH)}, {v(TF)}, vcc")
            self.touch(TF, SRD_W2)
        w2items = self.wdma_items(SRD_W2, [V_W2D], 16, S_L16, R3, S_C, 32768, "w2", xor=True)
        n_in = o["w2_s1"]
        assert n_in <= 16
        self.bgq = w2items[:n_in]
        fr = []
        for Tt in range(2):
            for ln in range(2):
                for e in range(2):
                    r = BF + 4 * len(fr)
                    A.lds(f"ds_read_b128 {v(r,4)}, {v(XS0+e)} offset:{Tt*16384+ln*1024}", f"xs{len(fr)}")
                    fr.append((Tt, r))
        for r in (SUM, SQ, P0, P1):
            A(f"v_mov_b32 {v(r)}, 0")
        XP = o.get("xpre", 1)

        def xpre(st):
            if st % 4 == 0 and st:
                p = st // 4
                A(f"v_xor_b32 {v(XB0)}, {(p ^ (p-1))*2048}, {v(XB0)}")
                A(f"v_xor_b32 {v(XB1)}, {(p ^ (p-1))*2048}, {v(XB1)}")
            xb = XB0 + (st & 1)
            A.lds(f"ds_read_b128 {v(WF+8*st,4)}, {v(xb)} offset:{((st>>1)&1)*1024}", "xp")
            A.lds(f"ds_read_b128 {v(WF+8*st+4,4)}, {v(xb)} offset:{((st>>1)&1)*1024+16384}", "xp")
        for i, (Tt, r) in enumerate(fr):
            A.wait_lg(f"xs{i}")
            sm, sq = (SUM, SQ) if Tt == 0 else (P0, P1)
            for d in range(4):
                A(f"v_dot2_f32_bf16 {v(sm)}, {v(r+d)}, {v(V_ONES)}, {v(sm)}")
                A(f"v_dot2_f32_bf16 {v(sq)}, {v(r+d)}, {v(r+d)}, {v(sq)}")
            if i == o.get("s3_at", 3):
                w1stage(3)
            if XP:
                xpre(2 * i)
                xpre(2 * i + 1)
        A(f"s_lshl_b32 {s(S_T0)}, {s(S_W)}, 8")
        A(f"s_add_u32 {s(S_T0)}, {s(S_T0)}, {PART}")
        A(f"v_lshl_add_u32 {v(BF)}, {v(V_I)}, 3, {s(S_T0)}")
        self.lane_sum([SUM, SQ, P0, P1], [TE, TF, TG, TH], True, True)
        A.lds(f"ds_write_b64 {v(BF)}, {v(SUM,2)}")
        A.lds(f"ds_write_b64 {v(BF)}, {v(P0,2)} offset:128")
        A(f"v_lshlrev_b32 {v(TE)}, 3, {v(V_I)}")
        A(f"v_add_u32 {v(TE)}, {PART}, {v(TE)}")
        self.stamp("xstat")
        if o["t_ex"] and not o.get("early_touch", 0):
            self.touch(VT, SRD_WS)
        if o["t_g"] == 5:
            A(f"v_sub_u32 {v(TF)}, {v(V_GS)}, {v(V_L16)}")
            A(f"v_mul_u32_u24 {v(TG)}, {GBATCH}, {v(V_Q)}")
            A(f"v_lshl_add_u32 {v(TG)}, {v(V_I)}, 7, {v(TG)}")
            A(f"v_add_u32 {v(TF)}, {v(TF)}, {v(TG)}")
            A(f"v_cmp_gt_u32 vcc, 32, {v(V_L)}")
            A(f"s_lshl_b32 {s(S_T0)}, {s(S_IDLE)}, 31")
            A(f"v_add_u32 {v(TF)}, {s(S_T0)}, {v(TF)}")
            A(f"v_mov_b32 {v(TG)}, {OOB:#x}")
            A(f"v_cndmask_b32 {v(TF)}, {v(TG)}, {v(TF)}, vcc")
            self.touch(TF, SRD_WS)
        if o.get("t_w3", 0):
            A(f"s_mul_i32 {s(S_T0)}, {s(S_GW)}, {14*128}")
            A(f"v_cmp_gt_u32 vcc, 14, {v(V_L)}")
            A(f"v_lshl_add_u32 {v(TF)}, {v(V_L)}, 7, {s(S_T0)}")
            A(f"v_mov_b32 {v(TG)}, {OOB:#x}")
            A(f"v_cndmask_b32 {v(TF)}, {v(TG)}, {v(TF)}, vcc")
            self.touch(TF, SRD_W3)

        A.c("S1: GEMM")
        AR, BR_ = 44, BF
        ACC0, ACC1, ACCS = ACC, ACC + 4, ACC + 8

        def s1_reads(st):
            if st % 4 == 0 and st and not XP:
                p = st // 4
                A(f"v_xor_b32 {v(XB0)}, {(p ^ (p-1))*2048}, {v(XB0)}")
                A(f"v_xor_b32 {v(XB1)}, {(p ^ (p-1))*2048}, {v(XB1)}")
            ar = AR + 4 * (st % 3)
            br = BR_ + 8 * (st % 3)
            A.lds(f"ds_read_b64_tr_b16 {v(ar,2)}, {v(S1A)} offset:{st*4096}", f"k{st}")
            A.lds(f"ds_read_b64_tr_b16 {v(ar+2,2)}, {v(S1A)} offset:{st*4096+512}", f"k{st}")
            if XP:
                return
            xb = XB0 + (st & 1)
            A.lds(f"ds_read_b128 {v(br,4)}, {v(xb)} offset:{((st>>1)&1)*1024}", f"k{st}")
            A.lds(f"ds_read_b128 {v(br+4,4)}, {v(xb)} offset:{((st>>1)&1)*1024+16384}", f"k{st}")

        def s1_mfma(st):
            ar = AR + 4 * (st % 3)
            br = (WF + 8 * st) if XP else (BR_ + 8 * (st % 3))
            c = lambda r: "0" if st == 0 else v(r, 4)
            A(f"v_mfma_f32_16x16x32_bf16 {v(ACC0,4)}, {v(ar,4)}, {v(br,4)}, {c(ACC0)}")
            A(f"v_mfma_f32_16x16x32_bf16 {v(ACC1,4)}, {v(ar,4)}, {v(br+4,4)}, {c(ACC1)}")
            A(f"v_mfma_f32_16x16x32_bf16 {v(ACCS,4)}, {v(ar,4)}, {v(ONES4,4)}, {c(ACCS)}")
        nst = o.get("s1_stages", 2)
        per = 16 // nst
        A.wait_vm("epoch")
        A(f"v_readfirstlane_b32 {s(S_TAG)}, {v(V_TAG)}")
        A("s_nop 3")
        A(f"s_add_u32 {s(S_TAG)}, {s(S_TAG)}, 1")
        A(f"s_mov_b32 {s(S_TAG+1)}, {s(S_TAG)}")
        A(f"v_mov_b32 {v(V_TAG)}, {s(S_TAG)}")
        if self.force is None:
            A(f"s_lshl_b32 {s(S_T1)}, {s(S_U)}, 3")
            A(f"s_add_u32 {s(S_T0)}, {s(S_HSP)}, {s(S_T1)}")
            self.wave0_addr(TF, S_T0)
            A(f"v_mov_b32 {v(TG)}, {s(S_TAG)}")
            A(f"v_mov_b32 {v(TH)}, {s(S_XCC)}")
            A.vmem(f"buffer_store_dwordx2 {v(TG,2)}, {v(TF)}, {s(SRD_WS,4)}, 0 offen sc1", "hs")
        self.bg(o["w2_pre"])
        for p in range(nst):
            A.wait_vm(f"w1_{(p+1)*(4//nst)-1}")
            A.wait_lg()
            self.barrier()
            self.stamp(f"st{p}")
            if p == 0:
                for src in range(4):
                    A.lds(f"ds_read_b64 {v(56+2*src,2)}, {v(TE)} offset:{src*256}", "pt")
                    A.lds(f"ds_read_b64 {v(104+2*src,2)}, {v(TE)} offset:{src*256+128}", "pt")
            s1_reads(per * p)
            s1_reads(per * p + 1)
            if p == 0:
                A.wait_lg("pt")
                if n_in == 16:
                    self.barrier()
                for src in range(1, 4):
                    A(f"v_pk_add_f32 {v(56,2)}, {v(56,2)}, {v(56+2*src,2)}")
                    A(f"v_pk_add_f32 {v(104,2)}, {v(104,2)}, {v(104+2*src,2)}")
                self.ln_scalars(56, 57, V_R0, V_Q0, TF)
                self.ln_scalars(104, 105, V_R1, V_Q1, TF)
            for st in range(per * p, per * p + per):
                A.wait_lg(f"k{st}")
                s1_mfma(st)
                if st + 2 < per * p + per:
                    s1_reads(st + 2)
                self.bg(1)
        self.bg_flush()
        if o["c_f1"]:
            self.barrier()
        self.stamp("s1loop")
        A(f"s_add_u32 {s(S_T0)}, {s(S_FLO)}, {FL1G if self.force is False else FL1}")
        A(f"v_mov_b32 {v(V_FS1)}, {s(S_T0)}")
        A(f"s_add_u32 {s(S_T0)}, {s(S_FLO)}, {FL2}")
        A(f"v_mov_b32 {v(V_FS2)}, {s(S_T0)}")
        A(f"s_lshl_b32 {s(S_T0)}, {s(S_PG)}, 8")
        A(f"s_lshl_b32 {s(S_T1)}, {s(S_SL)}, 4")
        A(f"s_add_u32 {s(S_T0)}, {s(S_T0)}, {s(S_T1)}")
        A(f"s_lshl_b32 {s(S_T1)}, {s(S_W)}, 2")
        A(f"s_add_u32 {s(S_T0)}, {s(S_T0)}, {s(S_T1)}")
        A(f"s_add_u32 {s(S_T0)}, {s(S_T0)}, {FL3}")
        A(f"v_mov_b32 {v(V_FS3)}, {s(S_T0)}")
        for Tt, (ac, vr) in enumerate(((ACC0, V_R0), (ACC1, V_R1))):
            for p in range(2):
                A(f"v_pk_mul_f32 {v(ac+2*p,2)}, {v(ac+2*p,2)}, {v(vr,2)} op_sel_hi:[1,0]")
        for Tt, (ac, vr) in enumerate(((ACC0, V_R0), (ACC1, V_R1))):
            for p in range(2):
                A(f"v_pk_fma_f32 {v(ac+2*p,2)}, {v(ACCS+2*p,2)}, {v(vr,2)}, {v(ac+2*p,2)} op_sel:[0,1,0] op_sel_hi:[1,1,1]")
        HP = 60
        for t in self.gelu_a(ACC, 4, BF) + self.gelu_b(ACC, 4, HP, BF, True):
            A(t)
        g1 = " sc1" if self.force is False else ""
        A.vmem(f"buffer_store_dwordx2 {v(HP,2)}, {v(V_FO)}, {s(SRD_WS,4)}, 0 offen{g1}", "hst")
        A.vmem(f"buffer_store_dwordx2 {v(HP+2,2)}, {v(V_FO)}, {s(SRD_WS,4)}, 0 offen offset:256{g1}", "hst")
        self.stamp("s1epi")
        A(f"s_lshl_b32 {s(S_T0)}, {s(S_B)}, 7")
        A(f"s_lshl_b32 {s(S_T2)}, {s(S_W)}, 5")
        A(f"s_add_u32 {s(S_T0)}, {s(S_T0)}, {s(S_T2)}")
        A(f"s_add_u32 {s(S_T0)}, {s(S_T0)}, {FL1G if self.force is False else FL1}")
        A(f"v_and_b32 {v(TE)}, 7, {v(V_L)}")
        A(f"v_lshl_add_u32 {v(TE)}, {v(TE)}, 2, {s(S_T0)}")
        A.wait_vm("hst")
        A.vmem(f"buffer_store_dword {v(V_TAG)}, {v(V_FS1)}, {s(SRD_WS,4)}, 0 offen{g1}")
        self.stamp("flag1")
        for it in w2items[n_in:]:
            it()

        A.c("park w2")
        w3all = self.w3_items()
        self.bgq = list(w3all)
        self.bg(o["c_f1"])
        A(f"s_lshr_b32 {s(S_T0)}, {s(S_FRAG)}, 2")
        A(f"s_add_u32 {s(S_T0)}, {s(S_T0)}, {STB}")
        A(f"v_lshl_add_u32 {v(V_ST)}, {v(V_I)}, 3, {s(S_T0)}")
        A.wait_vm("w2")
        self.barrier()
        self.stamp("b2")
        w2f = lambda st, f: (lambda o_, n: v(WF + 64 + 4 * st + o_, n))
        trs = self.tr_items(w2f, [S2A], 16, 4096, 1024, 1, "w2f")

        def park_w2():
            self.bg(o["c_e"])
            for it in trs:
                it()
            A.wait_lg()
            if o["c_f1"] + o["c_e"] + o["c_h"] > 16:
                self.barrier()

        A.c("S2")
        if self.force is None:
            self.poll1(HP, park_w2)
        else:
            self.poll(TE, TG, park_w2)
        self.stamp("poll1")
        self.lin_dma(V_HSH, 8, S_L8, R0, S_HSRC, HB, "h")
        if o["t_g"] == 2 and not o["g_sc1"]:
            A(f"v_sub_u32 {v(TF)}, {v(V_GS)}, {v(V_L16)}")
            A(f"v_mul_u32_u24 {v(TG)}, {GBATCH}, {v(V_Q)}")
            A(f"v_lshl_add_u32 {v(TG)}, {v(V_I)}, 7, {v(TG)}")
            A(f"v_add_u32 {v(TF)}, {v(TF)}, {v(TG)}")
            A(f"v_cmp_gt_u32 vcc, 32, {v(V_L)}")
            A(f"s_lshl_b32 {s(S_T0)}, {s(S_IDLE)}, 31")
            A(f"v_add_u32 {v(TF)}, {s(S_T0)}, {v(TF)}")
            A(f"v_mov_b32 {v(TG)}, {OOB:#x}")
            A(f"v_cndmask_b32 {v(TF)}, {v(TG)}, {v(TF)}, vcc")
            self.touch(TF, SRD_WS)
        self.bg(o["c_h"])
        for p in range(4):
            A(f"v_lshlrev_b32 {v(56+2*p)}, 16, {v(XRES+p)}")
            A(f"v_and_b32 {v(56+2*p+1)}, 0xffff0000, {v(XRES+p)}")
        for r in (SUM, SQ, P0, P1):
            A(f"v_mov_b32 {v(r)}, 0")
        A(f"v_add_u32 {v(TE)}, {X1B}, {v(V_FO)}")
        A.wait_vm("h")
        self.barrier()
        self.stamp("hland")

        def s2_read(i):
            st, Tt = i >> 1, i & 1
            A.lds(f"ds_read_b128 {v(BF+4*(i%8),4)}, {v(HBK+(st&3))} offset:{R0+(st>>2)*8192+Tt*256}", f"hb{i}")
        for i in range(4):
            s2_read(i)
        nb = o["c_s2"]
        done = 0
        for i in range(32):
            st, Tt = i >> 1, i & 1
            if i % 2 == 0:
                A.wait_lg(f"hb{i+1}")
            ac = ACC0 if Tt == 0 else ACC1
            c0 = "0" if st == 0 else v(ac, 4)
            A(f"v_mfma_f32_16x16x32_bf16 {v(ac,4)}, {v(WF+64+4*st,4)}, {v(BF+4*(i%8),4)}, {c0}")
            if i + 4 < 32:
                s2_read(i + 4)
            want = (i + 1) * nb // 32
            self.bg(want - done)
            done = want
        self.stamp("s2mfma")
        A.nop(8)
        for p in range(4):
            A(f"v_pk_add_f32 {v(ACC+2*p,2)}, {v(ACC+2*p,2)}, {v(56+2*p,2)}")
        for p in range(4):
            A(f"v_cvt_pk_bf16_f32 {v(X1P+p)}, {v(ACC+2*p)}, {v(ACC+2*p+1)}")
        self.publish([f"buffer_store_dwordx2 {v(X1P,2)}, {v(TE)}, {s(SRD_WS,4)}, 0 offen{{F}}",
                      f"buffer_store_dwordx2 {v(X1P+2,2)}, {v(TE)}, {s(SRD_WS,4)}, 0 offen offset:256{{F}}"], tag="x1st")
        for d in range(2):
            A(f"v_dot2_f32_bf16 {v(SUM)}, {v(X1P+d)}, {v(V_ONES)}, {v(SUM)}")
            A(f"v_dot2_f32_bf16 {v(SQ)}, {v(X1P+d)}, {v(X1P+d)}, {v(SQ)}")
            A(f"v_dot2_f32_bf16 {v(P0)}, {v(X1P+2+d)}, {v(V_ONES)}, {v(P0)}")
            A(f"v_dot2_f32_bf16 {v(P1)}, {v(X1P+2+d)}, {v(X1P+2+d)}, {v(P1)}")
        A.nop(3)
        self.lane_sum([SUM, SQ, P0, P1], [56, 57, 58, 59], True, True)
        self.publish([f"buffer_store_dwordx2 {v(SUM,2)}, {v(V_ST)}, {s(SRD_WS,4)}, 0 offen{{F}}",
                      f"buffer_store_dwordx2 {v(P0,2)}, {v(V_ST)}, {s(SRD_WS,4)}, 0 offen offset:128{{F}}"], tag="x1st")
        self.stamp("s2epi")
        A.wait_vm("x1st")
        self.publish([f"buffer_store_dword {v(V_TAG)}, {v(V_FS2)}, {s(SRD_WS,4)}, 0 offen{{F}}"])
        self.barrier()
        assert o["c_f1"] + o["c_e"] + o["c_h"] + o["c_s2"] >= 8
        self.stamp("flag2")

        A.c("w3 rest")
        A(f"s_cmp_eq_u32 {s(S_IDLE)}, 1")
        A("s_cbranch_scc1 L_idle")
        self.idle_vm = list(A.vm)

        def park_chunk(c):
            A(f"v_add_u32 {v(TF)}, {R1 + c*32768}, {v(V_TR3)}")
            w3f = lambda st, f, c=c: (lambda o_, n: v(WF + 4 * (8 * c + st) + o_, n))
            its = self.tr_items(w3f, [TF], 8, 4096, 2048, 1, f"w3f{c}")
            for it in its:
                it()

        def colsum(c, nbg=0):
            k = 0
            for st in range(8 * c, 8 * c + 8):
                for d in range(4):
                    r = (SUM, SQ, P0, P1)[d]
                    A(f"v_dot2_f32_bf16 {v(r)}, {v(WF+4*st+d)}, {v(V_ONES)}, {v(r)}")
                if k < nbg:
                    self.bg(1)
                    k += 1
        NH = 7
        slot_of = "ABACBAC"

        def w4dma(hh):
            lds_s, lds_c = {"A": (S_L8, R2), "B": (S_L16, R3), "C": (S_L16, R3 + 8192)}[slot_of[hh]]

            def last():
                A(f"s_mov_b32 {s(S_OFF)}, 32768")
                A(f"s_cmp_eq_u32 {s(S_R4)}, {6-hh}")
                A(f"s_cselect_b32 {s(S_OFF)}, {(32768 - 7*65536) & 0xffffffff}, {s(S_OFF)}")
                A(f"v_add_u32 {v(V_WD)}, {s(S_OFF)}, {v(V_WD)}")
            return self.wdma_items(SRD_W4, [V_WD], 8, lds_s, lds_c, S_C, 32768, f"w4d{hh}", last=last)

        def w4park(hh):
            bases, off0 = {"A": ([V_A2, V_A3], 0), "B": ([V_A0, V_A1], 0), "C": ([V_A0, V_A1], 8192)}[slot_of[hh]]
            w4f = lambda st, f, hh=hh: (lambda o_, n: a(8 * (4 * hh + st) + 4 * f + o_, n))
            its = self.tr_items(w4f, bases, 4, 2048, 1024, 2, f"w4f{hh}", off0=off0)
            first = its[0]
            its[0] = lambda: (A.wait_vm(f"w4d{hh}"), first())
            return its

        def after_park(hh, items):
            first = items[0]
            items[0] = lambda: (A.wait_lg(f"w4f{hh}"), first())
            return items

        A(f"s_lshl_b32 {s(S_T0)}, {s(S_B0)}, 7")
        A(f"s_add_u32 {s(S_T0)}, {s(S_T0)}, {FL2}")
        A(f"v_lshl_add_u32 {v(TE)}, {v(V_L)}, 2, {s(S_T0)}")
        assert o["c_f1"] + o["c_e"] + o["c_h"] + o["c_s2"] >= 16
        self.bg(o["c_p2"])
        park_chunk(0)
        park_chunk(1)
        AX = SCOL
        VB = SCOL + 4
        V_SA = SCOL + 8
        V_LW = SCOL + 9
        for c in range(4):
            A(f"s_add_u32 {s(S_T0)}, {s(S_R2)}, {c}")
            A(f"s_and_b32 {s(S_T0)}, {s(S_T0)}, 3")
            A(f"s_lshl_b32 {s(S_T0)}, {s(S_T0)}, 13")
            A(f"v_add_u32 {v(VB+c)}, {s(S_T0)}, {v(V_L16)}")
        A(f"s_add_u32 {s(S_T0)}, {s(S_L16)}, {R3 - R2}")
        A(f"s_sub_u32 {s(S_T0)}, {s(S_L8)}, {s(S_T0)}")
        A(f"v_add_u32 {v(V_A2)}, {s(S_T0)}, {v(V_A0)}")
        A(f"v_xor_b32 {v(V_A3)}, 64, {v(V_A2)}")
        BX0, BX1 = XRES, X1P
        for r in range(1, 4):
            A(f"v_mov_b32 {v(BX0+r)}, 0")
            A(f"v_mov_b32 {v(BX1+r)}, 0")
            A(f"v_mov_b32 {v(AX+r)}, 0")
        A(f"s_lshr_b32 {s(S_T2)}, {s(S_W)}, 1")
        A(f"s_add_u32 {s(S_T3)}, {s(S_T2)}, {s(S_B0)}")
        A(f"s_lshl_b32 {s(S_T3)}, {s(S_T3)}, 13")
        A(f"s_add_u32 {s(S_T3)}, {s(S_T3)}, {STB}")
        A(f"s_lshl_b32 {s(S_T2)}, {s(S_T2)}, 8")
        A(f"s_add_u32 {s(S_T2)}, {s(S_T2)}, {LNST}")
        A(f"s_bitcmp1_b32 {s(S_W)}, 0")
        A(f"s_cselect_b32 {s(S_T3)}, {OOB}, {s(S_T3)}")
        A(f"s_cselect_b32 {s(S_T2)}, {LNDUMMY}, {s(S_T2)}")
        A(f"v_add_u32 {v(V_SA)}, {s(S_T3)}, {v(V_L16)}")
        A(f"v_lshl_add_u32 {v(V_LW)}, {v(V_I)}, 4, {s(S_T2)}")
        for r in (SUM, SQ, P0, P1):
            A(f"v_mov_b32 {v(r)}, 0")
        A.wait_lg()

        def pre2():
            colsum(0, o.get("c_cs", 6))
            colsum(1, o.get("c_cs", 6))
            self.bg_flush()
            self.barrier()
            self.stamp("prepoll2")

        A.c("S3")
        self.poll(TE, TG, pre2)
        self.stamp("poll2")
        self.lin_dma(V_L16, 8, S_L8, R0, S_X1SRC, X1B, "x1t0")
        for i in range(8):
            so = "0" if i < 4 else s(S_4096)
            off = f" offset:{(i%4)*1024}" if i % 4 else ""
            A.vmem(f"buffer_load_dwordx4 {v(BF+4*i,4)}, {v(V_SA)}, {s(SRD_WS,4)}, {so} offen{off} sc1", "st")
        A.wait_vm("c3")
        self.barrier()
        self.stamp("b4")
        park_chunk(2)
        self.lin_dma(V_L16, 8, S_L8, R1, S_X1SRC, X1B + 32768, "x1t1")
        A.wait_lg()
        park_chunk(3)
        d0 = w4dma(0)
        self.bgq = list(d0)
        colsum(2, o.get("d_cs2", 4))
        A.wait_lg()
        self.barrier()
        colsum(3, o.get("d_cs3", 4))
        self.bg_flush()
        self.stamp("colsum")
        A(f"s_lshl_b32 {s(S_T0)}, {s(S_PG)}, 7")
        A(f"s_add_u32 {s(S_T0)}, {s(S_T0)}, {EPO}")
        A(f"v_add_f32 {v(SUM)}, {v(SUM)}, {v(SQ)}")
        A(f"v_add_f32 {v(P0)}, {v(P0)}, {v(P1)}")
        A(f"s_or_b32 {s(S_T2)}, {s(S_U)}, {s(S_W)}")
        A(f"s_cmp_eq_u32 {s(S_T2)}, 0")
        A(f"v_add_f32 {v(SUM)}, {v(SUM)}, {v(P0)}")
        A(f"s_cselect_b32 {s(S_T0)}, {s(S_T0)}, {OOB}")
        A(f"v_mov_b32 {v(TG)}, {s(S_T0)}")
        self.lane_sum([SUM], [SQ], True, False)
        self.round_to(SUM, SQ, P0)
        A(f"v_sub_f32 {v(P0)}, {v(SUM)}, {v(P0)}")
        A(f"v_cvt_pk_bf16_f32 {v(AX)}, {v(SUM)}, {v(P0)}")
        A(f"v_cmp_gt_u32 vcc, 32, {v(V_L)}")
        A.wait_vm("st")
        for i in range(1, 8):
            A(f"v_pk_add_f32 {v(BF,2)}, {v(BF,2)}, {v(BF+4*i,2)}")
            A(f"v_pk_add_f32 {v(BF+2,2)}, {v(BF+2,2)}, {v(BF+4*i+2,2)}")
        A(f"v_cndmask_b32 {v(AX)}, {v(AX+1)}, {v(AX)}, vcc")
        self.lane_sum([BF, BF + 1, BF + 2, BF + 3], [BF + 4, BF + 5, BF + 6, BF + 7], True, True)
        self.ln_scalars(BF, BF + 1, BF + 8, BF + 9, BF + 12, mpair=True)
        self.ln_scalars(BF + 2, BF + 3, BF + 10, BF + 11, BF + 12, mpair=True)
        A.lds(f"ds_write_b128 {v(V_LW)}, {v(BF+8,4)}")
        A.vmem(f"buffer_store_dword {v(V_TAG)}, {v(TG)}, {s(SRD_WS,4)}, 0 offen sc1")
        A(f"v_lshlrev_b32 {v(TE)}, 3, {v(V_J)}")
        A(f"v_add_u32 {v(TE)}, {LNST}, {v(TE)}")
        q = w4dma(1)
        q += w4park(0) + after_park(0, w4dma(2))
        n_t0 = len(q)
        if o["qord"] == 0:
            q += w4park(1) + w4dma(3) + after_park(1, w4dma(4)) + w4park(2) + after_park(2, w4dma(5))
            q += w4park(3) + after_park(3, w4dma(6)) + w4park(4) + w4park(5) + w4park(6)
        else:
            q += w4dma(3) + w4park(1) + after_park(1, w4dma(4)) + w4park(2) + after_park(2, w4dma(5))
            q += w4park(3) + after_park(3, w4dma(6)) + w4park(4) + w4park(5) + w4park(6)
        self.bgq = q
        n_pre = o.get("bg_pre", 4)
        self.bg(n_pre)
        assert n_pre + o["bg_t0"] <= n_t0
        def g_touch():
            A(f"v_sub_u32 {v(TF)}, {v(V_GS)}, {v(V_L16)}")
            A(f"v_mul_u32_u24 {v(TG)}, {GBATCH}, {v(V_Q)}")
            A(f"v_lshl_add_u32 {v(TG)}, {v(V_I)}, 7, {v(TG)}")
            A(f"v_add_u32 {v(TF)}, {v(TF)}, {v(TG)}")
            A(f"v_cmp_gt_u32 vcc, 32, {v(V_L)}")
            A(f"v_mov_b32 {v(TG)}, {OOB:#x}")
            A("s_nop 0")
            A(f"v_cndmask_b32 {v(TF)}, {v(TG)}, {v(TF)}, vcc")
            self.touch(TF, SRD_WS)
        if o["t_g"] == 3:
            g_touch()
        A.wait_vm("x1t0")
        A.wait_lg()
        self.barrier()
        self.stamp("b5")
        A.lds(f"ds_read_b32 {v(V_R0)}, {v(TE)}", "ln")
        A.lds(f"ds_read_b32 {v(BX0)}, {v(TE)} offset:4", "ln")
        A.lds(f"ds_read_b32 {v(V_R1)}, {v(TE)} offset:256", "ln")
        A.lds(f"ds_read_b32 {v(BX1)}, {v(TE)} offset:260", "ln")
        NB = 4
        BR = 224

        def tile_loop(t, base_off, bx, extra_ops, nbg):
            acc = ACC + 16 * t
            for st in range(NB):
                A.lds(f"ds_read_b128 {a(BR+4*(st%8),4)}, {v(VB+st//8)} offset:{base_off+(st%8)*1024}", f"b{st}")
            A.wait_lg("ln")
            A(f"v_mfma_f32_32x32x16_bf16 {v(acc,16)}, {v(AX,4)}, {v(bx,4)}, 0")
            done_bg = 0
            for st in range(32):
                if st % 2 == 0:
                    A.wait_lg(f"b{st+1}")
                A(f"v_mfma_f32_32x32x16_bf16 {v(acc,16)}, {v(WF+4*st,4)}, {a(BR+4*(st%8),4)}, {v(acc,16)}")
                if st + NB < 32:
                    n = st + NB
                    A.lds(f"ds_read_b128 {a(BR+4*(n%8),4)}, {v(VB+n//8)} offset:{base_off+(n%8)*1024}", f"b{n}")
                if extra_ops:
                    k = -(-len(extra_ops) // (32 - st))
                    for _ in range(k):
                        if extra_ops:
                            op = extra_ops.pop(0)
                            op() if callable(op) else A(op)
                want = (st + 1) * nbg // 32
                self.bg(want - done_bg)
                done_bg = want
        tile_loop(0, R0, BX0, [], o["bg_t0"])
        self.stamp("t0")
        if o["t_g"] == 4:
            g_touch()
        A.wait_vm("x1t1")
        self.barrier()
        E0, GT = BF + 16, BF
        A.nop(10)
        for p in range(8):
            A(f"v_pk_mul_f32 {v(ACC+2*p,2)}, {v(ACC+2*p,2)}, {v(V_R0,2)} op_sel_hi:[1,0]")
        ga = self.gelu_a(ACC, 8, GT)
        for i, t in enumerate(ga):
            A(t)
            if i in (7, 15)[:o["bg_a"]]:
                self.bg(1)
        ops0 = self.gelu_b(ACC, 8, E0, GT, False)
        g0 = lambda: self.publish([
            f"buffer_store_dwordx4 {v(E0,4)}, {v(V_GS)}, {s(SRD_WS,4)}, 0 offen{{F}}",
            f"buffer_store_dwordx4 {v(E0+4,4)}, {v(V_GS)}, {s(SRD_WS,4)}, 0 offen offset:1024{{F}}"], sc1=o["g_sc1"], tag="gst")
        if not o.get("g0_late", 0):
            ops0.append(g0)
        tile_loop(1, R1, BX1, ops0, o["bg_t1"])
        self.stamp("t1")
        A(f"s_mov_b32 {s(S_T0)}, {GBATCH}")
        A.nop(11)
        E1 = BF + 24
        for p in range(8):
            A(f"v_pk_mul_f32 {v(ACC+16+2*p,2)}, {v(ACC+16+2*p,2)}, {v(V_R1,2)} op_sel_hi:[1,0]")
        e1 = self.gelu_a(ACC + 16, 8, GT) + self.gelu_b(ACC + 16, 8, E1, GT, True)
        nb = o["bg_e1"]
        for i, t in enumerate(e1):
            A(t)
            if nb and i % o.get("e1_step", 8) == o.get("e1_step", 8) - 1 and i < o.get("e1_step", 8) * nb:
                self.bg(1)
        if o.get("g0_late", 0):
            g0()
        self.publish([
            f"buffer_store_dwordx4 {v(E1,4)}, {v(V_GS)}, {s(SRD_WS,4)}, {s(S_T0)} offen{{F}}",
            f"buffer_store_dwordx4 {v(E1+4,4)}, {v(V_GS)}, {s(SRD_WS,4)}, {s(S_T0)} offen offset:1024{{F}}"], sc1=o["g_sc1"], tag="gst")
        self.stamp("epi1")
        A(f"s_add_u32 {s(S_T0)}, {s(S_FRAG)}, {X1B}")
        A(f"v_add_u32 {v(TE)}, {s(S_T0)}, {v(V_L16)}")
        A.vmem(f"buffer_load_dwordx4 {v(X1P,4)}, {v(TE)}, {s(SRD_WS,4)}, 0 offen sc1", "res")
        A.wait_vm("gst")
        self.publish([f"buffer_store_dword {v(V_TAG)}, {v(V_FS3)}, {s(SRD_WS,4)}, 0 offen{{F}}"], sc1=o["g_sc1"])
        self.stamp("flag3")

        A.c("w4 rest")
        self.bg_flush()
        A("L_join:")
        A(f"s_mul_i32 {s(S_T0)}, {s(S_B)}, {GBATCH}")
        A(f"s_mul_i32 {s(S_T2)}, {s(S_W)}, {28*1024}")
        A(f"s_add_u32 {s(S_T0)}, {s(S_T0)}, {s(S_T2)}")
        A(f"s_add_u32 {s(S_T0)}, {s(S_T0)}, {GB}")
        A(f"v_add_u32 {v(TF)}, {s(S_T0)}, {v(V_L16)}")
        A.wait_vm("res")
        for p in range(4):
            A(f"v_lshlrev_b32 {v(SCOL+2*p)}, 16, {v(X1P+p)}")
            A(f"v_and_b32 {v(SCOL+2*p+1)}, 0xffff0000, {v(X1P+p)}")
        A.wait_lg()
        self.stamp("w4done")

        if o.get("wb", 0) == 1:
            Lw = A.label("L_nowb")
            A(f"s_lshl_b32 {s(S_T0)}, {s(S_J)}, 2")
            A(f"s_add_u32 {s(S_T0)}, {s(S_T0)}, {s(S_W)}")
            A(f"s_cmp_lg_u32 {s(S_T0)}, 12")
            A(f"s_cbranch_scc1 {Lw}")
            A("buffer_wbl2 sc1")
            A(f"{Lw}:")
        A.c("S4")
        A(f"s_lshl_b32 {s(S_T0)}, {s(S_PG)}, 8")
        A(f"s_mul_i32 {s(S_T2)}, {s(S_W)}, 56")
        A(f"s_add_u32 {s(S_T0)}, {s(S_T0)}, {s(S_T2)}")
        A(f"s_add_u32 {s(S_T0)}, {s(S_T0)}, {FL3}")
        A(f"v_min_u32 {v(TE)}, 13, {v(V_L)}")
        A(f"v_lshl_add_u32 {v(TE)}, {v(TE)}, 2, {s(S_T0)}")
        self.poll(TE, TG)
        self.stamp("poll3")
        def gload(i):
            if i == 0:
                A(f"s_lshl_b32 {s(S_OFF)}, {s(S_R4)}, 12")
            elif i % 4 == 0:
                A(f"s_add_u32 {s(S_OFF)}, {s(S_OFF)}, 4096")
                A(f"s_cmp_eq_u32 {s(S_OFF)}, 28672")
                A(f"s_cselect_b32 {s(S_OFF)}, 0, {s(S_OFF)}")
            off = f" offset:{(i%4)*1024}" if i % 4 else ""
            A.vmem(f"buffer_load_dwordx4 {v(WF+4*i,4)}, {v(TF)}, {s(SRD_WS,4)}, {s(S_OFF)} offen{off} sc1", f"g{i}")
        NG = o.get("g_ahead", 10)
        for i in range(NG):
            gload(i)
        VR = V_T
        for k in (1, 2, 3):
            A(f"v_xor_b32 {v(VR+k-1)}, {k*8192}, {v(V_RED)}")
        for st in range(28):
            A.wait_vm(f"g{st}")
            c0 = "0" if st == 0 else v(ACC, 16)
            c1 = "0" if st == 0 else v(ACC + 16, 16)
            A(f"v_mfma_f32_32x32x16_bf16 {v(ACC,16)}, {a(8*st,4)}, {v(WF+4*st,4)}, {c0}")
            if st + NG < 28:
                gload(st + NG)
            A(f"v_mfma_f32_32x32x16_bf16 {v(ACC+16,16)}, {a(8*st+4,4)}, {v(WF+4*st,4)}, {c1}")
        self.stamp("s4mfma")
        A.nop(12)
        for k in (1, 2, 3):
            A.lds(f"ds_write_b128 {v(V_RED)}, {v(ACC+8*k,4)} offset:{k*2048}")
            A.lds(f"ds_write_b128 {v(V_RED)}, {v(ACC+8*k+4,4)} offset:{k*2048+1024}")
        A.wait_lg()
        self.barrier()
        self.stamp("s4bar")
        for k in (1, 2, 3):
            A.lds(f"ds_read_b128 {v(BF+8*(k-1),4)}, {v(VR+k-1)} offset:{k*2048}", f"red{k}")
            A.lds(f"ds_read_b128 {v(BF+8*(k-1)+4,4)}, {v(VR+k-1)} offset:{k*2048+1024}", f"red{k}")
        for p in range(4):
            A(f"v_pk_add_f32 {v(ACC+2*p,2)}, {v(ACC+2*p,2)}, {v(SCOL+2*p,2)}")
        for k in (1, 2, 3):
            A.wait_lg(f"red{k}")
            for p in range(4):
                A(f"v_pk_add_f32 {v(ACC+2*p,2)}, {v(ACC+2*p,2)}, {v(BF+8*(k-1)+2*p,2)}")
        for p in range(4):
            A(f"v_cvt_pk_bf16_f32 {v(BF+24+p)}, {v(ACC+2*p)}, {v(ACC+2*p+1)}")
        of = {0: "", 1: " sc1", 2: " nt", 3: " sc0 sc1"}[o.get("out_fl", 0)]
        A.vmem(f"buffer_store_dwordx2 {v(BF+24,2)}, {v(V_RO)}, {s(SRD_O,4)}, 0 offen{of}")
        A.vmem(f"buffer_store_dwordx2 {v(BF+26,2)}, {v(V_RO)}, {s(SRD_O,4)}, 0 offen offset:16{of}")
        self.stamp("end")
        if self.profile and o.get("dbg", 0):
            A("s_waitcnt lgkmcnt(0)")
            A("s_load_dwordx2 s[28:29], s[0:1], 48")
            A("s_waitcnt lgkmcnt(0)")
            A("s_mov_b32 s30, 256")
            A("s_mov_b32 s31, 0x20000")
            A(f"v_cmp_eq_u32 vcc, 0, {v(V_L)}")
            A(f"v_mov_b32 {v(V_T+2)}, {OOB:#x}")
            for i in range(self.nstamp):
                A(f"v_mov_b32 {v(V_T)}, {8*i}")
                A(f"v_cndmask_b32 {v(V_T)}, {v(V_T+2)}, {v(V_T)}, vcc")
                A(f"v_mov_b32 {v(V_T+1)}, {s(S_STAMP+2*i)}")
                A(f"buffer_atomic_umax {v(V_T+1)}, {v(V_T)}, s[28:31], 0 offen")
                A(f"v_not_b32 {v(V_T+3)}, {v(V_T+1)}")
                A(f"buffer_atomic_umax {v(V_T+3)}, {v(V_T)}, s[28:31], 0 offen offset:4")
        elif self.profile:
            A("s_memtime s[28:29]")
            A("s_waitcnt lgkmcnt(0)")
            A("s_sub_u32 s28, s28, s84")
            A(f"s_lshl_b32 {s(S_T0)}, s2, 2")
            A(f"s_add_u32 {s(S_T0)}, {s(S_T0)}, {s(S_W)}")
            A(f"s_lshl_b32 {s(S_T0)}, {s(S_T0)}, 7")
            A(f"s_add_u32 {s(S_T0)}, {s(S_T0)}, {PROF}")
            A(f"v_mov_b32 {v(V_T)}, {s(S_T0)}")
            for i in range(self.nstamp):
                A(f"v_mov_b32 {v(V_T+1)}, {s(S_STAMP+2*i)}")
                A(f"buffer_store_dword {v(V_T+1)}, {v(V_T)}, {s(SRD_WS,4)}, 0 offen offset:{4*i}")
            A(f"v_mov_b32 {v(V_T+1)}, s28")
            A(f"buffer_store_dword {v(V_T+1)}, {v(V_T)}, {s(SRD_WS,4)}, 0 offen offset:{4*31}")
        A("L_end:")
        A("s_endpgm")
        self.idle_block()
        for b in self.slow_blocks:
            A(b)
        A("L_code_end:")
        A("s_endpgm")

    def w3_items(self):
        A = self.A
        items = []
        for c in range(4):
            for i in range(8):
                def item(c=c, i=i):
                    k = i % 4
                    want = (S_L8, R1 + c * 32768 + 1024 * (i - k))
                    if k and self.m0 != want:
                        A(f"s_add_u32 m0, {s(S_L8)}, {want[1]}")
                        A("s_nop 0")
                        self.m0 = want
                    if k == 0:
                        self.m0 = want
                        A(f"s_add_u32 m0, {s(S_L8)}, {R1 + c*32768 + 1024*i}")
                        if c == 0 and i == 0:
                            A("s_nop 0")
                        elif i == 4:
                            A(f"v_add_u32 {v(V_W3D)}, {16*3584}, {v(V_W3D)}")
                        else:
                            A(f"s_mov_b32 {s(S_OFF)}, {(128-16)*3584}")
                            A(f"s_cmp_eq_u32 {s(S_R2)}, {4-c}")
                            A(f"s_cselect_b32 {s(S_OFF)}, {((128-16-512)*3584) & 0xffffffff}, {s(S_OFF)}")
                            A(f"v_add_u32 {v(V_W3D)}, {s(S_OFF)}, {v(V_W3D)}")
                    so = "0" if k == 0 else s(S_D + k - 1)
                    off = f" offset:{1024*k}" if k else ""
                    A.vmem(f"buffer_load_dwordx4 {v(V_W3D)}, {s(SRD_W3,4)}, {so} offen{off} lds", f"c{c}")
                items.append(item)
        return items

    def idle_block(self):
        A = self.A
        o = self.o
        A.vm = list(self.idle_vm)
        A.lg = []
        A("L_idle:")
        if o["t_idle"]:
            A(f"s_lshl_b32 {s(S_T0)}, {s(S_PG)}, 1")
            A(f"s_lshr_b32 {s(S_T1)}, {s(S_U)}, 3")
            A(f"s_add_u32 {s(S_T0)}, {s(S_T0)}, {s(S_T1)}")
            A(f"s_lshl_b32 {s(S_T0)}, {s(S_T0)}, 2")
            A(f"s_add_u32 {s(S_T0)}, {s(S_T0)}, {s(S_W)}")
            A(f"s_mul_i32 {s(S_T0)}, {s(S_T0)}, {112*128}")
            A(f"v_lshl_add_u32 {v(TG)}, {v(V_L)}, 7, {s(S_T0)}")
            A(f"v_cmp_gt_u32 vcc, 56, {v(V_L)}")
            A(f"v_mov_b32 {v(TH)}, {OOB:#x}")
            A(f"s_mov_b32 {s(S_T1)}, {56*128}")
            A(f"v_cndmask_b32 {v(TG)}, {v(TH)}, {v(TG)}, vcc")
            self.touch(TG, SRD_W4)
            self.touch(TG, SRD_W4, s(S_T1))
        if o["t_g"] == 1 and not o["g_sc1"]:
            A(f"s_lshr_b32 {s(S_T0)}, {s(S_U)}, 3")
            A(f"s_lshl_b32 {s(S_T0)}, {s(S_T0)}, 2")
            A(f"s_add_u32 {s(S_T0)}, {s(S_T0)}, {s(S_W)}")
            A(f"s_mul_i32 {s(S_T0)}, {s(S_T0)}, {224*128}")
            A(f"s_mul_i32 {s(S_T1)}, {s(S_B0)}, {GBATCH}")
            A(f"s_add_u32 {s(S_T0)}, {s(S_T0)}, {s(S_T1)}")
            A(f"s_add_u32 {s(S_T0)}, {s(S_T0)}, {GB}")
            A(f"v_lshl_add_u32 {v(TF)}, {v(V_L)}, 7, {s(S_T0)}")
            A(f"v_cmp_gt_u32 vcc, 56, {v(V_L)}")
            A(f"v_mov_b32 {v(TH)}, {OOB:#x}")
            A("s_nop 0")
            A(f"v_cndmask_b32 {v(TF)}, {v(TH)}, {v(TF)}, vcc")
            for i in range(4):
                A(f"s_mov_b32 {s(S_T1)}, {i*56*128}")
                self.touch(TF, SRD_WS, s(S_T1))
        A(f"s_mul_i32 {s(S_T4)}, {s(S_W)}, 40960")
        A(f"s_add_u32 {s(S_T0)}, {s(S_L16)}, {R3}")
        A(f"s_sub_u32 {s(S_T0)}, {s(S_T4)}, {s(S_T0)}")
        A(f"v_add_u32 {v(V_A2)}, {s(S_T0)}, {v(V_A0)}")
        A(f"v_xor_b32 {v(V_A3)}, 64, {v(V_A2)}")

        def dma(hh):
            def last():
                A(f"s_mov_b32 {s(S_OFF)}, 32768")
                A(f"s_cmp_eq_u32 {s(S_R4)}, {6-hh}")
                A(f"s_cselect_b32 {s(S_OFF)}, {(32768 - 7*65536) & 0xffffffff}, {s(S_OFF)}")
                A(f"v_add_u32 {v(V_WD)}, {s(S_OFF)}, {v(V_WD)}")
            for it in self.wdma_items(SRD_W4, [V_WD], 8, S_T4, (hh % 5) * 8192, S_C, 32768, f"i4d{hh}", last=last):
                it()

        def park(hh):
            w4f = lambda st, f, hh=hh: (lambda o_, n: a(8 * (4 * hh + st) + 4 * f + o_, n))
            A.wait_vm(f"i4d{hh}")
            for it in self.tr_items(w4f, [V_A2, V_A3], 4, 2048, 1024, 2, f"i4f{hh}", off0=(hh % 5) * 8192):
                it()
        for hh in range(5):
            dma(hh)
        park(0)
        park(1)
        A.wait_lg()
        dma(5)
        dma(6)
        A(f"s_add_u32 {s(S_T0)}, {s(S_FRAG)}, {X1B}")
        A(f"v_add_u32 {v(TE)}, {s(S_T0)}, {v(V_L16)}")
        A.vmem(f"buffer_load_dwordx4 {v(X1P,4)}, {v(TE)}, {s(SRD_WS,4)}, 0 offen sc1", "res")
        for hh in range(2, 7):
            park(hh)
        A("s_waitcnt vmcnt(0) lgkmcnt(0)")
        A("s_branch L_join")

    def poll1(self, HP, between=None):
        A = self.A
        L, Ld, Ln, Lg = A.label("L_p1"), A.label("L_p1d"), A.label("L_p1n"), A.label("L_p1g")
        A(f"v_lshl_add_u32 {v(TH)}, {v(V_I)}, 3, {s(S_HSP)}")
        A.vmem(f"buffer_load_dword {v(TG)}, {v(TE)}, {s(SRD_WS,4)}, 0 offen sc1", "poll")
        A.vmem(f"buffer_load_dwordx2 {v(SUM,2)}, {v(TH)}, {s(SRD_WS,4)}, 0 offen sc1", "poll")
        if between:
            between()
        A(f"s_mov_b32 {s(S_MODE)}, 1")
        A(f"s_mov_b32 {s(S_CNT)}, 0x8000")
        A.wait_vm("poll")
        A(f"v_cmp_ne_u32 vcc, {s(S_TAG)}, {v(SUM)}")
        A(f"v_cmp_ne_u32 {s(S_EX,2)}, {s(S_TAG)}, {v(TG)}")
        A(f"v_cmp_ne_u32 {s(16,2)}, {s(S_XCC)}, {v(SQ)}")
        A("s_nop 3")
        A(f"s_or_b64 vcc, vcc, {s(S_EX,2)}")
        A(f"s_or_b64 vcc, vcc, {s(16,2)}")
        A(f"s_cbranch_scc1 {L}")
        A(f"{Ld}:")
        blk = f"""{L}:
s_mov_b32 {s(S_MODE)}, 0
buffer_load_dword {v(TG)}, {v(TE)}, {s(SRD_WS,4)}, 0 offen sc1
buffer_load_dwordx2 {v(SUM,2)}, {v(TH)}, {s(SRD_WS,4)}, 0 offen sc1
s_sub_u32 {s(S_CNT)}, {s(S_CNT)}, 1
s_cmp_eq_u32 {s(S_CNT)}, 0
s_cbranch_scc1 {Ld}
s_waitcnt vmcnt(0)
v_cmp_ne_u32 vcc, {s(S_TAG)}, {v(SUM)}
v_cmp_ne_u32 {s(S_EX,2)}, {s(S_TAG)}, {v(TG)}
s_nop 4
s_cmp_eq_u64 vcc, 0
s_cbranch_scc0 {L}
v_cmp_ne_u32 vcc, {s(S_XCC)}, {v(SQ)}
s_nop 4
s_cmp_eq_u64 vcc, 0
s_cbranch_scc0 {Ln}
s_cmp_eq_u64 {s(S_EX,2)}, 0
s_cbranch_scc0 {L}
s_mov_b32 {s(S_MODE)}, 1
s_branch {Ld}
{Ln}:
buffer_store_dwordx2 {v(HP,2)}, {v(V_FO)}, {s(SRD_WS,4)}, 0 offen sc1
buffer_store_dwordx2 {v(HP+2,2)}, {v(V_FO)}, {s(SRD_WS,4)}, 0 offen offset:256 sc1
v_add_u32 {v(TG)}, {FL1G-FL1}, {v(V_FS1)}
s_waitcnt vmcnt(0)
buffer_store_dword {v(V_TAG)}, {v(TG)}, {s(SRD_WS,4)}, 0 offen sc1
v_add_u32 {v(TE)}, {FL1G-FL1}, {v(TE)}
{Lg}:
buffer_load_dword {v(TG)}, {v(TE)}, {s(SRD_WS,4)}, 0 offen sc1
s_sub_u32 {s(S_CNT)}, {s(S_CNT)}, 1
s_cmp_eq_u32 {s(S_CNT)}, 0
s_cbranch_scc1 {Ld}
s_waitcnt vmcnt(0)
v_cmp_ne_u32 vcc, {s(S_TAG)}, {v(TG)}
s_nop 4
s_cmp_eq_u64 vcc, 0
s_cbranch_scc0 {Lg}
s_branch {Ld}"""
        self.slow_blocks.append(blk)


HEADER = """; Kernarg layout: x, w1, w2, w3, w4, out, debug, ws (8 pointers)
; @launch grid=(256,1,1) block=(256,1,1) lds=163840
.amdgcn_target "amdgcn-amd-amdhsa--gfx950"
.text
.globl {name}_kernel
.p2align 8
.type {name}_kernel,@function
{name}_kernel:
"""
FOOTER = """.section .rodata,"a"
.p2align 6
.amdhsa_kernel {name}_kernel
  .amdhsa_next_free_vgpr 512
  .amdhsa_next_free_sgpr 102
  .amdhsa_accum_offset 256
  .amdhsa_group_segment_fixed_size 0
  .amdhsa_kernarg_size 64
  .amdhsa_user_sgpr_count 2
  .amdhsa_user_sgpr_kernarg_segment_ptr 1
  .amdhsa_system_sgpr_workgroup_id_x 1
  .amdhsa_float_denorm_mode_32 3
.end_amdhsa_kernel
"""


def generate(**kw):
    g = Gen(**kw)
    g.build()
    return HEADER.format(name=NAME) + g.A.text() + FOOTER.format(name=NAME), g


if __name__ == "__main__":
    import argparse
    ap = argparse.ArgumentParser()
    ap.add_argument("-o", default="cdna_kernels/" + NAME + ".s")
    ap.add_argument("--mode", default="auto", choices=["auto", "local", "global"])
    ap.add_argument("--profile", action="store_true")
    ap.add_argument("--opt", action="append", default=[])
    args = ap.parse_args()
    opts = {}
    for t in args.opt:
        k, val = t.split("=")
        opts[k] = val.split(",") if k == "stamps" else int(val)
    txt, g = generate(local={"auto": None, "local": True, "global": False}[args.mode], profile=args.profile, opts=opts)
    open(args.o, "w").write(txt)
    print("instructions:", g.A.ninstr, "stamps:", g.nstamp, ",".join(g.stamp_names))
    if args.profile:
        open(args.o, "a").write("; STAMPS " + ",".join(g.stamp_names) + "\n")
```

```python
import sys
import os
import struct
sys.path.insert(0, os.path.dirname(os.path.abspath(__file__)))
from asmlib import Asm, v, a, s

NAME = "standalone__mixer_s_mlp__sampling"

HB = 0
X1B = 1 << 20
GB = 2 << 20
GBATCH = 112 * 1024
STB = 6 << 20
FL = 7 << 20
FL1 = FL
FL1G = FL + 0x1000
FL2 = FL + 0x2000
FL3 = FL + 0x3000
EPO = FL + 0x4000
HS = FL + 0x5000
PROF = FL + 0x10000
WS_SIZE = 8 << 20
OOB = 0x80000000

R0, R1, R2, R3, R4 = 0, 32768, 65536, 98304, 131072
PART = R4 + 32768 - 1024
LNST = R3 + 3 * 16384 + 8192
LNDUMMY = LNST + 1024

S_T0, S_T1 = 3, 4
S_J, S_M, S_B, S_U, S_B0, S_PG, S_W = 5, 6, 7, 8, 9, 10, 11
S_TAG = 12
S_T2, S_T3 = 14, 15
SRD_X, SRD_W1, SRD_W2, SRD_W3, SRD_W4, SRD_WS, SRD_O = 16, 20, 24, 32, 36, 40, 44
S_KA = 48
S_L8, S_L16, S_L4 = 48, 49, 50
S_C = 51
S_D = 54
S_R4 = 57
S_EX = 58
S_A, S_R2, S_MODE, S_XCC = 60, 61, 62, 63
S_OFF, S_CNT, S_4096, S_T4 = 64, 65, 66, 67
S_K2 = 68
S_PC = 70
S_FRAG, S_HSRC, S_X1SRC, S_FLO, S_SL, S_IDLE, S_HSP, S_GW, S_HSV = 72, 73, 74, 75, 76, 77, 78, 79, 80
S_R2W = 81
S_X2, S_W3A, S_W3B = 82, 83, 30
S_STAMP = 86

V_L, V_H, V_J, V_L16 = 0, 1, 2, 3
V_WD = 4
V_W2D = 5
V_W1D = 6
V_XD = 8
V_Q, V_I = 9, 10
V_W3D, V_TR3 = 11, 12
V_RED = 13
V_K1 = 14
V_T = 16
SUM, SQ, P0, P1 = 20, 21, 22, 23
TE, TF, TG, TH = 24, 25, 26, 27
V_GS, V_HSH, V_FO, V_RO = 28, 29, 30, 31
ACC = 32
SCOL = 64
BF = 80
X1P = 112
XRES = 116
V_A0, V_A1 = 120, 121
V_R0, V_Q0, V_R1, V_Q1 = 122, 123, 124, 125
V_ONES = 126
V_TAG = 127
WF = 128
JUNK = 15
V_FS1, V_FS2, V_FS3 = 8, 6, 7
V_A2, V_A3 = 18, 19
V_ST = 5


def f2u(x):
    return struct.unpack("<I", struct.pack("<f", x))[0]


class Gen:
    def __init__(self, local=None, profile=False, opts=None):
        self.A = Asm()
        self.force = local
        self.profile = profile
        self.nstamp = 0
        self.stamp_names = []
        self.slow_blocks = []
        self.bgq = []
        self.m0 = None
        self.o = dict(codepf=2, t_ex=1, g_sc1=0, t_g=3, w2rot_a=1, qord=1, t_w2=0, mimic_ln=0, rot=1, xrot=1, t_idle=0,
                      w2_s1=16, w2_pre=5, s1_stages=1,
                      c_f1=6,
                      c_e=4,
                      c_h=0,
                      c_s2=10,
                      c_p2=6,
                      bg_t0=12, bg_a=2, bg_t1=30, bg_e1=4)
        if opts:
            self.o.update(opts)

    def stamp(self, name="?"):
        if not self.profile:
            return
        want = self.o.get("stamps")
        if want is not None and name not in want:
            return
        A = self.A
        r = S_STAMP + 2 * self.nstamp
        assert r + 1 <= 101, "too many stamps"
        self.nstamp += 1
        self.stamp_names.append(name)
        A(f"s_memrealtime {s(r,2)}")
        A.force_lg0 = True
        if self.o.get("exit_at") == name:
            A("s_branch L_tail")

    def bg(self, n=1):
        for _ in range(n):
            if self.bgq:
                self.bgq.pop(0)()

    def bg_flush(self):
        self.bg(len(self.bgq))

    def wdma_items(self, srd, vaddrs, n, lds_sgpr, lds_const, consts, group_step, tag, xor=False, last=None, c4=None):
        A = self.A
        items = []
        for i in range(n):
            def item(i=i):
                k = i % 4
                want = (lds_sgpr, lds_const + 1024 * (i - k))
                if k and self.m0 != want:
                    A(f"s_add_u32 m0, {s(lds_sgpr)}, {want[1]}")
                    A("s_nop 0")
                    self.m0 = want
                if k == 0:
                    A(f"s_add_u32 m0, {s(lds_sgpr)}, {lds_const + 1024*i}")
                    self.m0 = want
                    if i == 0:
                        A("s_nop 0")
                    else:
                        g = i // 4
                        for va in sorted(set(vaddrs)):
                            if xor:
                                A(f"v_xor_b32 {v(va)}, {(g ^ (g-1))*group_step}, {v(va)}")
                            else:
                                A(f"v_add_u32 {v(va)}, {group_step}, {v(va)}")
                so = "0" if k == 0 else s(consts + k - 1)
                if c4 is not None:
                    so = s(c4 + k)
                off = f" offset:{1024*k}" if k else ""
                A.vmem(f"buffer_load_dwordx4 {v(vaddrs[i % len(vaddrs)])}, {s(srd,4)}, {so} offen{off} lds", tag)
                if i == n - 1:
                    if last:
                        last()
                    elif not xor:
                        for va in sorted(set(vaddrs)):
                            A(f"v_add_u32 {v(va)}, {group_step}, {v(va)}")
            items.append(item)
        return items

    def lin_dma(self, vaddr, n, lds_sgpr, lds_const, g_sgpr, g_const, tag):
        A = self.A
        for i in range(n):
            if i % 4 == 0:
                A(f"s_add_u32 m0, {s(lds_sgpr)}, {lds_const + 1024*i}")
                self.m0 = (lds_sgpr, lds_const + 1024 * i)
                A(f"s_add_u32 {s(S_OFF)}, {s(g_sgpr)}, {g_const + 1024*i}")
            off = f" offset:{1024*(i%4)}" if i % 4 else ""
            A.vmem(f"buffer_load_dwordx4 {v(vaddr)}, {s(SRD_WS,4)}, {s(S_OFF)} offen{off} sc1 lds", tag)

    def tr_items(self, dst_fn, base_v, nsteps, step_bytes, second, tiles, tag, off0=0):
        A = self.A
        items = []
        for st in range(nsteps):
            for f in range(tiles):
                def item(st=st, f=f):
                    reg = dst_fn(st, f)
                    bv = base_v[f]
                    A.lds(f"ds_read_b64_tr_b16 {reg(0,2)}, {v(bv)} offset:{off0+st*step_bytes}", tag)
                    A.lds(f"ds_read_b64_tr_b16 {reg(2,2)}, {v(bv)} offset:{off0+st*step_bytes+second}", tag)
                items.append(item)
        return items

    def publish(self, stores, sc1=False, tag=None):
        A = self.A
        if sc1 or self.force is False:
            for t in stores:
                A.vmem(t.replace("{F}", " sc1"), tag)
            return
        if self.force is True:
            for t in stores:
                A.vmem(t.replace("{F}", ""), tag)
            return
        Ls, Lb = A.label("L_slow"), A.label("L_back")
        A(f"s_cmp_eq_u32 {s(S_MODE)}, 1")
        A(f"s_cbranch_scc0 {Ls}")
        for t in stores:
            A.vmem(t.replace("{F}", ""), tag)
        A(f"{Lb}:")
        blk = [f"{Ls}:"] + [t.replace("{F}", " sc1") for t in stores] + [f"s_branch {Lb}"]
        self.slow_blocks.append("\n".join(blk))

    def poll(self, vaddr, vtmp, between=None):
        A = self.A
        L = A.label("L_poll")
        Ld = A.label("L_polld")
        A.vmem(f"buffer_load_dword {v(vtmp)}, {v(vaddr)}, {s(SRD_WS,4)}, 0 offen sc1", "poll")
        if between:
            between()
        A.wait_vm("poll")
        A(f"v_cmp_ne_u32 vcc, {s(S_TAG)}, {v(vtmp)}")
        A(f"s_mov_b32 {s(S_CNT)}, 0x8000")
        A("s_nop 3")
        A("s_cmp_eq_u64 vcc, 0")
        A(f"s_cbranch_scc0 {L}")
        A(f"{Ld}:")
        blk = f"""{L}:
buffer_load_dword {v(vtmp)}, {v(vaddr)}, {s(SRD_WS,4)}, 0 offen sc1
s_sub_u32 {s(S_CNT)}, {s(S_CNT)}, 1
s_cmp_eq_u32 {s(S_CNT)}, 0
s_cbranch_scc1 {Ld}
s_waitcnt vmcnt(0)
v_cmp_ne_u32 vcc, {s(S_TAG)}, {v(vtmp)}
s_nop 4
s_cmp_eq_u64 vcc, 0
s_cbranch_scc0 {L}
s_branch {Ld}"""
        self.slow_blocks.append(blk)

    def barrier(self):
        self.A("s_barrier")

    def gelu_a(self, src, n, t0):
        ops = []
        for p in range(n):
            ops.append(f"v_pk_mul_f32 {v(t0+2*p,2)}, {v(src+2*p,2)}, {v(src+2*p,2)}")
        for p in range(n):
            ops.append(f"v_pk_fma_f32 {v(t0+2*p,2)}, {v(t0+2*p,2)}, {s(S_K2,2)}, {v(V_K1,2)} op_sel_hi:[1,1,0]")
        for p in range(n):
            ops.append(f"v_pk_mul_f32 {v(t0+2*p,2)}, {v(t0+2*p,2)}, {v(src+2*p,2)}")
        return ops

    def gelu_b(self, src, n, dst, t0, packed):
        ops = []
        for e in range(2 * n):
            ops.append(f"v_exp_f32 {v(t0+e)}, {v(t0+e)}")
        if packed:
            for p in range(n):
                ops.append(f"v_pk_add_f32 {v(t0+2*p,2)}, {v(t0+2*p,2)}, 1.0 op_sel_hi:[1,0]")
        else:
            for e in range(2 * n):
                ops.append(f"v_add_f32 {v(t0+e)}, 1.0, {v(t0+e)}")
        for e in range(2 * n):
            ops.append(f"v_rcp_f32 {v(t0+e)}, {v(t0+e)}")
        if packed:
            for p in range(n):
                ops.append(f"v_pk_mul_f32 {v(t0+2*p,2)}, {v(t0+2*p,2)}, {v(src+2*p,2)}")
        else:
            for e in range(2 * n):
                ops.append(f"v_mul_f32 {v(t0+e)}, {v(t0+e)}, {v(src+e)}")
        for p in range(n):
            ops.append(f"v_cvt_pk_bf16_f32 {v(dst+p)}, {v(t0+2*p)}, {v(t0+2*p+1)}")
        return ops

    def round_bf16(self, reg, tmp):
        A = self.A
        A(f"v_cvt_pk_bf16_f32 {v(tmp)}, {v(reg)}, {v(reg)}")
        A(f"v_lshlrev_b32 {v(reg)}, 16, {v(tmp)}")

    def round_to(self, src, tmp, dst):
        A = self.A
        A(f"v_cvt_pk_bf16_f32 {v(tmp)}, {v(src)}, {v(src)}")
        A(f"v_lshlrev_b32 {v(dst)}, 16, {v(tmp)}")

    def ln_scalars(self, vsum, vsq, vr, vq, t, mpair=False):
        A = self.A
        if not self.o["mimic_ln"]:
            A(f"v_mul_f32 {v(vsum)}, 0xbb000000, {v(vsum)}")
            A(f"v_mul_f32 {v(vsq)}, 0x3b000000, {v(vsq)}")
            A(f"v_fma_f32 {v(vsq)}, -{v(vsum)}, {v(vsum)}, {v(vsq)}")
            A(f"v_max_f32 {v(vsq)}, 0, {v(vsq)}")
            A(f"v_add_f32 {v(vsq)}, 0x3727c5ac, {v(vsq)}")
            A(f"v_rsq_f32 {v(vr)}, {v(vsq)}")
            if mpair:
                A(f"v_cvt_pk_bf16_f32 {v(vq)}, {v(vsum)}, {v(vsum)}")
            else:
                A("s_nop 0")
                A(f"v_mul_f32 {v(vq)}, {v(vsum)}, {v(vr)}")
            return
        A(f"v_mul_f32 {v(vsum)}, 0x3b000000, {v(vsum)}")
        A(f"v_mul_f32 {v(vsq)}, 0x3b000000, {v(vsq)}")
        A(f"v_fma_f32 {v(vsq)}, -{v(vsum)}, {v(vsum)}, {v(vsq)}")
        A(f"v_max_f32 {v(vsq)}, 0, {v(vsq)}")
        if mpair:
            A(f"v_sub_f32 {v(vsum)}, 0, {v(vsum)}")
            A(f"v_cvt_pk_bf16_f32 {v(vq)}, {v(vsum)}, {v(vsum)}")
        else:
            self.round_bf16(vsum, t)
        self.round_bf16(vsq, t)
        A(f"v_add_f32 {v(vsq)}, 0x3727c5ac, {v(vsq)}")
        self.round_bf16(vsq, t)
        A(f"v_sqrt_f32 {v(vsq)}, {v(vsq)}")
        A("s_nop 0")
        self.round_bf16(vsq, t)
        A(f"v_rcp_f32 {v(vr)}, {v(vsq)}")
        if not mpair:
            A("s_nop 0")
            A(f"v_mul_f32_e64 {v(vq)}, -{v(vsum)}, {v(vr)}")

    def lane_sum(self, regs, tmps, x32=True, x16=False):
        A = self.A
        for op, on in (("v_permlane32_swap_b32", x32), ("v_permlane16_swap_b32", x16)):
            if not on:
                continue
            for r, t in zip(regs, tmps):
                A(f"v_mov_b32 {v(t)}, {v(r)}")
            A.nop(max(0, 3 - len(regs)) if len(regs) < 3 else 0)
            if len(regs) >= 3:
                A("s_nop 0")
            for r, t in zip(regs, tmps):
                A(f"{op} {v(r)}, {v(t)}")
            A("s_nop 1")
            for r, t in zip(regs, tmps):
                A(f"v_add_f32 {v(r)}, {v(r)}, {v(t)}")

    def touch(self, vaddr, srd, so="0"):
        self.A.vmem(f"buffer_load_dword {v(JUNK)}, {v(vaddr)}, {s(srd,4)}, {so} offen", "touch")

    def wave0_addr(self, vdst, sreg):
        A = self.A
        A(f"s_cmp_eq_u32 {s(S_W)}, 0")
        A(f"s_cselect_b32 {s(sreg)}, {s(sreg)}, {OOB}")
        A(f"v_mov_b32 {v(vdst)}, {s(sreg)}")

    def build(self):
        A = self.A
        o = self.o
        T = V_T
        A("s_cmp_ge_u32 s2, 256")
        A("s_cbranch_scc1 L_end")
        A(f"s_load_dwordx16 {s(S_KA,16)}, s[0:1], 0")
        if self.profile:
            A("s_memtime s[84:85]")
        self.stamp("start")
        A(f"v_lshrrev_b32 {v(T)}, 6, v0")
        A(f"v_and_b32 {v(V_L)}, 63, v0")
        A(f"s_lshr_b32 {s(S_J)}, s2, 3")
        A(f"v_readfirstlane_b32 {s(S_W)}, {v(T)}")
        A(f"s_and_b32 {s(S_M)}, {s(S_J)}, 7")
        A(f"s_and_b32 {s(S_T0)}, s2, 7")
        A(f"s_lshl_b32 {s(S_B)}, {s(S_T0)}, 2")
        A(f"s_lshr_b32 {s(S_T1)}, {s(S_J)}, 3")
        A(f"s_add_u32 {s(S_B)}, {s(S_B)}, {s(S_T1)}")
        A(f"v_lshrrev_b32 {v(V_Q)}, 4, {v(V_L)}")
        A(f"v_and_b32 {v(V_I)}, 15, {v(V_L)}")
        A(f"v_lshrrev_b32 {v(T)}, 3, {v(V_L)}")
        A(f"v_lshlrev_b32 {v(T)}, 10, {v(T)}")
        A(f"v_and_b32 {v(T+1)}, 7, {v(V_L)}")
        A(f"s_and_b32 {s(S_T0)}, {s(S_W)}, 1")
        A(f"s_lshl_b32 {s(S_T0)}, {s(S_T0)}, 2")
        A(f"v_xor_b32 {v(T+2)}, {v(T+1)}, {v(V_Q)}")
        A(f"v_xor_b32 {v(T+2)}, {s(S_T0)}, {v(T+2)}")
        A(f"v_lshl_add_u32 {v(T+2)}, {v(T+2)}, 4, {v(T)}")
        A(f"s_lshl_b32 {s(S_T0)}, {s(S_B)}, 15")
        A(f"s_lshl_b32 {s(S_T1)}, {s(S_W)}, 13")
        A(f"s_add_u32 {s(S_HSRC)}, {s(S_T0)}, {s(S_T1)}")
        A(f"v_add_u32 {v(V_XD)}, {s(S_HSRC)}, {v(T+2)}")
        A(f"v_and_b32 {v(T+2)}, 1, {v(V_Q)}")
        A(f"v_lshlrev_b32 {v(T+2)}, 1, {v(T+2)}")
        A(f"v_xor_b32 {v(T+2)}, {v(T+1)}, {v(T+2)}")
        A(f"v_lshl_add_u32 {v(T+2)}, {v(T+2)}, 4, {v(T)}")
        A(f"s_lshl_b32 {s(S_T0)}, {s(S_M)}, 7")
        A(f"s_lshl_b32 {s(S_T1)}, {s(S_W)}, 15")
        A(f"s_add_u32 {s(S_T1)}, {s(S_T1)}, {s(S_T0)}")
        if o["rot"]:
            A(f"s_lshr_b32 {s(S_T0)}, {s(S_J)}, 3")
            A(f"s_lshl_b32 {s(S_T0)}, {s(S_T0)}, 17")
            A(f"s_add_u32 {s(S_T1)}, {s(S_T1)}, {s(S_T0)}")
        A(f"v_add_u32 {v(V_W1D)}, {s(S_T1)}, {v(T+2)}")
        A(f"v_xor_b32 {v(V_W1D+1)}, 64, {v(V_W1D)}")
        for srd, size in ((SRD_X, 1 << 20), (SRD_W1, 1 << 19), (SRD_WS, WS_SIZE), (SRD_W2, 1 << 19), (SRD_W3, 512 * 3584),
                          (SRD_W4, 1792 * 1024), (SRD_O, 1 << 20)):
            A(f"s_mov_b32 {s(srd+2)}, {size}")
            A(f"s_mov_b32 {s(srd+3)}, 0x20000")
        A(f"s_lshr_b32 {s(S_PG)}, {s(S_B)}, 1")
        A(f"s_and_b32 {s(S_U)}, {s(S_J)}, 15")
        A(f"s_and_b32 {s(S_B0)}, {s(S_B)}, 0xfe")
        A(f"s_cmp_gt_u32 {s(S_U)}, 3")
        A(f"s_cselect_b32 {s(S_T0)}, 1, 0")
        A(f"s_sub_u32 {s(S_SL)}, {s(S_U)}, {s(S_T0)}")
        A(f"s_cmp_gt_u32 {s(S_U)}, 11")
        A(f"s_cselect_b32 {s(S_T0)}, 1, 0")
        A(f"s_sub_u32 {s(S_SL)}, {s(S_SL)}, {s(S_T0)}")
        A(f"s_cmp_eq_u32 {s(S_M)}, 3")
        A(f"s_cselect_b32 {s(S_IDLE)}, 1, 0")
        if o["codepf"]:
            A(f"s_getpc_b64 {s(S_PC,2)}")
            A("L_pc0:")
            A(f"s_lshl_b32 {s(S_T3)}, {s(S_J)}, 2")
            A(f"s_add_u32 {s(S_T3)}, {s(S_T3)}, {s(S_W)}")
            A(f"s_lshl_b32 {s(S_T3)}, {s(S_T3)}, 8")
            A(f"v_lshl_add_u32 {v(TE)}, {v(V_L)}, 7, {s(S_T3)}")
            A(f"s_mov_b32 {s(S_T4)}, L_code_end-L_pc0")
            A(f"v_cmp_gt_u32 vcc, 2, {v(V_L)}")
        def code_pf(ex):
            A(f"v_cmp_gt_u32 {s(ex,2)}, {s(S_T4)}, {v(TE)}")
            A("s_nop 1")
            A(f"s_and_b64 vcc, vcc, {s(ex,2)}")
            A(f"s_and_saveexec_b64 {s(ex,2)}, vcc")
            A("s_cbranch_execz L_nopf")
            A(f"global_load_dword {v(JUNK)}, {v(TE)}, {s(S_PC,2)}")
            A("L_nopf:")
            A(f"s_mov_b64 exec, {s(ex,2)}")
        if o["codepf"] == 2:
            code_pf(28)

        A("s_waitcnt lgkmcnt(0)")
        order = (SRD_X, SRD_W1, SRD_W2, SRD_W3, SRD_W4, SRD_O, None, SRD_WS)
        for i in (0, 1):
            A(f"s_mov_b32 {s(order[i])}, {s(S_KA+2*i)}")
            A(f"s_mov_b32 {s(order[i]+1)}, {s(S_KA+2*i+1)}")
        def tlb_warm():
            for srd, off in ((SRD_WS, 0), (SRD_W2, 0), (SRD_W3, 0), (SRD_WS, 2 << 20), (SRD_W4, 0), (SRD_WS, 4 << 20), (SRD_O, 0)):
                if off:
                    A(f"s_mov_b32 {s(S_T1)}, {off}")
                A.vmem(f"buffer_load_dword {v(JUNK)}, off, {s(srd,4)}, {s(S_T1) if off else 0}", "touch")
        if o.get("tlbw", 0) == 1:
            for i in (7, 2, 3, 4, 5):
                A(f"s_mov_b32 {s(order[i])}, {s(S_KA+2*i)}")
                A(f"s_mov_b32 {s(order[i]+1)}, {s(S_KA+2*i+1)}")
            tlb_warm()
        def x_touch():
            A(f"s_lshl_b32 {s(S_T1)}, s2, 2")
            A(f"s_add_u32 {s(S_T1)}, {s(S_T1)}, {s(S_W)}")
            A(f"s_lshl_b32 {s(S_T1)}, {s(S_T1)}, 10")
            A(f"v_cmp_gt_u32 vcc, 8, {v(V_L)}")
            A(f"v_lshl_add_u32 {v(TF)}, {v(V_L)}, 7, {s(S_T1)}")
            A(f"v_mov_b32 {v(TH)}, {OOB:#x}")
            A(f"v_cndmask_b32 {v(TF)}, {v(TH)}, {v(TF)}, vcc")
            self.touch(TF, SRD_X)
        if o.get("t_x", 0) == 1:
            x_touch()
        A(f"s_lshl_b32 {s(S_T0)}, {s(S_W)}, 13")
        for i in range(8):
            A(f"s_add_u32 m0, {s(S_T0)}, {R0 + 896*i}")
            A("s_nop 0")
            off = f" offset:{128*i}" if i else ""
            A.vmem(f"buffer_load_dwordx4 {v(V_XD)}, {s(SRD_X,4)}, 0 offen{off} lds", "x" if i == 7 else f"x{i}")
        if o.get("t_x", 0) == 2:
            x_touch()
        for i in (7, 2, 3, 4, 5):
            A(f"s_mov_b32 {s(order[i])}, {s(S_KA+2*i)}")
            A(f"s_mov_b32 {s(order[i]+1)}, {s(S_KA+2*i+1)}")
        A(f"s_lshl_b32 {s(S_L8)}, {s(S_W)}, 13")
        A(f"s_lshl_b32 {s(S_L16)}, {s(S_W)}, 14")
        A(f"s_lshl_b32 {s(S_L4)}, {s(S_W)}, 12")
        for k in (1, 2, 3):
            A(f"s_mov_b32 {s(S_C+k-1)}, {7168*k}")

        def w1stage(p):
            self.m0 = ("w1", p)
            A(f"s_add_u32 m0, {s(S_L4)}, {R1 + p*16384}")
            if p:
                A(f"v_xor_b32 {v(V_W1D)}, {(p ^ (p-1))*131072}, {v(V_W1D)}")
                A(f"v_xor_b32 {v(V_W1D+1)}, {(p ^ (p-1))*131072}, {v(V_W1D+1)}")
            else:
                A("s_nop 0")
            for k in range(4):
                so = "0" if k == 0 else s(S_C + k - 1)
                off = f" offset:{1024*k}" if k else ""
                A.vmem(f"buffer_load_dwordx4 {v(V_W1D + (k & 1))}, {s(SRD_W1,4)}, {so} offen{off} lds", f"w1_{p}")
        w1stage(0)
        if o.get("tlbw", 0) == 2:
            tlb_warm()
        if o["codepf"] == 1:
            code_pf(S_EX)
        A(f"s_lshl_b32 {s(S_T0)}, {s(S_PG)}, 7")
        A(f"s_add_u32 {s(S_T0)}, {s(S_T0)}, {EPO}")
        A(f"v_mov_b32 {v(V_TAG)}, {s(S_T0)}")
        A.vmem(f"buffer_load_dword {v(V_TAG)}, {v(V_TAG)}, {s(SRD_WS,4)}, 0 offen sc1", "epoch")
        if o.get("t_c3", 0) == 1:
            A(f"s_lshl_b32 {s(S_T0)}, {s(S_J)}, 2")
            A(f"s_add_u32 {s(S_T0)}, {s(S_T0)}, {s(S_W)}")
            A(f"s_lshl_b32 {s(S_T0)}, {s(S_T0)}, 12")
            A(f"s_add_u32 {s(S_T0)}, {s(S_T0)}, 384")
            A(f"v_cmp_gt_u32 vcc, 4, {v(V_L)}")
            A(f"v_lshl_add_u32 {v(TF)}, {v(V_L)}, 10, {s(S_T0)}")
            A(f"v_mov_b32 {v(TH)}, {OOB:#x}")
            A(f"v_cndmask_b32 {v(TF)}, {v(TH)}, {v(TF)}, vcc")
            self.touch(TF, SRD_W1)
            self.touch(TF, SRD_W2)
        if o["t_w2"]:
            A(f"s_lshl_b32 {s(S_T0)}, s2, 2")
            A(f"s_add_u32 {s(S_T0)}, {s(S_T0)}, {s(S_W)}")
            A(f"s_lshl_b32 {s(S_T0)}, {s(S_T0)}, 9")
            A(f"v_cmp_gt_u32 vcc, 4, {v(V_L)}")
            A(f"v_lshl_add_u32 {v(TF)}, {v(V_L)}, 7, {s(S_T0)}")
            A(f"v_mov_b32 {v(TH)}, {OOB:#x}")
            A(f"v_cndmask_b32 {v(TF)}, {v(TH)}, {v(TF)}, vcc")
            self.touch(TF, SRD_W2)
        self.stamp("issued")

        A(f"v_lshlrev_b32 {v(V_L16)}, 4, {v(V_L)}")
        A(f"v_lshrrev_b32 {v(V_H)}, 5, {v(V_L)}")
        A(f"v_and_b32 {v(V_J)}, 31, {v(V_L)}")
        A(f"s_lshl_b32 {s(S_T0)}, {s(S_B)}, 15")
        A(f"s_lshl_b32 {s(S_T1)}, {s(S_M)}, 12")
        A(f"s_add_u32 {s(S_T0)}, {s(S_T0)}, {s(S_T1)}")
        A(f"s_lshl_b32 {s(S_T1)}, {s(S_W)}, 10")
        A(f"s_add_u32 {s(S_FRAG)}, {s(S_T0)}, {s(S_T1)}")
        A(f"v_and_b32 {v(T)}, 1, {v(V_Q)}")
        A(f"v_lshlrev_b32 {v(T)}, 9, {v(T)}")
        A(f"v_lshl_add_u32 {v(T)}, {v(V_I)}, 4, {v(T)}")
        A(f"v_lshrrev_b32 {v(T+1)}, 1, {v(V_Q)}")
        A(f"v_lshl_add_u32 {v(T)}, {v(T+1)}, 3, {v(T)}")
        A(f"v_add_u32 {v(V_FO)}, {s(S_FRAG)}, {v(T)}")
        VT = SCOL + 6
        if o["t_ex"]:
            A(f"v_and_b32 {v(VT)}, 7, {v(V_L)}")
            A(f"v_lshl_add_u32 {v(VT)}, {v(VT)}, 7, {s(S_FRAG)}")
            A(f"v_lshrrev_b32 {v(TF)}, 3, {v(V_L)}")
            A(f"v_lshl_add_u32 {v(VT)}, {v(TF)}, 20, {v(VT)}")
            A(f"s_lshr_b32 {s(S_T0)}, {s(S_FRAG)}, 2")
            A(f"s_add_u32 {s(S_T0)}, {s(S_T0)}, {STB - 16*128}")
            A(f"v_lshl_add_u32 {v(TF)}, {v(V_L)}, 7, {s(S_T0)}")
            A(f"v_cmp_gt_u32 vcc, 16, {v(V_L)}")
            A(f"s_lshl_b32 {s(S_T0)}, {s(S_B)}, 7")
            A(f"s_add_u32 {s(S_T0)}, {s(S_T0)}, {FL1 - 18*0x2000}")
            A(f"v_cndmask_b32 {v(VT)}, {v(TF)}, {v(VT)}, vcc")
            A(f"v_lshl_add_u32 {v(TF)}, {v(V_L)}, 13, {s(S_T0)}")
            A(f"v_cmp_gt_u32 vcc, 18, {v(V_L)}")
            A(f"s_lshl_b32 {s(S_T0)}, {s(S_PG)}, 8")
            A(f"s_add_u32 {s(S_T0)}, {s(S_T0)}, {FL3 - 20*128}")
            A(f"v_cndmask_b32 {v(VT)}, {v(TF)}, {v(VT)}, vcc")
            A(f"v_lshl_add_u32 {v(TF)}, {v(V_L)}, 7, {s(S_T0)}")
            A(f"v_cmp_gt_u32 vcc, 20, {v(V_L)}")
            A(f"v_mov_b32 {v(TG)}, {OOB:#x}")
            A("s_nop 0")
            A(f"v_cndmask_b32 {v(VT)}, {v(TF)}, {v(VT)}, vcc")
            A(f"v_cmp_gt_u32 vcc, 22, {v(V_L)}")
            A("s_nop 1")
            A(f"v_cndmask_b32 {v(VT)}, {v(TG)}, {v(VT)}, vcc")
        if o["t_ex"] and o.get("early_touch", 0):
            self.touch(VT, SRD_WS)
        A(f"s_lshl_b32 {s(S_T0)}, {s(S_B)}, 15")
        A(f"s_lshl_b32 {s(S_T1)}, {s(S_M)}, 7")
        A(f"s_add_u32 {s(S_T0)}, {s(S_T0)}, {s(S_T1)}")
        A(f"s_lshl_b32 {s(S_T1)}, {s(S_W)}, 5")
        A(f"s_add_u32 {s(S_T3)}, {s(S_T0)}, {s(S_T1)}")
        A(f"v_lshlrev_b32 {v(T)}, 10, {v(V_I)}")
        A(f"v_lshl_add_u32 {v(T)}, {v(V_Q)}, 3, {v(T)}")
        A(f"v_add_u32 {v(T)}, {s(S_T3)}, {v(T)}")
        A(f"s_mov_b32 {s(S_T0)}, 16384")
        A.vmem(f"buffer_load_dwordx2 {v(XRES,2)}, {v(T)}, {s(SRD_X,4)}, 0 offen", "xres")
        A.vmem(f"buffer_load_dwordx2 {v(XRES+2,2)}, {v(T)}, {s(SRD_X,4)}, {s(S_T0)} offen", "xres")
        A(f"v_lshlrev_b32 {v(T)}, 10, {v(V_J)}")
        A(f"v_lshl_add_u32 {v(T)}, {v(V_H)}, 3, {v(T)}")
        A(f"v_add_u32 {v(V_RO)}, {s(S_T3)}, {v(T)}")
        A(f"s_mov_b32 {s(S_4096)}, 4096")
        for k in (1, 2, 3):
            A(f"s_mov_b32 {s(S_D+k-1)}, {13312*k}")
        A(f"s_lshr_b32 {s(S_A)}, {s(S_J)}, 3")
        A(f"s_and_b32 {s(S_T0)}, s2, 7")
        A(f"s_and_b32 {s(S_R2)}, {s(S_T0)}, {3 if o['xrot'] else 0}")
        A(f"s_lshr_b32 {s(S_X2)}, {s(S_T0)}, 2")
        if not o.get("rot8", 1):
            A(f"s_mov_b32 {s(S_X2)}, 0")
        if o["w2rot_a"]:
            A(f"s_add_u32 {s(S_R2W)}, {s(S_T0)}, {s(S_A)}")
            A(f"s_and_b32 {s(S_R2W)}, {s(S_R2W)}, 3")
        else:
            A(f"s_mov_b32 {s(S_R2W)}, {s(S_R2)}")
        if o["xrot"]:
            if o.get("r4m", 1):
                A(f"s_add_u32 {s(S_R4)}, {s(S_T0)}, {s(S_M)}")
            else:
                A(f"s_mov_b32 {s(S_R4)}, {s(S_T0)}")
            A(f"s_cmp_ge_u32 {s(S_R4)}, 7")
            A(f"s_cselect_b32 {s(S_T1)}, 7, 0")
            A(f"s_sub_u32 {s(S_R4)}, {s(S_R4)}, {s(S_T1)}")
            A(f"s_cmp_ge_u32 {s(S_R4)}, 7")
            A(f"s_cselect_b32 {s(S_T1)}, 7, 0")
            A(f"s_sub_u32 {s(S_R4)}, {s(S_R4)}, {s(S_T1)}")
        else:
            A(f"s_mov_b32 {s(S_R4)}, 0")
        A(f"s_lshl_b32 {s(S_GW)}, s2, 2")
        A(f"s_add_u32 {s(S_GW)}, {s(S_GW)}, {s(S_W)}")
        A(f"s_lshl_b32 {s(S_T0)}, {s(S_B)}, 7")
        A(f"s_lshl_b32 {s(S_T1)}, {s(S_M)}, 4")
        A(f"s_add_u32 {s(S_T0)}, {s(S_T0)}, {s(S_T1)}")
        A(f"s_lshl_b32 {s(S_T1)}, {s(S_W)}, 2")
        A(f"s_add_u32 {s(S_FLO)}, {s(S_T0)}, {s(S_T1)}")
        A(f"s_lshl_b32 {s(S_T0)}, {s(S_PG)}, 7")
        A(f"s_add_u32 {s(S_HSP)}, {s(S_T0)}, {HS}")
        A(f"s_lshl_b32 {s(S_T0)}, {s(S_B0)}, 15")
        A(f"s_add_u32 {s(S_X1SRC)}, {s(S_T0)}, {s(S_L8)}")
        A(f"v_lshrrev_b32 {v(T)}, 3, {v(V_L)}")
        A(f"v_lshlrev_b32 {v(T)}, 10, {v(T)}")
        A(f"v_and_b32 {v(T+1)}, 7, {v(V_L)}")
        A(f"v_lshlrev_b32 {v(T+2)}, 1, {v(V_Q)}")
        A(f"v_xor_b32 {v(T+2)}, {v(T+1)}, {v(T+2)}")
        A(f"v_lshl_add_u32 {v(T+2)}, {v(T+2)}, 4, {v(T)}")
        A(f"s_lshl_b32 {s(S_T0)}, {s(S_M)}, 7")
        A(f"s_lshl_b32 {s(S_T1)}, {s(S_W)}, 17")
        A(f"s_add_u32 {s(S_T1)}, {s(S_T1)}, {s(S_T0)}")
        A(f"s_lshl_b32 {s(S_T2)}, {s(S_R2W)}, 15")
        A(f"s_add_u32 {s(S_T1)}, {s(S_T1)}, {s(S_T2)}")
        A(f"v_add_u32 {v(V_W2D)}, {s(S_T1)}, {v(T+2)}")
        A(f"s_lshl_b32 {s(S_T2)}, {s(S_X2)}, 14")
        A(f"v_xor_b32 {v(V_W2D)}, {s(S_T2)}, {v(V_W2D)}")
        A(f"v_and_b32 {v(T+2)}, 1, {v(V_Q)}")
        A(f"v_lshlrev_b32 {v(T+2)}, 2, {v(T+2)}")
        A(f"v_xor_b32 {v(T+2)}, {v(T+1)}, {v(T+2)}")
        A(f"v_lshl_add_u32 {v(T+2)}, {v(T+2)}, 4, {v(T)}")
        A(f"s_mul_i32 {s(S_T1)}, {s(S_W)}, {448*1024}")
        A(f"s_add_u32 {s(S_T1)}, {s(S_T1)}, {s(S_T0)}")
        A(f"s_lshl_b32 {s(S_T0)}, {s(S_R4)}, 16")
        A(f"s_add_u32 {s(S_T1)}, {s(S_T1)}, {s(S_T0)}")
        A(f"v_add_u32 {v(V_WD)}, {s(S_T1)}, {v(T+2)}")
        A(f"v_lshlrev_b32 {v(T+1)}, 2, {v(V_Q)}")
        A(f"v_xor_b32 {v(T+1)}, {v(T+1)}, {v(V_I)}")
        A(f"v_lshlrev_b32 {v(T+1)}, 4, {v(T+1)}")
        A(f"v_mul_u32_u24 {v(T)}, 3584, {v(V_Q)}")
        A(f"v_add_u32 {v(T)}, {v(T)}, {v(T+1)}")
        A(f"s_lshl_b32 {s(S_T0)}, {s(S_SL)}, 8")
        A(f"s_mul_i32 {s(S_T1)}, {s(S_W)}, {32*3584}")
        A(f"s_add_u32 {s(S_T0)}, {s(S_T0)}, {s(S_T1)}")
        A(f"s_mul_i32 {s(S_T1)}, {s(S_R2)}, {128*3584}")
        A(f"s_add_u32 {s(S_T0)}, {s(S_T0)}, {s(S_T1)}")
        A(f"s_mul_i32 {s(S_T1)}, {s(S_X2)}, {16*3584}")
        A(f"s_add_u32 {s(S_T0)}, {s(S_T0)}, {s(S_T1)}")
        A(f"s_mul_i32 {s(S_T1)}, {s(S_X2)}, {32*3584}")
        A(f"s_sub_u32 {s(S_W3A)}, {16*3584}, {s(S_T1)}")
        A(f"s_add_u32 {s(S_W3B)}, {s(S_T1)}, {112*3584}")
        A(f"s_cmp_eq_u32 {s(S_IDLE)}, 1")
        A(f"s_cselect_b32 {s(S_T0)}, {OOB}, {s(S_T0)}")
        A(f"v_add_u32 {v(V_W3D)}, {s(S_T0)}, {v(T)}")
        A(f"s_mul_i32 {s(S_T0)}, {s(S_B0)}, {GBATCH}")
        A(f"s_lshl_b32 {s(S_T2)}, {s(S_SL)}, 13")
        A(f"s_add_u32 {s(S_T0)}, {s(S_T0)}, {s(S_T2)}")
        A(f"s_lshl_b32 {s(S_T2)}, {s(S_W)}, 11")
        A(f"s_add_u32 {s(S_T0)}, {s(S_T0)}, {s(S_T2)}")
        A(f"s_add_u32 {s(S_T0)}, {s(S_T0)}, {GB}")
        A(f"v_add_u32 {v(V_GS)}, {s(S_T0)}, {v(V_L16)}")
        A(f"s_lshr_b32 {s(S_T0)}, {s(S_W)}, 1")
        A(f"s_add_u32 {s(S_T0)}, {s(S_T0)}, 1")
        A(f"s_sub_u32 {s(S_T2)}, 0, {s(S_T0)}")
        A(f"s_bitcmp1_b32 {s(S_W)}, 0")
        A(f"s_cselect_b32 {s(S_T0)}, {s(S_T2)}, {s(S_T0)}")
        A(f"v_subrev_u32 {v(TF)}, {s(S_T0)}, {v(V_J)}")
        A(f"v_cmp_gt_u32 vcc, 32, {v(TF)}")
        A(f"v_lshlrev_b32 {v(TF)}, 4, {v(TF)}")
        A(f"v_lshl_add_u32 {v(TF)}, {v(V_H)}, 9, {v(TF)}")
        A(f"v_mov_b32 {v(TG)}, {OOB:#x}")
        A(f"v_cndmask_b32 {v(V_HSH)}, {v(TG)}, {v(TF)}, vcc")
        RHO, PR, LO = T, T + 1, T + 2
        A(f"v_lshrrev_b32 {v(RHO)}, 2, {v(V_I)}")
        A(f"v_bfe_u32 {v(PR)}, {v(V_L)}, 1, 1")
        A(f"v_and_b32 {v(LO)}, 1, {v(V_L)}")
        A(f"v_and_b32 {v(T+3)}, 1, {v(V_Q)}")
        A(f"v_lshl_add_u32 {v(T+3)}, {v(T+3)}, 1, {v(PR)}")
        A(f"s_lshl_b32 {s(S_T0)}, {s(S_W)}, 2")
        A(f"v_add_u32 {v(TE)}, {s(S_T0)}, {v(T+3)}")
        A(f"v_lshlrev_b32 {v(TF)}, 2, {v(RHO)}")
        A(f"v_xor_b32 {v(TE)}, {v(TE)}, {v(TF)}")
        A(f"v_lshlrev_b32 {v(TE)}, 4, {v(TE)}")
        A(f"v_lshl_add_u32 {v(TE)}, {v(LO)}, 3, {v(TE)}")
        A(f"v_lshl_add_u32 {v(TF)}, {v(V_H)}, 2, {v(RHO)}")
        A(f"v_lshl_add_u32 {v(V_TR3)}, {v(TF)}, 8, {v(TE)}")
        A(f"v_lshrrev_b32 {v(TE)}, 1, {v(RHO)}")
        A(f"v_lshl_add_u32 {v(TE)}, {v(TE)}, 2, {v(T+3)}")
        A(f"v_lshlrev_b32 {v(TE)}, 4, {v(TE)}")
        A(f"v_lshl_add_u32 {v(TE)}, {v(LO)}, 3, {v(TE)}")
        A(f"s_lshl_b32 {s(S_T0)}, {s(S_W)}, 5")
        A(f"v_xor_b32 {v(TE)}, {s(S_T0)}, {v(TE)}")
        A(f"v_lshl_add_u32 {v(TE)}, {v(TF)}, 7, {v(TE)}")
        A(f"s_add_u32 {s(S_T0)}, {s(S_L16)}, {R3}")
        A(f"v_add_u32 {v(V_A0)}, {s(S_T0)}, {v(TE)}")
        A(f"v_xor_b32 {v(V_A1)}, 64, {v(V_A0)}")
        S1A, S2A = SCOL, SCOL + 1
        A(f"v_and_b32 {v(TE)}, 1, {v(V_Q)}")
        A(f"v_lshlrev_b32 {v(TE)}, 1, {v(TE)}")
        A(f"v_lshrrev_b32 {v(TF)}, 1, {v(RHO)}")
        A(f"v_add_u32 {v(TE)}, {v(TE)}, {v(TF)}")
        A(f"v_lshlrev_b32 {v(TE)}, 1, {v(TE)}")
        A(f"s_lshl_b32 {s(S_T0)}, {s(S_W)}, 1")
        A(f"v_add_u32 {v(TG)}, {s(S_T0)}, {v(PR)}")
        A(f"v_xor_b32 {v(TE)}, {v(TE)}, {v(TG)}")
        A(f"v_lshlrev_b32 {v(TE)}, 4, {v(TE)}")
        A(f"v_lshl_add_u32 {v(TE)}, {v(LO)}, 3, {v(TE)}")
        A(f"v_lshl_add_u32 {v(TH)}, {v(V_Q)}, 3, {v(RHO)}")
        A(f"v_lshl_add_u32 {v(S1A)}, {v(TH)}, 7, {v(TE)}")
        A(f"v_add_u32 {v(S1A)}, {R1}, {v(S1A)}")
        A(f"v_lshrrev_b32 {v(TH)}, 1, {v(V_Q)}")
        A(f"v_lshlrev_b32 {v(TH)}, 4, {v(TH)}")
        A(f"v_and_b32 {v(TF)}, 1, {v(V_Q)}")
        A(f"v_lshl_add_u32 {v(TH)}, {v(TF)}, 2, {v(TH)}")
        A(f"v_add_u32 {v(TH)}, {v(TH)}, {v(RHO)}")
        A(f"v_lshl_add_u32 {v(S2A)}, {v(TH)}, 7, {v(TE)}")
        A(f"v_add_u32 {v(S2A)}, {R3}, {v(S2A)}")
        XB0, XB1, XS0, XS1 = SCOL + 2, SCOL + 3, SCOL + 4, SCOL + 5
        A(f"v_bfe_u32 {v(TE)}, {v(V_L)}, 1, 3")
        A(f"v_xor_b32 {v(TE)}, {v(TE)}, {v(V_Q)}")
        A(f"v_lshlrev_b32 {v(TE)}, 4, {v(TE)}")
        A(f"v_and_b32 {v(TF)}, 7, {v(V_L)}")
        A(f"v_lshl_add_u32 {v(TE)}, {v(TF)}, 7, {v(TE)}")
        A(f"v_bfe_u32 {v(TF)}, {v(V_L)}, 3, 1")
        A(f"v_lshl_add_u32 {v(XB0)}, {v(TF)}, 13, {v(TE)}")
        A(f"v_xor_b32 {v(XB1)}, 64, {v(XB0)}")
        A(f"s_lshl_b32 {s(S_T0)}, {s(S_W)}, 11")
        A(f"v_add_u32 {v(XS0)}, {s(S_T0)}, {v(XB0)}")
        A(f"v_add_u32 {v(XS1)}, {s(S_T0)}, {v(XB1)}")
        if o["rot"]:
            A(f"s_lshl_b32 {s(S_T0)}, {s(S_A)}, 11")
            A(f"v_xor_b32 {v(XB0)}, {s(S_T0)}, {v(XB0)}")
            A(f"v_xor_b32 {v(XB1)}, {s(S_T0)}, {v(XB1)}")
        HBK = SCOL + 12
        A(f"v_lshrrev_b32 {v(TE)}, 1, {v(V_Q)}")
        A(f"v_xor_b32 {v(TE)}, {s(S_X2)}, {v(TE)}")
        A(f"v_lshlrev_b32 {v(TE)}, 10, {v(TE)}")
        A(f"v_and_b32 {v(TF)}, 1, {v(V_Q)}")
        A(f"v_lshl_add_u32 {v(TE)}, {v(TF)}, 9, {v(TE)}")
        A(f"v_lshl_add_u32 {v(TE)}, {v(V_I)}, 4, {v(TE)}")
        for k in range(4):
            A(f"s_xor_b32 {s(S_T0)}, {s(S_R2W)}, {k}")
            A(f"s_lshl_b32 {s(S_T0)}, {s(S_T0)}, 11")
            A(f"v_add_u32 {v(HBK+k)}, {s(S_T0)}, {v(TE)}")
        c = (2.0 / 3.141592653589793) ** 0.5
        k1 = -2.0 * c * 1.4426950408889634
        k2 = k1 * 0.044715
        A(f"s_mov_b32 {s(S_K2)}, {f2u(k2):#x}")
        A(f"s_mov_b32 {s(S_K2+1)}, {f2u(k2):#x}")
        A(f"v_mov_b32 {v(V_K1)}, {f2u(k1):#x}")
        A(f"v_mov_b32 {v(V_ONES)}, 0x3f803f80")
        A(f"v_add_u32 {v(V_RED)}, {s(S_L8)}, {v(V_L16)}")
        ONES4 = SCOL + 8
        for r in range(4):
            A(f"v_mov_b32 {v(ONES4+r)}, 0x3f803f80")
        A(f"s_getreg_b32 {s(S_XCC)}, hwreg(HW_REG_XCC_ID)")
        A(f"s_and_b32 {s(S_XCC)}, {s(S_XCC)}, 15")
        self.stamp("proend")

        A.c("S1: row statistics")
        if o.get("early_w1", 1):
            A.wait_vm("x3")
            w1stage(1)
            A.wait_vm("x")
            w1stage(2)
            self.barrier()
            self.stamp("xland")
        else:
            A.wait_vm("x")
            self.barrier()
            self.stamp("xland")
            w1stage(1)
            w1stage(2)
        if o.get("t_c3", 0) == 2:
            A(f"s_lshl_b32 {s(S_T0)}, {s(S_J)}, 2")
            A(f"s_add_u32 {s(S_T0)}, {s(S_T0)}, {s(S_W)}")
            A(f"s_lshl_b32 {s(S_T0)}, {s(S_T0)}, 12")
            A(f"s_add_u32 {s(S_T0)}, {s(S_T0)}, 384")
            A(f"v_cmp_gt_u32 vcc, 4, {v(V_L)}")
            A(f"v_lshl_add_u32 {v(TF)}, {v(V_L)}, 10, {s(S_T0)}")
            A(f"v_mov_b32 {v(TH)}, {OOB:#x}")
            A(f"v_cndmask_b32 {v(TF)}, {v(TH)}, {v(TF)}, vcc")
            self.touch(TF, SRD_W2)
        w2items = self.w2_items()
        n_in = o["w2_s1"]
        assert n_in <= 16
        self.bgq = w2items[:n_in]
        fr = []
        for Tt in range(2):
            for ln in range(2):
                for e in range(2):
                    r = BF + 4 * len(fr)
                    A.lds(f"ds_read_b128 {v(r,4)}, {v(XS0+e)} offset:{Tt*16384+ln*1024}", f"xs{len(fr)}")
                    fr.append((Tt, r))
        for r in (SUM, SQ, P0, P1):
            A(f"v_mov_b32 {v(r)}, 0")
        XP = o.get("xpre", 1)

        def xpre(st):
            if st % 4 == 0 and st:
                p = st // 4
                A(f"v_xor_b32 {v(XB0)}, {(p ^ (p-1))*2048}, {v(XB0)}")
                A(f"v_xor_b32 {v(XB1)}, {(p ^ (p-1))*2048}, {v(XB1)}")
            xb = XB0 + (st & 1)
            A.lds(f"ds_read_b128 {v(WF+8*st,4)}, {v(xb)} offset:{((st>>1)&1)*1024}", "xp")
            A.lds(f"ds_read_b128 {v(WF+8*st+4,4)}, {v(xb)} offset:{((st>>1)&1)*1024+16384}", "xp")
        for i, (Tt, r) in enumerate(fr):
            A.wait_lg(f"xs{i}")
            sm, sq = (SUM, SQ) if Tt == 0 else (P0, P1)
            for d in range(4):
                A(f"v_dot2_f32_bf16 {v(sm)}, {v(r+d)}, {v(V_ONES)}, {v(sm)}")
                A(f"v_dot2_f32_bf16 {v(sq)}, {v(r+d)}, {v(r+d)}, {v(sq)}")
            if i == o.get("s3_at", 3):
                w1stage(3)
            if XP:
                xpre(2 * i)
                xpre(2 * i + 1)
        A(f"s_lshl_b32 {s(S_T0)}, {s(S_W)}, 8")
        A(f"s_add_u32 {s(S_T0)}, {s(S_T0)}, {PART}")
        A(f"v_lshl_add_u32 {v(BF)}, {v(V_I)}, 3, {s(S_T0)}")
        self.lane_sum([SUM, SQ, P0, P1], [TE, TF, TG, TH], True, True)
        A.lds(f"ds_write_b64 {v(BF)}, {v(SUM,2)}")
        A.lds(f"ds_write_b64 {v(BF)}, {v(P0,2)} offset:128")
        A(f"v_lshlrev_b32 {v(TE)}, 3, {v(V_I)}")
        A(f"v_add_u32 {v(TE)}, {PART}, {v(TE)}")
        self.stamp("xstat")
        if o["t_ex"] and not o.get("early_touch", 0):
            self.touch(VT, SRD_WS)
        if o["t_g"] == 5:
            A(f"v_sub_u32 {v(TF)}, {v(V_GS)}, {v(V_L16)}")
            A(f"v_mul_u32_u24 {v(TG)}, {GBATCH}, {v(V_Q)}")
            A(f"v_lshl_add_u32 {v(TG)}, {v(V_I)}, 7, {v(TG)}")
            A(f"v_add_u32 {v(TF)}, {v(TF)}, {v(TG)}")
            A(f"v_cmp_gt_u32 vcc, 32, {v(V_L)}")
            A(f"s_lshl_b32 {s(S_T0)}, {s(S_IDLE)}, 31")
            A(f"v_add_u32 {v(TF)}, {s(S_T0)}, {v(TF)}")
            A(f"v_mov_b32 {v(TG)}, {OOB:#x}")
            A(f"v_cndmask_b32 {v(TF)}, {v(TG)}, {v(TF)}, vcc")
            self.touch(TF, SRD_WS)
        if o.get("t_w3", 0):
            A(f"s_mul_i32 {s(S_T0)}, {s(S_GW)}, {14*128}")
            A(f"v_cmp_gt_u32 vcc, 14, {v(V_L)}")
            A(f"v_lshl_add_u32 {v(TF)}, {v(V_L)}, 7, {s(S_T0)}")
            A(f"v_mov_b32 {v(TG)}, {OOB:#x}")
            A(f"v_cndmask_b32 {v(TF)}, {v(TG)}, {v(TF)}, vcc")
            self.touch(TF, SRD_W3)

        A.c("S1: GEMM")
        AR, BR_ = 44, BF
        ACC0, ACC1, ACCS = ACC, ACC + 4, ACC + 8

        D1 = o.get("d1", 5) if XP else 2
        NR = 6 if XP else 3
        if XP:
            AR = BF

        def s1_reads(st):
            if st % 4 == 0 and st and not XP:
                p = st // 4
                A(f"v_xor_b32 {v(XB0)}, {(p ^ (p-1))*2048}, {v(XB0)}")
                A(f"v_xor_b32 {v(XB1)}, {(p ^ (p-1))*2048}, {v(XB1)}")
            ar = AR + 4 * (st % NR)
            br = BR_ + 8 * (st % 3)
            A.lds(f"ds_read_b64_tr_b16 {v(ar,2)}, {v(S1A)} offset:{st*4096}", f"k{st}")
            A.lds(f"ds_read_b64_tr_b16 {v(ar+2,2)}, {v(S1A)} offset:{st*4096+512}", f"k{st}")
            if XP:
                return
            xb = XB0 + (st & 1)
            A.lds(f"ds_read_b128 {v(br,4)}, {v(xb)} offset:{((st>>1)&1)*1024}", f"k{st}")
            A.lds(f"ds_read_b128 {v(br+4,4)}, {v(xb)} offset:{((st>>1)&1)*1024+16384}", f"k{st}")

        def s1_mfma(st):
            ar = AR + 4 * (st % NR)
            br = (WF + 8 * st) if XP else (BR_ + 8 * (st % 3))
            c = lambda r: "0" if st == 0 else v(r, 4)
            A(f"v_mfma_f32_16x16x32_bf16 {v(ACC0,4)}, {v(ar,4)}, {v(br,4)}, {c(ACC0)}")
            A(f"v_mfma_f32_16x16x32_bf16 {v(ACC1,4)}, {v(ar,4)}, {v(br+4,4)}, {c(ACC1)}")
            A(f"v_mfma_f32_16x16x32_bf16 {v(ACCS,4)}, {v(ar,4)}, {v(ONES4,4)}, {c(ACCS)}")
        nst = o.get("s1_stages", 2)
        per = 16 // nst
        A.wait_vm("epoch")
        A(f"v_readfirstlane_b32 {s(S_TAG)}, {v(V_TAG)}")
        A("s_nop 3")
        A(f"s_add_u32 {s(S_TAG)}, {s(S_TAG)}, 1")
        A(f"s_mov_b32 {s(S_TAG+1)}, {s(S_TAG)}")
        A(f"v_mov_b32 {v(V_TAG)}, {s(S_TAG)}")
        if self.force is None:
            A(f"s_lshl_b32 {s(S_T1)}, {s(S_U)}, 3")
            A(f"s_add_u32 {s(S_T0)}, {s(S_HSP)}, {s(S_T1)}")
            self.wave0_addr(TF, S_T0)
            A(f"v_mov_b32 {v(TG)}, {s(S_TAG)}")
            A(f"v_mov_b32 {v(TH)}, {s(S_XCC)}")
            A.vmem(f"buffer_store_dwordx2 {v(TG,2)}, {v(TF)}, {s(SRD_WS,4)}, 0 offen sc1", "hs")
        self.bg(o["w2_pre"])
        for p in range(nst):
            A.wait_vm(f"w1_{(p+1)*(4//nst)-1}")
            A.wait_lg()
            self.barrier()
            self.stamp(f"st{p}")
            if p == 0:
                for src in range(4):
                    A.lds(f"ds_read_b64 {v(56+2*src,2)}, {v(TE)} offset:{src*256}", "pt")
                    A.lds(f"ds_read_b64 {v(104+2*src,2)}, {v(TE)} offset:{src*256+128}", "pt")
            for k_ in range(D1):
                s1_reads(per * p + k_)
            if p == 0:
                A.wait_lg("pt")
                if n_in == 16:
                    self.barrier()
                for src in range(1, 4):
                    A(f"v_pk_add_f32 {v(56,2)}, {v(56,2)}, {v(56+2*src,2)}")
                    A(f"v_pk_add_f32 {v(104,2)}, {v(104,2)}, {v(104+2*src,2)}")
                self.ln_scalars(56, 57, V_R0, V_Q0, TF)
                self.ln_scalars(104, 105, V_R1, V_Q1, TF)
            for st in range(per * p, per * p + per):
                A.wait_lg(f"k{st}")
                s1_mfma(st)
                if st + D1 < per * p + per:
                    s1_reads(st + D1)
                self.bg(1)
        self.bg_flush()
        if o["c_f1"]:
            self.barrier()
        self.stamp("s1loop")
        A(f"s_add_u32 {s(S_T0)}, {s(S_FLO)}, {FL1G if self.force is False else FL1}")
        A(f"v_mov_b32 {v(V_FS1)}, {s(S_T0)}")
        A(f"s_add_u32 {s(S_T0)}, {s(S_FLO)}, {FL2}")
        A(f"v_mov_b32 {v(V_FS2)}, {s(S_T0)}")
        A(f"s_lshl_b32 {s(S_T0)}, {s(S_PG)}, 8")
        A(f"s_lshl_b32 {s(S_T1)}, {s(S_SL)}, 4")
        A(f"s_add_u32 {s(S_T0)}, {s(S_T0)}, {s(S_T1)}")
        A(f"s_lshl_b32 {s(S_T1)}, {s(S_W)}, 2")
        A(f"s_add_u32 {s(S_T0)}, {s(S_T0)}, {s(S_T1)}")
        A(f"s_add_u32 {s(S_T0)}, {s(S_T0)}, {FL3}")
        A(f"v_mov_b32 {v(V_FS3)}, {s(S_T0)}")
        for Tt, (ac, vr) in enumerate(((ACC0, V_R0), (ACC1, V_R1))):
            for p in range(2):
                A(f"v_pk_mul_f32 {v(ac+2*p,2)}, {v(ac+2*p,2)}, {v(vr,2)} op_sel_hi:[1,0]")
        for Tt, (ac, vr) in enumerate(((ACC0, V_R0), (ACC1, V_R1))):
            for p in range(2):
                A(f"v_pk_fma_f32 {v(ac+2*p,2)}, {v(ACCS+2*p,2)}, {v(vr,2)}, {v(ac+2*p,2)} op_sel:[0,1,0] op_sel_hi:[1,1,1]")
        HP = 60
        for t in self.gelu_a(ACC, 4, BF) + self.gelu_b(ACC, 4, HP, BF, True):
            A(t)
        g1 = " sc1" if self.force is False else ""
        A.vmem(f"buffer_store_dwordx2 {v(HP,2)}, {v(V_FO)}, {s(SRD_WS,4)}, 0 offen{g1}", "hst")
        A.vmem(f"buffer_store_dwordx2 {v(HP+2,2)}, {v(V_FO)}, {s(SRD_WS,4)}, 0 offen offset:256{g1}", "hst")
        self.stamp("s1epi")
        A(f"s_lshl_b32 {s(S_T0)}, {s(S_B)}, 7")
        A(f"s_lshl_b32 {s(S_T2)}, {s(S_W)}, 5")
        A(f"s_add_u32 {s(S_T0)}, {s(S_T0)}, {s(S_T2)}")
        A(f"s_add_u32 {s(S_T0)}, {s(S_T0)}, {FL1G if self.force is False else FL1}")
        A(f"v_and_b32 {v(TE)}, 7, {v(V_L)}")
        A(f"v_lshl_add_u32 {v(TE)}, {v(TE)}, 2, {s(S_T0)}")
        A.wait_vm("hst")
        A.vmem(f"buffer_store_dword {v(V_TAG)}, {v(V_FS1)}, {s(SRD_WS,4)}, 0 offen{g1}")
        self.stamp("flag1")
        for it in w2items[n_in:]:
            it()

        A.c("park w2")
        w3all = self.w3_items()
        self.bgq = list(w3all)
        self.bg(o["c_f1"])
        A(f"s_lshr_b32 {s(S_T0)}, {s(S_FRAG)}, 2")
        A(f"s_add_u32 {s(S_T0)}, {s(S_T0)}, {STB}")
        A(f"v_lshl_add_u32 {v(V_ST)}, {v(V_I)}, 3, {s(S_T0)}")
        A.wait_vm("w2")
        self.barrier()
        self.stamp("b2")
        w2f = lambda st, f: (lambda o_, n: v(WF + 64 + 4 * st + o_, n))
        trs = self.tr_items(w2f, [S2A], 16, 4096, 1024, 1, "w2f")

        def park_w2():
            self.bg(o["c_e"])
            for it in trs:
                it()
            A.wait_lg()
            if o["c_f1"] + o["c_e"] + o["c_h"] > 16:
                self.barrier()

        A.c("S2")
        if self.force is None:
            self.poll1(HP, park_w2)
        else:
            self.poll(TE, TG, park_w2)
        self.stamp("poll1")
        self.lin_dma(V_HSH, 8, S_L8, R0, S_HSRC, HB, "h")
        if o["t_g"] == 2 and not o["g_sc1"]:
            A(f"v_sub_u32 {v(TF)}, {v(V_GS)}, {v(V_L16)}")
            A(f"v_mul_u32_u24 {v(TG)}, {GBATCH}, {v(V_Q)}")
            A(f"v_lshl_add_u32 {v(TG)}, {v(V_I)}, 7, {v(TG)}")
            A(f"v_add_u32 {v(TF)}, {v(TF)}, {v(TG)}")
            A(f"v_cmp_gt_u32 vcc, 32, {v(V_L)}")
            A(f"s_lshl_b32 {s(S_T0)}, {s(S_IDLE)}, 31")
            A(f"v_add_u32 {v(TF)}, {s(S_T0)}, {v(TF)}")
            A(f"v_mov_b32 {v(TG)}, {OOB:#x}")
            A(f"v_cndmask_b32 {v(TF)}, {v(TG)}, {v(TF)}, vcc")
            self.touch(TF, SRD_WS)
        self.bg(o["c_h"])
        for p in range(4):
            A(f"v_lshlrev_b32 {v(56+2*p)}, 16, {v(XRES+p)}")
            A(f"v_and_b32 {v(56+2*p+1)}, 0xffff0000, {v(XRES+p)}")
        for r in (SUM, SQ, P0, P1):
            A(f"v_mov_b32 {v(r)}, 0")
        A(f"v_add_u32 {v(TE)}, {X1B}, {v(V_FO)}")
        A.wait_vm("h")
        self.barrier()
        self.stamp("hland")

        def s2_read(i):
            st, Tt = i >> 1, i & 1
            A.lds(f"ds_read_b128 {v(BF+4*(i%8),4)}, {v(HBK+(st&3))} offset:{R0+(st>>2)*8192+Tt*256}", f"hb{i}")
        D2 = o.get("d2", 7)
        for i in range(D2):
            s2_read(i)
        nb = o["c_s2"]
        done = 0
        for i in range(32):
            st, Tt = i >> 1, i & 1
            if i % 2 == 0:
                A.wait_lg(f"hb{i+1}")
            ac = ACC0 if Tt == 0 else ACC1
            c0 = "0" if st == 0 else v(ac, 4)
            A(f"v_mfma_f32_16x16x32_bf16 {v(ac,4)}, {v(WF+64+4*st,4)}, {v(BF+4*(i%8),4)}, {c0}")
            if i + D2 < 32:
                s2_read(i + D2)
            want = (i + 1) * nb // 32
            self.bg(want - done)
            done = want
        self.stamp("s2mfma")
        A.nop(8)
        for p in range(4):
            A(f"v_pk_add_f32 {v(ACC+2*p,2)}, {v(ACC+2*p,2)}, {v(56+2*p,2)}")
        for p in range(4):
            A(f"v_cvt_pk_bf16_f32 {v(X1P+p)}, {v(ACC+2*p)}, {v(ACC+2*p+1)}")
        self.publish([f"buffer_store_dwordx2 {v(X1P,2)}, {v(TE)}, {s(SRD_WS,4)}, 0 offen{{F}}",
                      f"buffer_store_dwordx2 {v(X1P+2,2)}, {v(TE)}, {s(SRD_WS,4)}, 0 offen offset:256{{F}}"], tag="x1st")
        for d in range(2):
            A(f"v_dot2_f32_bf16 {v(SUM)}, {v(X1P+d)}, {v(V_ONES)}, {v(SUM)}")
            A(f"v_dot2_f32_bf16 {v(SQ)}, {v(X1P+d)}, {v(X1P+d)}, {v(SQ)}")
            A(f"v_dot2_f32_bf16 {v(P0)}, {v(X1P+2+d)}, {v(V_ONES)}, {v(P0)}")
            A(f"v_dot2_f32_bf16 {v(P1)}, {v(X1P+2+d)}, {v(X1P+2+d)}, {v(P1)}")
        A.nop(3)
        self.lane_sum([SUM, SQ, P0, P1], [56, 57, 58, 59], True, True)
        self.publish([f"buffer_store_dwordx2 {v(SUM,2)}, {v(V_ST)}, {s(SRD_WS,4)}, 0 offen{{F}}",
                      f"buffer_store_dwordx2 {v(P0,2)}, {v(V_ST)}, {s(SRD_WS,4)}, 0 offen offset:128{{F}}"], tag="x1st")
        self.stamp("s2epi")
        A.wait_vm("x1st")
        self.publish([f"buffer_store_dword {v(V_TAG)}, {v(V_FS2)}, {s(SRD_WS,4)}, 0 offen{{F}}"])
        self.barrier()
        assert o["c_f1"] + o["c_e"] + o["c_h"] + o["c_s2"] >= 8
        self.stamp("flag2")

        A.c("w3 rest")
        A(f"s_cmp_eq_u32 {s(S_IDLE)}, 1")
        A("s_cbranch_scc1 L_idle")
        self.idle_vm = list(A.vm)

        def park_chunk(c):
            A(f"v_add_u32 {v(TF)}, {R1 + c*32768}, {v(V_TR3)}")
            w3f = lambda st, f, c=c: (lambda o_, n: v(WF + 4 * (8 * c + st) + o_, n))
            its = self.tr_items(w3f, [TF], 8, 4096, 2048, 1, f"w3f{c}")
            for it in its:
                it()

        def colsum(c, nbg=0):
            k = 0
            for st in range(8 * c, 8 * c + 8):
                for d in range(4):
                    r = (SUM, SQ, P0, P1)[d]
                    A(f"v_dot2_f32_bf16 {v(r)}, {v(WF+4*st+d)}, {v(V_ONES)}, {v(r)}")
                if k < nbg:
                    self.bg(1)
                    k += 1
        NH = 7
        slot_of = "ABACBAC"

        def w4dma(hh):
            lds_s, lds_c = {"A": (S_L8, R2), "B": (S_L16, R3), "C": (S_L16, R3 + 8192)}[slot_of[hh]]

            def last():
                A(f"s_mov_b32 {s(S_OFF)}, 32768")
                A(f"s_cmp_eq_u32 {s(S_R4)}, {6-hh}")
                A(f"s_cselect_b32 {s(S_OFF)}, {(32768 - 7*65536) & 0xffffffff}, {s(S_OFF)}")
                A(f"v_add_u32 {v(V_WD)}, {s(S_OFF)}, {v(V_WD)}")
            return self.wdma_items(SRD_W4, [V_WD], 8, lds_s, lds_c, S_C, 32768, f"w4d{hh}", last=last)

        def w4park(hh):
            bases, off0 = {"A": ([V_A2, V_A3], 0), "B": ([V_A0, V_A1], 0), "C": ([V_A0, V_A1], 8192)}[slot_of[hh]]
            w4f = lambda st, f, hh=hh: (lambda o_, n: a(8 * (4 * hh + st) + 4 * f + o_, n))
            its = self.tr_items(w4f, bases, 4, 2048, 1024, 2, f"w4f{hh}", off0=off0)
            first = its[0]
            its[0] = lambda: (A.wait_vm(f"w4d{hh}"), first())
            return its

        def after_park(hh, items):
            first = items[0]
            items[0] = lambda: (A.wait_lg(f"w4f{hh}"), first())
            return items

        A(f"s_lshl_b32 {s(S_T0)}, {s(S_B0)}, 7")
        A(f"s_add_u32 {s(S_T0)}, {s(S_T0)}, {FL2}")
        A(f"v_lshl_add_u32 {v(TE)}, {v(V_L)}, 2, {s(S_T0)}")
        assert o["c_f1"] + o["c_e"] + o["c_h"] + o["c_s2"] >= 16
        self.bg(o["c_p2"])
        park_chunk(0)
        park_chunk(1)
        AX = SCOL
        VB = SCOL + 4
        VBO = SCOL + 10
        V_SA = SCOL + 8
        V_LW = SCOL + 9
        for c in range(4):
            A(f"s_add_u32 {s(S_T0)}, {s(S_R2)}, {c}")
            A(f"s_and_b32 {s(S_T0)}, {s(S_T0)}, 3")
            A(f"s_lshl_b32 {s(S_T0)}, {s(S_T0)}, 13")
            A(f"s_lshl_b32 {s(S_T1)}, {s(S_X2)}, 10")
            A(f"s_add_u32 {s(S_T2)}, {s(S_T0)}, {s(S_T1)}")
            A(f"v_add_u32 {v(VB+c)}, {s(S_T2)}, {v(V_L16)}")
            A(f"s_add_u32 {s(S_T0)}, {s(S_T0)}, 1024")
            A(f"s_sub_u32 {s(S_T2)}, {s(S_T0)}, {s(S_T1)}")
            A(f"v_add_u32 {v(VBO+c)}, {s(S_T2)}, {v(V_L16)}")
        A(f"s_add_u32 {s(S_T0)}, {s(S_L16)}, {R3 - R2}")
        A(f"s_sub_u32 {s(S_T0)}, {s(S_L8)}, {s(S_T0)}")
        A(f"v_add_u32 {v(V_A2)}, {s(S_T0)}, {v(V_A0)}")
        A(f"v_xor_b32 {v(V_A3)}, 64, {v(V_A2)}")
        BX0, BX1 = XRES, X1P
        for r in range(1, 4):
            A(f"v_mov_b32 {v(BX0+r)}, 0")
            A(f"v_mov_b32 {v(BX1+r)}, 0")
            A(f"v_mov_b32 {v(AX+r)}, 0")
        A(f"s_lshr_b32 {s(S_T2)}, {s(S_W)}, 1")
        A(f"s_add_u32 {s(S_T3)}, {s(S_T2)}, {s(S_B0)}")
        A(f"s_lshl_b32 {s(S_T3)}, {s(S_T3)}, 13")
        A(f"s_add_u32 {s(S_T3)}, {s(S_T3)}, {STB}")
        A(f"s_lshl_b32 {s(S_T2)}, {s(S_T2)}, 8")
        A(f"s_add_u32 {s(S_T2)}, {s(S_T2)}, {LNST}")
        A(f"s_bitcmp1_b32 {s(S_W)}, 0")
        A(f"s_cselect_b32 {s(S_T3)}, {OOB}, {s(S_T3)}")
        A(f"s_cselect_b32 {s(S_T2)}, {LNDUMMY}, {s(S_T2)}")
        A(f"v_add_u32 {v(V_SA)}, {s(S_T3)}, {v(V_L16)}")
        A(f"v_lshl_add_u32 {v(V_LW)}, {v(V_I)}, 4, {s(S_T2)}")
        for r in (SUM, SQ, P0, P1):
            A(f"v_mov_b32 {v(r)}, 0")
        A.wait_lg()

        def pre2():
            colsum(0, o.get("c_cs", 6))
            colsum(1, o.get("c_cs", 6))
            self.bg_flush()
            self.barrier()
            self.stamp("prepoll2")

        A.c("S3")
        self.poll(TE, TG, pre2)
        self.stamp("poll2")
        self.lin_dma(V_L16, 8, S_L8, R0, S_X1SRC, X1B, "x1t0")
        for i in range(8):
            so = "0" if i < 4 else s(S_4096)
            off = f" offset:{(i%4)*1024}" if i % 4 else ""
            A.vmem(f"buffer_load_dwordx4 {v(BF+4*i,4)}, {v(V_SA)}, {s(SRD_WS,4)}, {so} offen{off} sc1", "st")
        A.wait_vm("c3")
        self.barrier()
        self.stamp("b4")
        park_chunk(2)
        self.lin_dma(V_L16, 8, S_L8, R1, S_X1SRC, X1B + 32768, "x1t1")
        A.wait_lg()
        park_chunk(3)
        d0 = w4dma(0)
        self.bgq = list(d0)
        colsum(2, o.get("d_cs2", 4))
        A.wait_lg()
        self.barrier()
        colsum(3, o.get("d_cs3", 4))
        self.bg_flush()
        self.stamp("colsum")
        A(f"s_lshl_b32 {s(S_T0)}, {s(S_PG)}, 7")
        A(f"s_add_u32 {s(S_T0)}, {s(S_T0)}, {EPO}")
        A(f"v_add_f32 {v(SUM)}, {v(SUM)}, {v(SQ)}")
        A(f"v_add_f32 {v(P0)}, {v(P0)}, {v(P1)}")
        A(f"s_or_b32 {s(S_T2)}, {s(S_U)}, {s(S_W)}")
        A(f"s_cmp_eq_u32 {s(S_T2)}, 0")
        A(f"v_add_f32 {v(SUM)}, {v(SUM)}, {v(P0)}")
        A(f"s_cselect_b32 {s(S_T0)}, {s(S_T0)}, {OOB}")
        A(f"v_mov_b32 {v(TG)}, {s(S_T0)}")
        self.lane_sum([SUM], [SQ], True, False)
        self.round_to(SUM, SQ, P0)
        A(f"v_sub_f32 {v(P0)}, {v(SUM)}, {v(P0)}")
        A(f"v_cvt_pk_bf16_f32 {v(AX)}, {v(SUM)}, {v(P0)}")
        A(f"v_cmp_gt_u32 vcc, 32, {v(V_L)}")
        A.wait_vm("st")
        for i in range(1, 8):
            A(f"v_pk_add_f32 {v(BF,2)}, {v(BF,2)}, {v(BF+4*i,2)}")
            A(f"v_pk_add_f32 {v(BF+2,2)}, {v(BF+2,2)}, {v(BF+4*i+2,2)}")
        A(f"v_cndmask_b32 {v(AX)}, {v(AX+1)}, {v(AX)}, vcc")
        self.lane_sum([BF, BF + 1, BF + 2, BF + 3], [BF + 4, BF + 5, BF + 6, BF + 7], True, True)
        self.ln_scalars(BF, BF + 1, BF + 8, BF + 9, BF + 12, mpair=True)
        self.ln_scalars(BF + 2, BF + 3, BF + 10, BF + 11, BF + 12, mpair=True)
        A.lds(f"ds_write_b128 {v(V_LW)}, {v(BF+8,4)}")
        A.vmem(f"buffer_store_dword {v(V_TAG)}, {v(TG)}, {s(SRD_WS,4)}, 0 offen sc1")
        A(f"v_lshlrev_b32 {v(TE)}, 3, {v(V_J)}")
        A(f"v_add_u32 {v(TE)}, {LNST}, {v(TE)}")
        q = w4dma(1)
        q += w4park(0) + after_park(0, w4dma(2))
        n_t0 = len(q)
        if o["qord"] == 0:
            q += w4park(1) + w4dma(3) + after_park(1, w4dma(4)) + w4park(2) + after_park(2, w4dma(5))
            q += w4park(3) + after_park(3, w4dma(6)) + w4park(4) + w4park(5) + w4park(6)
        else:
            q += w4dma(3) + w4park(1) + after_park(1, w4dma(4)) + w4park(2) + after_park(2, w4dma(5))
            q += w4park(3) + after_park(3, w4dma(6)) + w4park(4) + w4park(5) + w4park(6)
        self.bgq = q
        n_pre = o.get("bg_pre", 4)
        self.bg(n_pre)
        assert n_pre + o["bg_t0"] <= n_t0
        def g_touch():
            A(f"v_sub_u32 {v(TF)}, {v(V_GS)}, {v(V_L16)}")
            A(f"v_mul_u32_u24 {v(TG)}, {GBATCH}, {v(V_Q)}")
            A(f"v_lshl_add_u32 {v(TG)}, {v(V_I)}, 7, {v(TG)}")
            A(f"v_add_u32 {v(TF)}, {v(TF)}, {v(TG)}")
            A(f"v_cmp_gt_u32 vcc, 32, {v(V_L)}")
            A(f"v_mov_b32 {v(TG)}, {OOB:#x}")
            A("s_nop 0")
            A(f"v_cndmask_b32 {v(TF)}, {v(TG)}, {v(TF)}, vcc")
            self.touch(TF, SRD_WS)
        if o["t_g"] == 3:
            g_touch()
        A.wait_vm("x1t0")
        A.wait_lg()
        self.barrier()
        self.stamp("b5")
        A.lds(f"ds_read_b32 {v(V_R0)}, {v(TE)}", "ln")
        A.lds(f"ds_read_b32 {v(BX0)}, {v(TE)} offset:4", "ln")
        A.lds(f"ds_read_b32 {v(V_R1)}, {v(TE)} offset:256", "ln")
        A.lds(f"ds_read_b32 {v(BX1)}, {v(TE)} offset:260", "ln")
        NB = o.get("d3", 6)
        BR = 224

        def tile_loop(t, base_off, bx, extra_ops, nbg):
            acc = ACC + 16 * t
            for st in range(NB):
                A.lds(f"ds_read_b128 {a(BR+4*(st%8),4)}, {v((VBO if st & 1 else VB)+st//8)} offset:{base_off+(st%8 & ~1)*1024}", f"b{st}")
            A.wait_lg("ln")
            A(f"v_mfma_f32_32x32x16_bf16 {v(acc,16)}, {v(AX,4)}, {v(bx,4)}, 0")
            done_bg = 0
            for st in range(32):
                if st % 2 == 0:
                    A.wait_lg(f"b{st+1}")
                A(f"v_mfma_f32_32x32x16_bf16 {v(acc,16)}, {v(WF+4*st,4)}, {a(BR+4*(st%8),4)}, {v(acc,16)}")
                if st + NB < 32:
                    n = st + NB
                    A.lds(f"ds_read_b128 {a(BR+4*(n%8),4)}, {v((VBO if n & 1 else VB)+n//8)} offset:{base_off+(n%8 & ~1)*1024}", f"b{n}")
                if extra_ops:
                    k = -(-len(extra_ops) // (32 - st))
                    for _ in range(k):
                        if extra_ops:
                            op = extra_ops.pop(0)
                            op() if callable(op) else A(op)
                want = (st + 1) * nbg // 32
                self.bg(want - done_bg)
                done_bg = want
        tile_loop(0, R0, BX0, [], o["bg_t0"])
        self.stamp("t0")
        if o["t_g"] == 4:
            g_touch()
        A.wait_vm("x1t1")
        self.barrier()
        E0, GT = BF + 16, BF
        A.nop(10)
        for p in range(8):
            A(f"v_pk_mul_f32 {v(ACC+2*p,2)}, {v(ACC+2*p,2)}, {v(V_R0,2)} op_sel_hi:[1,0]")
        ga = self.gelu_a(ACC, 8, GT)
        for i, t in enumerate(ga):
            A(t)
            if i in (7, 15)[:o["bg_a"]]:
                self.bg(1)
        ops0 = self.gelu_b(ACC, 8, E0, GT, False)
        g0 = lambda: self.publish([
            f"buffer_store_dwordx4 {v(E0,4)}, {v(V_GS)}, {s(SRD_WS,4)}, 0 offen{{F}}",
            f"buffer_store_dwordx4 {v(E0+4,4)}, {v(V_GS)}, {s(SRD_WS,4)}, 0 offen offset:1024{{F}}"], sc1=o["g_sc1"], tag="gst")
        if not o.get("g0_late", 0):
            ops0.append(g0)
        tile_loop(1, R1, BX1, ops0, o["bg_t1"])
        self.stamp("t1")
        A(f"s_mov_b32 {s(S_T0)}, {GBATCH}")
        A.nop(11)
        E1 = BF + 24
        for p in range(8):
            A(f"v_pk_mul_f32 {v(ACC+16+2*p,2)}, {v(ACC+16+2*p,2)}, {v(V_R1,2)} op_sel_hi:[1,0]")
        e1 = self.gelu_a(ACC + 16, 8, GT) + self.gelu_b(ACC + 16, 8, E1, GT, True)
        nb = o["bg_e1"]
        for i, t in enumerate(e1):
            A(t)
            if nb and i % o.get("e1_step", 8) == o.get("e1_step", 8) - 1 and i < o.get("e1_step", 8) * nb:
                self.bg(1)
        if o.get("g0_late", 0):
            g0()
        self.publish([
            f"buffer_store_dwordx4 {v(E1,4)}, {v(V_GS)}, {s(SRD_WS,4)}, {s(S_T0)} offen{{F}}",
            f"buffer_store_dwordx4 {v(E1+4,4)}, {v(V_GS)}, {s(SRD_WS,4)}, {s(S_T0)} offen offset:1024{{F}}"], sc1=o["g_sc1"], tag="gst")
        self.stamp("epi1")
        A(f"s_add_u32 {s(S_T0)}, {s(S_FRAG)}, {X1B}")
        A(f"v_add_u32 {v(TE)}, {s(S_T0)}, {v(V_L16)}")
        A.vmem(f"buffer_load_dwordx4 {v(X1P,4)}, {v(TE)}, {s(SRD_WS,4)}, 0 offen sc1", "res")
        A.wait_vm("gst")
        self.publish([f"buffer_store_dword {v(V_TAG)}, {v(V_FS3)}, {s(SRD_WS,4)}, 0 offen{{F}}"], sc1=o["g_sc1"])
        self.stamp("flag3")

        A.c("w4 rest")
        self.bg_flush()
        A("L_join:")
        A(f"s_mul_i32 {s(S_T0)}, {s(S_B)}, {GBATCH}")
        A(f"s_mul_i32 {s(S_T2)}, {s(S_W)}, {28*1024}")
        A(f"s_add_u32 {s(S_T0)}, {s(S_T0)}, {s(S_T2)}")
        A(f"s_add_u32 {s(S_T0)}, {s(S_T0)}, {GB}")
        A(f"v_add_u32 {v(TF)}, {s(S_T0)}, {v(V_L16)}")
        A.wait_vm("res")
        for p in range(4):
            A(f"v_lshlrev_b32 {v(SCOL+2*p)}, 16, {v(X1P+p)}")
            A(f"v_and_b32 {v(SCOL+2*p+1)}, 0xffff0000, {v(X1P+p)}")
        A.wait_lg()
        self.stamp("w4done")

        if o.get("wb", 0) == 1:
            Lw = A.label("L_nowb")
            A(f"s_lshl_b32 {s(S_T0)}, {s(S_J)}, 2")
            A(f"s_add_u32 {s(S_T0)}, {s(S_T0)}, {s(S_W)}")
            A(f"s_cmp_lg_u32 {s(S_T0)}, 12")
            A(f"s_cbranch_scc1 {Lw}")
            A("buffer_wbl2 sc1")
            A(f"{Lw}:")
        A.c("S4")
        A(f"s_lshl_b32 {s(S_T0)}, {s(S_PG)}, 8")
        A(f"s_mul_i32 {s(S_T2)}, {s(S_W)}, 56")
        A(f"s_add_u32 {s(S_T0)}, {s(S_T0)}, {s(S_T2)}")
        A(f"s_add_u32 {s(S_T0)}, {s(S_T0)}, {FL3}")
        A(f"v_min_u32 {v(TE)}, 13, {v(V_L)}")
        A(f"v_lshl_add_u32 {v(TE)}, {v(TE)}, 2, {s(S_T0)}")
        self.poll(TE, TG)
        self.stamp("poll3")
        def gload(i):
            if i == 0:
                A(f"s_lshl_b32 {s(S_OFF)}, {s(S_R4)}, 12")
            elif i % 4 == 0:
                A(f"s_add_u32 {s(S_OFF)}, {s(S_OFF)}, 4096")
                A(f"s_cmp_eq_u32 {s(S_OFF)}, 28672")
                A(f"s_cselect_b32 {s(S_OFF)}, 0, {s(S_OFF)}")
            off = f" offset:{(i%4)*1024}" if i % 4 else ""
            A.vmem(f"buffer_load_dwordx4 {v(WF+4*i,4)}, {v(TF)}, {s(SRD_WS,4)}, {s(S_OFF)} offen{off} sc1", f"g{i}")
        NG = o.get("g_ahead", 10)
        for i in range(NG):
            gload(i)
        VR = V_T
        for k in (1, 2, 3):
            A(f"v_xor_b32 {v(VR+k-1)}, {k*8192}, {v(V_RED)}")
        for st in range(28):
            A.wait_vm(f"g{st}")
            c0 = "0" if st == 0 else v(ACC, 16)
            c1 = "0" if st == 0 else v(ACC + 16, 16)
            A(f"v_mfma_f32_32x32x16_bf16 {v(ACC,16)}, {a(8*st,4)}, {v(WF+4*st,4)}, {c0}")
            if st + NG < 28:
                gload(st + NG)
            A(f"v_mfma_f32_32x32x16_bf16 {v(ACC+16,16)}, {a(8*st+4,4)}, {v(WF+4*st,4)}, {c1}")
        self.stamp("s4mfma")
        A.nop(12)
        for k in (1, 2, 3):
            A.lds(f"ds_write_b128 {v(V_RED)}, {v(ACC+8*k,4)} offset:{k*2048}")
            A.lds(f"ds_write_b128 {v(V_RED)}, {v(ACC+8*k+4,4)} offset:{k*2048+1024}")
        A.wait_lg()
        self.barrier()
        self.stamp("s4bar")
        for k in (1, 2, 3):
            A.lds(f"ds_read_b128 {v(BF+8*(k-1),4)}, {v(VR+k-1)} offset:{k*2048}", f"red{k}")
            A.lds(f"ds_read_b128 {v(BF+8*(k-1)+4,4)}, {v(VR+k-1)} offset:{k*2048+1024}", f"red{k}")
        for p in range(4):
            A(f"v_pk_add_f32 {v(ACC+2*p,2)}, {v(ACC+2*p,2)}, {v(SCOL+2*p,2)}")
        for k in (1, 2, 3):
            A.wait_lg(f"red{k}")
            for p in range(4):
                A(f"v_pk_add_f32 {v(ACC+2*p,2)}, {v(ACC+2*p,2)}, {v(BF+8*(k-1)+2*p,2)}")
        for p in range(4):
            A(f"v_cvt_pk_bf16_f32 {v(BF+24+p)}, {v(ACC+2*p)}, {v(ACC+2*p+1)}")
        of = {0: "", 1: " sc1", 2: " nt", 3: " sc0 sc1"}[o.get("out_fl", 0)]
        A.vmem(f"buffer_store_dwordx2 {v(BF+24,2)}, {v(V_RO)}, {s(SRD_O,4)}, 0 offen{of}")
        A.vmem(f"buffer_store_dwordx2 {v(BF+26,2)}, {v(V_RO)}, {s(SRD_O,4)}, 0 offen offset:16{of}")
        self.stamp("end")
        A("L_tail:")
        if self.profile and o.get("dbg", 0):
            A("s_waitcnt lgkmcnt(0)")
            A("s_load_dwordx2 s[28:29], s[0:1], 48")
            A("s_waitcnt lgkmcnt(0)")
            A("s_mov_b32 s30, 256")
            A("s_mov_b32 s31, 0x20000")
            A(f"v_cmp_eq_u32 vcc, 0, {v(V_L)}")
            A(f"v_mov_b32 {v(V_T+2)}, {OOB:#x}")
            for i in range(self.nstamp):
                A(f"v_mov_b32 {v(V_T)}, {8*i}")
                A(f"v_cndmask_b32 {v(V_T)}, {v(V_T+2)}, {v(V_T)}, vcc")
                A(f"v_mov_b32 {v(V_T+1)}, {s(S_STAMP+2*i)}")
                A(f"buffer_atomic_umax {v(V_T+1)}, {v(V_T)}, s[28:31], 0 offen")
                A(f"v_not_b32 {v(V_T+3)}, {v(V_T+1)}")
                A(f"buffer_atomic_umax {v(V_T+3)}, {v(V_T)}, s[28:31], 0 offen offset:4")
        elif self.profile:
            A("s_memtime s[28:29]")
            A("s_waitcnt lgkmcnt(0)")
            A("s_sub_u32 s28, s28, s84")
            A(f"s_lshl_b32 {s(S_T0)}, s2, 2")
            A(f"s_add_u32 {s(S_T0)}, {s(S_T0)}, {s(S_W)}")
            A(f"s_lshl_b32 {s(S_T0)}, {s(S_T0)}, 7")
            A(f"s_add_u32 {s(S_T0)}, {s(S_T0)}, {PROF}")
            A(f"v_mov_b32 {v(V_T)}, {s(S_T0)}")
            for i in range(self.nstamp):
                A(f"v_mov_b32 {v(V_T+1)}, {s(S_STAMP+2*i)}")
                A(f"buffer_store_dword {v(V_T+1)}, {v(V_T)}, {s(SRD_WS,4)}, 0 offen offset:{4*i}")
            A(f"v_mov_b32 {v(V_T+1)}, s28")
            A(f"buffer_store_dword {v(V_T+1)}, {v(V_T)}, {s(SRD_WS,4)}, 0 offen offset:{4*31}")
        A("L_end:")
        A("s_endpgm")
        self.idle_block()
        for b in self.slow_blocks:
            A(b)
        A("L_code_end:")
        A("s_endpgm")

    def w2_items(self):
        A = self.A
        items = []
        for i in range(16):
            def item(i=i):
                g, k = i // 4, i % 4
                want = (S_L16, R3 + 1024 * (i - (i & 1)))
                if self.m0 != want:
                    A(f"s_add_u32 m0, {s(S_L16)}, {want[1]}")
                    self.m0 = want
                    if i == 0 or (k & 1):
                        A("s_nop 0")
                if k == 2:
                    A(f"v_xor_b32 {v(V_W2D)}, 16384, {v(V_W2D)}")
                if k == 0 and g:
                    A(f"v_xor_b32 {v(V_W2D)}, {((g ^ (g-1)) * 32768) ^ 16384}, {v(V_W2D)}")
                so = s(S_C) if k & 1 else "0"
                off = " offset:1024" if k & 1 else ""
                A.vmem(f"buffer_load_dwordx4 {v(V_W2D)}, {s(SRD_W2,4)}, {so} offen{off} lds", "w2")
            items.append(item)
        return items

    def w3_items(self):
        A = self.A
        items = []
        for c in range(4):
            for i in range(8):
                def item(c=c, i=i):
                    k = i % 4
                    want = (S_L8, R1 + c * 32768 + 1024 * (i - k))
                    if k and self.m0 != want:
                        A(f"s_add_u32 m0, {s(S_L8)}, {want[1]}")
                        A("s_nop 0")
                        self.m0 = want
                    if k == 0:
                        self.m0 = want
                        A(f"s_add_u32 m0, {s(S_L8)}, {R1 + c*32768 + 1024*i}")
                        if c == 0 and i == 0:
                            A("s_nop 0")
                        elif i == 4:
                            A(f"v_add_u32 {v(V_W3D)}, {s(S_W3A)}, {v(V_W3D)}")
                        else:
                            A(f"s_cmp_eq_u32 {s(S_R2)}, {4-c}")
                            A(f"s_cselect_b32 {s(S_OFF)}, {(-512*3584) & 0xffffffff}, 0")
                            A(f"s_add_u32 {s(S_OFF)}, {s(S_OFF)}, {s(S_W3B)}")
                            A(f"v_add_u32 {v(V_W3D)}, {s(S_OFF)}, {v(V_W3D)}")
                    so = "0" if k == 0 else s(S_D + k - 1)
                    off = f" offset:{1024*k}" if k else ""
                    A.vmem(f"buffer_load_dwordx4 {v(V_W3D)}, {s(SRD_W3,4)}, {so} offen{off} lds", f"c{c}")
                items.append(item)
        return items

    def idle_block(self):
        A = self.A
        o = self.o
        A.vm = list(self.idle_vm)
        A.lg = []
        A("L_idle:")
        if o["t_idle"]:
            A(f"s_lshl_b32 {s(S_T0)}, {s(S_PG)}, 1")
            A(f"s_lshr_b32 {s(S_T1)}, {s(S_U)}, 3")
            A(f"s_add_u32 {s(S_T0)}, {s(S_T0)}, {s(S_T1)}")
            A(f"s_lshl_b32 {s(S_T0)}, {s(S_T0)}, 2")
            A(f"s_add_u32 {s(S_T0)}, {s(S_T0)}, {s(S_W)}")
            A(f"s_mul_i32 {s(S_T0)}, {s(S_T0)}, {112*128}")
            A(f"v_lshl_add_u32 {v(TG)}, {v(V_L)}, 7, {s(S_T0)}")
            A(f"v_cmp_gt_u32 vcc, 56, {v(V_L)}")
            A(f"v_mov_b32 {v(TH)}, {OOB:#x}")
            A(f"s_mov_b32 {s(S_T1)}, {56*128}")
            A(f"v_cndmask_b32 {v(TG)}, {v(TH)}, {v(TG)}, vcc")
            self.touch(TG, SRD_W4)
            self.touch(TG, SRD_W4, s(S_T1))
        if o["t_g"] == 1 and not o["g_sc1"]:
            A(f"s_lshr_b32 {s(S_T0)}, {s(S_U)}, 3")
            A(f"s_lshl_b32 {s(S_T0)}, {s(S_T0)}, 2")
            A(f"s_add_u32 {s(S_T0)}, {s(S_T0)}, {s(S_W)}")
            A(f"s_mul_i32 {s(S_T0)}, {s(S_T0)}, {224*128}")
            A(f"s_mul_i32 {s(S_T1)}, {s(S_B0)}, {GBATCH}")
            A(f"s_add_u32 {s(S_T0)}, {s(S_T0)}, {s(S_T1)}")
            A(f"s_add_u32 {s(S_T0)}, {s(S_T0)}, {GB}")
            A(f"v_lshl_add_u32 {v(TF)}, {v(V_L)}, 7, {s(S_T0)}")
            A(f"v_cmp_gt_u32 vcc, 56, {v(V_L)}")
            A(f"v_mov_b32 {v(TH)}, {OOB:#x}")
            A("s_nop 0")
            A(f"v_cndmask_b32 {v(TF)}, {v(TH)}, {v(TF)}, vcc")
            for i in range(4):
                A(f"s_mov_b32 {s(S_T1)}, {i*56*128}")
                self.touch(TF, SRD_WS, s(S_T1))
        A(f"s_mul_i32 {s(S_T4)}, {s(S_W)}, 40960")
        A(f"s_add_u32 {s(S_T0)}, {s(S_L16)}, {R3}")
        A(f"s_sub_u32 {s(S_T0)}, {s(S_T4)}, {s(S_T0)}")
        A(f"v_add_u32 {v(V_A2)}, {s(S_T0)}, {v(V_A0)}")
        A(f"v_xor_b32 {v(V_A3)}, 64, {v(V_A2)}")

        def dma(hh):
            def last():
                A(f"s_mov_b32 {s(S_OFF)}, 32768")
                A(f"s_cmp_eq_u32 {s(S_R4)}, {6-hh}")
                A(f"s_cselect_b32 {s(S_OFF)}, {(32768 - 7*65536) & 0xffffffff}, {s(S_OFF)}")
                A(f"v_add_u32 {v(V_WD)}, {s(S_OFF)}, {v(V_WD)}")
            for it in self.wdma_items(SRD_W4, [V_WD], 8, S_T4, (hh % 5) * 8192, S_C, 32768, f"i4d{hh}", last=last):
                it()

        def park(hh):
            w4f = lambda st, f, hh=hh: (lambda o_, n: a(8 * (4 * hh + st) + 4 * f + o_, n))
            A.wait_vm(f"i4d{hh}")
            for it in self.tr_items(w4f, [V_A2, V_A3], 4, 2048, 1024, 2, f"i4f{hh}", off0=(hh % 5) * 8192):
                it()
        for hh in range(5):
            dma(hh)
        park(0)
        park(1)
        A.wait_lg()
        dma(5)
        dma(6)
        A(f"s_add_u32 {s(S_T0)}, {s(S_FRAG)}, {X1B}")
        A(f"v_add_u32 {v(TE)}, {s(S_T0)}, {v(V_L16)}")
        A.vmem(f"buffer_load_dwordx4 {v(X1P,4)}, {v(TE)}, {s(SRD_WS,4)}, 0 offen sc1", "res")
        for hh in range(2, 7):
            park(hh)
        A("s_waitcnt vmcnt(0) lgkmcnt(0)")
        A("s_branch L_join")

    def poll1(self, HP, between=None):
        A = self.A
        L, Ld, Ln, Lg = A.label("L_p1"), A.label("L_p1d"), A.label("L_p1n"), A.label("L_p1g")
        A(f"v_lshl_add_u32 {v(TH)}, {v(V_I)}, 3, {s(S_HSP)}")
        A.vmem(f"buffer_load_dword {v(TG)}, {v(TE)}, {s(SRD_WS,4)}, 0 offen sc1", "poll")
        A.vmem(f"buffer_load_dwordx2 {v(SUM,2)}, {v(TH)}, {s(SRD_WS,4)}, 0 offen sc1", "poll")
        if between:
            between()
        A(f"s_mov_b32 {s(S_MODE)}, 1")
        A(f"s_mov_b32 {s(S_CNT)}, 0x8000")
        A.wait_vm("poll")
        A(f"v_cmp_ne_u32 vcc, {s(S_TAG)}, {v(SUM)}")
        A(f"v_cmp_ne_u32 {s(S_EX,2)}, {s(S_TAG)}, {v(TG)}")
        A(f"v_cmp_ne_u32 {s(16,2)}, {s(S_XCC)}, {v(SQ)}")
        A("s_nop 3")
        A(f"s_or_b64 vcc, vcc, {s(S_EX,2)}")
        A(f"s_or_b64 vcc, vcc, {s(16,2)}")
        A(f"s_cbranch_scc1 {L}")
        A(f"{Ld}:")
        blk = f"""{L}:
s_mov_b32 {s(S_MODE)}, 0
buffer_load_dword {v(TG)}, {v(TE)}, {s(SRD_WS,4)}, 0 offen sc1
buffer_load_dwordx2 {v(SUM,2)}, {v(TH)}, {s(SRD_WS,4)}, 0 offen sc1
s_sub_u32 {s(S_CNT)}, {s(S_CNT)}, 1
s_cmp_eq_u32 {s(S_CNT)}, 0
s_cbranch_scc1 {Ld}
s_waitcnt vmcnt(0)
v_cmp_ne_u32 vcc, {s(S_TAG)}, {v(SUM)}
v_cmp_ne_u32 {s(S_EX,2)}, {s(S_TAG)}, {v(TG)}
s_nop 4
s_cmp_eq_u64 vcc, 0
s_cbranch_scc0 {L}
v_cmp_ne_u32 vcc, {s(S_XCC)}, {v(SQ)}
s_nop 4
s_cmp_eq_u64 vcc, 0
s_cbranch_scc0 {Ln}
s_cmp_eq_u64 {s(S_EX,2)}, 0
s_cbranch_scc0 {L}
s_mov_b32 {s(S_MODE)}, 1
s_branch {Ld}
{Ln}:
buffer_store_dwordx2 {v(HP,2)}, {v(V_FO)}, {s(SRD_WS,4)}, 0 offen sc1
buffer_store_dwordx2 {v(HP+2,2)}, {v(V_FO)}, {s(SRD_WS,4)}, 0 offen offset:256 sc1
v_add_u32 {v(TG)}, {FL1G-FL1}, {v(V_FS1)}
s_waitcnt vmcnt(0)
buffer_store_dword {v(V_TAG)}, {v(TG)}, {s(SRD_WS,4)}, 0 offen sc1
v_add_u32 {v(TE)}, {FL1G-FL1}, {v(TE)}
{Lg}:
buffer_load_dword {v(TG)}, {v(TE)}, {s(SRD_WS,4)}, 0 offen sc1
s_sub_u32 {s(S_CNT)}, {s(S_CNT)}, 1
s_cmp_eq_u32 {s(S_CNT)}, 0
s_cbranch_scc1 {Ld}
s_waitcnt vmcnt(0)
v_cmp_ne_u32 vcc, {s(S_TAG)}, {v(TG)}
s_nop 4
s_cmp_eq_u64 vcc, 0
s_cbranch_scc0 {Lg}
s_branch {Ld}"""
        self.slow_blocks.append(blk)


HEADER = """; Kernarg layout: x, w1, w2, w3, w4, out, debug, ws (8 pointers)
; @launch grid=(256,1,1) block=(256,1,1) lds=163840
.amdgcn_target "amdgcn-amd-amdhsa--gfx950"
.text
.globl {name}_kernel
.p2align 8
.type {name}_kernel,@function
{name}_kernel:
"""
FOOTER = """.section .rodata,"a"
.p2align 6
.amdhsa_kernel {name}_kernel
  .amdhsa_next_free_vgpr 512
  .amdhsa_next_free_sgpr 102
  .amdhsa_accum_offset 256
  .amdhsa_group_segment_fixed_size 0
  .amdhsa_kernarg_size 64
  .amdhsa_user_sgpr_count 2
  .amdhsa_user_sgpr_kernarg_segment_ptr 1
  .amdhsa_system_sgpr_workgroup_id_x 1
  .amdhsa_float_denorm_mode_32 3
.end_amdhsa_kernel
"""


def generate(**kw):
    g = Gen(**kw)
    g.build()
    return HEADER.format(name=NAME) + g.A.text() + FOOTER.format(name=NAME), g


if __name__ == "__main__":
    import argparse
    ap = argparse.ArgumentParser()
    ap.add_argument("-o", default="cdna_kernels/" + NAME + ".s")
    ap.add_argument("--mode", default="auto", choices=["auto", "local", "global"])
    ap.add_argument("--profile", action="store_true")
    ap.add_argument("--opt", action="append", default=[])
    args = ap.parse_args()
    opts = {}
    for t in args.opt:
        k, val = t.split("=")
        opts[k] = val.split(",") if k == "stamps" else (val if k == "exit_at" else int(val))
    txt, g = generate(local={"auto": None, "local": True, "global": False}[args.mode], profile=args.profile, opts=opts)
    open(args.o, "w").write(txt)
    print("instructions:", g.A.ninstr, "stamps:", g.nstamp, ",".join(g.stamp_names))
    if args.profile:
        open(args.o, "a").write("; STAMPS " + ",".join(g.stamp_names) + "\n")
```
